```python
import torch

def _softmax(x, axis=-1):
    return torch.softmax(x, dim=axis)

def _gelu(x):
    return torch.nn.functional.gelu(x, approximate='tanh')

def _silu(x):
    return torch.nn.functional.silu(x)

def _sigmoid(x):
    return torch.sigmoid(x)

def _layernorm(x, axis=-1, eps=1e-05):
    m = x.mean(dim=axis, keepdim=True)
    v = x.var(dim=axis, keepdim=True, unbiased=False)
    return (x - m) / torch.sqrt(v + eps)

def _scatter_add(tgt, idx, src, axis=0):
    return tgt.clone().index_add_(axis, idx, src)

def _segment_sum(src, seg, n):
    out = torch.zeros((n,) + src.shape[1:], dtype=src.dtype)
    return out.index_add_(0, seg, src)

def _pad(x, pw):
    flat = tuple((v for pair in reversed(pw) for v in pair))
    return torch.nn.functional.pad(x, flat)
kernel_name = 'adaLN_cond__compressed_kv_cla__dense_activation_silu__prompt'

def setup_inputs():

    _w = lambda a: (lambda t: t.to(torch.bfloat16) if t.is_floating_point() else t)(torch.as_tensor(a))

    def _A_setup():
        B, H, Sq, Sk, D, M = (1, 16, 2048, 2048, 256, 448)
        Dc = 4 * D
        return {'x': _w((lambda *s: torch.randn(*s, dtype=torch.bfloat16) * 0.05)(B, Sq, M)), 'c_kv': _w((lambda *s: torch.randn(*s, dtype=torch.bfloat16) * 0.8)(B, Sk, Dc)), 'w_q': _w((lambda *s: torch.randn(*s, dtype=torch.bfloat16) * 1.6)(M, H, D) * M ** (-0.5)), 'w_uk': _w((lambda *s: torch.randn(*s, dtype=torch.bfloat16) * 1.6)(Dc, H, D) * Dc ** (-0.5)), 'w_uv': _w((lambda *s: torch.randn(*s, dtype=torch.bfloat16) * 0.8)(Dc, H, D) * Dc ** (-0.5)), 'w_o': _w((lambda *s: torch.randn(*s, dtype=torch.bfloat16) * 0.8)(H, D, M) * (H * D) ** (-0.5))}
    _A_in = _A_setup()

    def _B_setup():
        B, S, D, F = (1, 2048, 448, 1792)
        return {'x': _w((lambda *s: torch.randn(*s, dtype=torch.bfloat16) * 0.05)(B, S, D)), 'w1': _w((lambda *s: torch.randn(*s, dtype=torch.bfloat16) * 1.6)(D, F) * D ** (-0.5)), 'w2': _w((lambda *s: torch.randn(*s, dtype=torch.bfloat16) * 0.2)(F, D) * F ** (-0.5))}
    _B_in = _B_setup()
    return {'A_x': _A_in['x'], 'A_c_kv': _A_in['c_kv'], 'A_w_q': _A_in['w_q'], 'A_w_uk': _A_in['w_uk'], 'A_w_uv': _A_in['w_uv'], 'A_w_o': _A_in['w_o'], 'B_x': _B_in['x'], 'B_w1': _B_in['w1'], 'B_w2': _B_in['w2'], 'c': _w((lambda *s: torch.randn(*s, dtype=torch.bfloat16) * 0.1)(1, 448) * 8.0), 'w_mod': _w((lambda *s: torch.randn(*s, dtype=torch.bfloat16) * 0.1)(448, 6 * 448) * 448 ** (-0.5) * 8.0)}

def reference(A_x, A_c_kv, A_w_q, A_w_uk, A_w_uv, A_w_o, B_x, B_w1, B_w2, c, w_mod):

    def _A_ref(x, c_kv, w_q, w_uk, w_uv, w_o):
        B, Sq, M = (x.shape[0], x.shape[1], x.shape[2])
        Sk = c_kv.shape[1]
        H, D = (w_q.shape[1], w_q.shape[2])
        q = torch.einsum('bqm,mhd->bhqd', x, w_q)
        k = torch.einsum('bkc,chd->bhkd', c_kv, w_uk)
        v = torch.einsum('bkc,chd->bhkd', c_kv, w_uv)
        scores = torch.einsum('bhqd,bhkd->bhqk', q, k) * D ** (-0.5)
        off = Sk - Sq
        qi = torch.arange(Sq)[:, None]
        kj = torch.arange(Sk)[None, :]
        cmask = kj <= qi + off
        scores = torch.where(cmask[None, None], scores, -1000000000.0)
        p = _softmax(scores, axis=-1)
        ctx = torch.einsum('bhqk,bhkd->bhqd', p, v)
        return torch.einsum('bhqd,hdm->bqm', ctx, w_o)

    def _B_ref(x, w1, w2):
        h = torch.einsum('bsd,df->bsf', x, w1)
        h = _silu(h)
        out = torch.einsum('bsf,fd->bsd', h, w2)
        return out
    x = A_x
    mod = (_silu(c) @ w_mod).reshape(c.shape[0], 6, 1, -1)
    sa, ca, ga, sb, cb, gb = (mod[:, 0].clone(), mod[:, 1].clone(), mod[:, 2].clone(), mod[:, 3].clone(), mod[:, 4].clone(), mod[:, 5].clone())
    h = _layernorm(x, axis=-1) * (1 + ca) + sa
    x = x + ga * _A_ref(h, A_c_kv, A_w_q, A_w_uk, A_w_uv, A_w_o)
    h = _layernorm(x, axis=-1) * (1 + cb) + sb
    x = x + gb * _B_ref(h, B_w1, B_w2)
    return x
```

```python
import re
import sys

TRANS = ("v_exp_f32", "v_log_f32", "v_rcp_f32", "v_rsq_f32", "v_sqrt_f32", "v_sin_f32", "v_cos_f32")
SPECIAL = {"vcc": [("s", 106), ("s", 107)], "vcc_lo": [("s", 106)], "vcc_hi": [("s", 107)],
           "exec": [("s", 126), ("s", 127)], "exec_lo": [("s", 126)], "exec_hi": [("s", 127)],
           "m0": [("s", 124)]}
REG_RE = re.compile(r"^(-|abs\()?([vas])(\d+)\)?$")
RNG_RE = re.compile(r"^(-|abs\()?([vas])\[(\d+):(\d+)\]\)?$")


def regs_of(tok):
    tok = tok.strip()
    if tok in SPECIAL:
        return list(SPECIAL[tok])
    m = REG_RE.match(tok)
    if m:
        return [(m.group(2), int(m.group(3)))]
    m = RNG_RE.match(tok)
    if m:
        return [(m.group(2), i) for i in range(int(m.group(3)), int(m.group(4)) + 1)]
    return []


def split_ops(s):
    out, depth, cur = [], 0, ""
    for ch in s:
        if ch in "[(":
            depth += 1
        if ch in "])":
            depth -= 1
        if ch == "," and depth == 0:
            out.append(cur.strip())
            cur = ""
        else:
            cur += ch
    if cur.strip():
        out.append(cur.strip())
    return out


class Ins:
    __slots__ = ("text", "op", "kind", "defs", "uses", "srcc", "srcab", "passes", "ws", "target",
                 "dpp", "lds", "wide", "data", "mods", "label", "auto")

    def __init__(self, text):
        self.text = text
        self.label = None
        self.auto = False
        self.target = None
        self.defs, self.uses, self.srcc, self.srcab, self.data = set(), set(), [], set(), set()
        self.passes = 0
        self.ws = 1
        self.dpp = self.lds = self.wide = False
        t = text.split(";")[0].strip()
        if t.endswith(":"):
            self.label = t[:-1]
            self.kind = "label"
            self.op = ""
            self.ws = 0
            return
        if not t or t.startswith("."):
            self.kind = "none"
            self.op = ""
            self.ws = 0
            return
        parts = t.split(None, 1)
        op = parts[0]
        self.op = op
        rest = parts[1] if len(parts) > 1 else ""
        ops = split_ops(rest)
        mods = ""
        if ops:
            lp = ops[-1].split(None, 1)
            if len(lp) > 1 and not ops[-1].startswith("hwreg") and not op.startswith("s_waitcnt"):
                ops[-1] = lp[0]
                mods = lp[1]
        self.mods = mods
        R = [regs_of(o) for o in ops]
        flat = lambda l: set(x for y in l for x in y)
        if op.startswith("v_mfma"):
            self.kind = "mfma"
            self.passes = 8 if "32x32x16" in op else 4
            self.defs = set(R[0])
            self.srcab = set(R[1]) | set(R[2])
            self.srcc = R[3]
            self.uses = self.srcab | set(R[3])
        elif op.startswith("v_"):
            self.kind = "valu"
            self.dpp = "_dpp" in op or "row_" in mods or "quad_perm" in mods
            if op.startswith("v_permlane") and "swap" in op:
                self.defs = flat(R[:2])
                self.uses = flat(R[:2])
            elif op.startswith(("v_add_co", "v_sub_co", "v_addc_co", "v_subb_co", "v_subrev_co")):
                self.defs = flat(R[:2])
                self.uses = flat(R[2:])
            elif op == "v_nop":
                pass
            else:
                self.defs = set(R[0])
                self.uses = flat(R[1:])
                if op.startswith(("v_fmac", "v_dot2c", "v_pk_fmac", "v_writelane")) or self.dpp:
                    self.uses |= set(R[0])
        elif op.startswith("ds_"):
            self.kind = "ds"
            if op.startswith(("ds_read", "ds_bpermute", "ds_permute", "ds_swizzle")):
                self.defs = set(R[0])
                self.uses = flat(R[1:])
            else:
                self.uses = flat(R)
        elif op.startswith(("buffer_", "global_")):
            self.kind = "vmem"
            self.lds = (" lds" in " " + mods) or "_lds_" in op
            if op in ("buffer_wbl2", "buffer_inv"):
                pass
            elif self.lds:
                self.uses = flat(R) | {("s", 124)}
            elif "load" in op:
                self.defs = set(R[0])
                self.uses = flat(R[1:])
            else:
                self.uses = flat(R)
                self.data = set(R[0]) if op.startswith("buffer_") else set(R[1])
                self.wide = op.endswith(("x3", "x4"))
                if "atomic" in op and "sc0" in mods:
                    self.defs = set(R[0])
        elif op.startswith(("s_load", "s_memtime", "s_memrealtime", "s_buffer_load")):
            self.kind = "smem"
            self.defs = set(R[0])
            self.uses = flat(R[1:])
        elif op == "s_nop":
            self.kind = "nop"
            self.ws = int(ops[0], 0) + 1
        elif op == "s_waitcnt":
            self.kind = "wait"
        elif op in ("s_branch",) or op.startswith("s_cbranch"):
            self.kind = "branch"
            self.target = ops[0]
        elif op in ("s_endpgm",):
            self.kind = "end"
        elif op in ("s_barrier", "s_sleep", "s_setprio"):
            self.kind = "misc"
        elif op.startswith("s_"):
            self.kind = "salu"
            if op.startswith(("s_cmp", "s_bitcmp")):
                self.uses = flat(R)
            else:
                self.defs = set(R[0])
                self.uses = flat(R[1:])
                if "saveexec" in op:
                    self.defs |= set(SPECIAL["exec"])
                if op.startswith(("s_addk", "s_mulk", "s_cmov")):
                    self.uses |= set(R[0])
        else:
            raise ValueError("unknown instruction: " + text)

    def is_trans(self):
        return self.op.replace("_e32", "").replace("_e64", "") in TRANS


def vec(regs):
    return set(r for r in regs if r[0] in "va")


def sgp(regs):
    return set(r for r in regs if r[0] == "s")


def need(p, c):
    n = 0
    if p.kind == "valu":
        pv = vec(p.defs)
        ps = sgp(p.defs)
        if c.kind == "mfma" and pv & c.uses:
            n = max(n, 2)
        if c.kind == "vmem" and ps & c.uses:
            n = max(n, 5)
        if c.kind == "valu":
            if ps & c.uses:
                n = max(n, 4 if c.op.startswith(("v_readlane", "v_writelane")) else 2)
            if c.op.startswith(("v_readlane", "v_readfirstlane")) and pv & c.uses:
                n = max(n, 1)
            if p.is_trans() and pv & c.uses:
                n = max(n, 1)
            if (c.dpp or c.op.startswith("v_permlane")) and pv & c.uses:
                n = max(n, 2)
        if c.kind == "salu" and ps & c.uses:
            n = max(n, 1)
    if p.kind == "mfma":
        far = 12 if p.passes == 8 else 8
        if c.kind == "mfma":
            if p.defs & c.srcab:
                n = max(n, far)
            cs = set(c.srcc)
            if cs & p.defs and not (cs == p.defs and c.passes == p.passes):
                n = max(n, far - 2)
            if c.defs & p.defs and not (cs == p.defs):
                n = max(n, far - 2)
        elif c.kind in ("valu", "vmem", "ds"):
            if p.defs & (c.uses | c.defs):
                n = max(n, far)
            if c.kind == "valu" and set(p.srcc) & c.defs:
                n = max(n, 7 if p.passes == 8 else 3)
    if p.kind == "salu" and ("s", 124) in p.defs and c.kind == "vmem" and c.lds:
        n = max(n, 1)
    if p.kind == "vmem" and p.wide and p.data & c.defs:
        n = max(n, 2 if c.kind == "valu" else 1)
    return n


class Prog:
    def __init__(self):
        self.ins = []
        self._uid = 0

    def __call__(self, text):
        for line in text.split("\n"):
            if line.strip():
                self.ins.append(Ins(line.strip()))

    def label(self, name):
        self.ins.append(Ins(name + ":"))

    def uid(self, base):
        self._uid += 1
        return "%s_%d" % (base, self._uid)

    def preds(self):
        labels = {x.label: i for i, x in enumerate(self.ins) if x.label}
        pr = [[] for _ in self.ins]
        for i, x in enumerate(self.ins):
            if x.kind == "branch":
                pr[labels[x.target]].append(i)
            if i + 1 < len(self.ins) and not (x.kind == "end" or x.op == "s_branch"):
                pr[i + 1].append(i)
        return pr

    def fix_hazards(self, verbose=True):
        total = 0
        again = True
        while again:
            again = False
            pr = self.preds()
            i = 0
            while i < len(self.ins):
                ins = self.ins
                c = ins[i]
                if c.kind in ("label", "none", "nop", "wait", "misc", "branch", "end"):
                    i += 1
                    continue
                short = 0
                why = None
                stack = [(j, 0) for j in pr[i]]
                seen = {}
                while stack:
                    j, d = stack.pop()
                    if d >= 12 or seen.get(j, 99) <= d:
                        continue
                    seen[j] = d
                    p = ins[j]
                    n = need(p, c)
                    if n - d > short:
                        short = n - d
                        why = p
                    for k in pr[j]:
                        stack.append((k, d + p.ws))
                if short > 0:
                    nop = Ins("s_nop %d" % (short - 1))
                    nop.auto = True
                    nop.text += "  ; auto: after " + why.text.split(";")[0].strip()
                    self.ins.insert(i, nop)
                    total += 1
                    again = True
                    if verbose:
                        print("  hazard nop(%d) before [%s] after [%s]" % (short, c.text, why.text),
                              file=sys.stderr)
                    pr = self.preds()
                    i += 1
                i += 1
        return total

    def check_waits(self):
        ins = self.ins
        labels = {x.label: i for i, x in enumerate(ins) if x.label}
        errs = set()
        seen = set()
        stack = [(0, (), ())]
        steps = 0
        while stack:
            i, vm, lg = stack.pop()
            while i < len(ins):
                x = ins[i]
                steps += 1
                if steps > 5_000_000:
                    print("check_waits: too many steps", file=sys.stderr)
                    return errs
                if x.kind == "label":
                    key = (i, vm, lg)
                    if key in seen:
                        break
                    seen.add(key)
                if x.kind == "wait":
                    m = re.search(r"vmcnt\((\d+)\)", x.text)
                    if m:
                        n = int(m.group(1))
                        vm = vm[len(vm) - n:] if n < len(vm) else vm
                        if n == 0:
                            vm = ()
                    m = re.search(r"lgkmcnt\((\d+)\)", x.text)
                    if m:
                        n = int(m.group(1))
                        if n == 0:
                            lg = ()
                        elif not any(e[0] == "smem" for e in lg) and n < len(lg):
                            lg = lg[len(lg) - n:]
                elif x.kind not in ("label", "none"):
                    touch = x.uses | x.defs
                    if touch:
                        for e in vm:
                            if e[1] & (x.uses if x.kind == "vmem" else touch):
                                errs.add((i, "vm", x.text))
                        for e in lg:
                            if e[1] & (x.uses if x.kind == "ds" else touch):
                                errs.add((i, "lgkm", x.text))
                    if x.kind == "vmem" and x.op not in ("buffer_wbl2", "buffer_inv"):
                        vm = (vm + (("vm", frozenset(x.defs)),))[-64:]
                        while vm and not vm[0][1]:
                            vm = vm[1:]
                    elif x.kind == "ds":
                        lg = lg + (("ds", frozenset(x.defs)),)
                        while lg and not lg[0][1] and lg[0][0] == "ds":
                            lg = lg[1:]
                        lg = lg[-40:]
                    elif x.kind == "smem":
                        lg = lg + (("smem", frozenset(x.defs)),)
                if x.kind == "end":
                    break
                if x.kind == "branch":
                    t = labels[x.target]
                    if x.op == "s_branch":
                        i = t
                        continue
                    stack.append((t, vm, lg))
                i += 1
        for e in sorted(errs):
            print("  WAIT ERROR at %d (%s): %s" % e, file=sys.stderr)
        return errs

    def text(self):
        out = []
        for x in self.ins:
            out.append(x.text if (x.label or x.kind == "none") else "    " + x.text)
        return "\n".join(out) + "\n"

    def maxregs(self):
        mx = {"v": -1, "a": -1, "s": -1}
        for x in self.ins:
            for k, n in x.defs | x.uses:
                if k == "s" and n >= 102:
                    continue
                mx[k] = max(mx[k], n)
        return mx


def weave(mfmas, fillers):
    out = list(fillers.get(-1, []))
    for i, m in enumerate(mfmas):
        out.append(m)
        out.extend(fillers.get(i, []))
    return out


def spread(fill, items, start, end, per=None):
    n = len(items)
    span = end - start
    for k, it in enumerate(items):
        g = start + (k * span) // n if per is None else start + k // per
        fill.setdefault(g, [])
        if isinstance(it, str):
            fill[g].append(it)
        else:
            fill[g].extend(it)


def kernel_text(name, prog, lds_static=0):
    nh = prog.fix_hazards()
    errs = prog.check_waits()
    assert not errs, "waitcnt errors in " + name
    mx = prog.maxregs()
    nv = mx["v"] + 1
    acc = max(4, (nv + 3) // 4 * 4)
    nfv = acc + mx["a"] + 1 if mx["a"] >= 0 else nv
    ns = max(mx["s"] + 1, 8)
    assert nv <= 256 and nfv <= 512 and ns <= 102, (name, mx)
    print("kernel %s: v=%d a=%d s=%d nfv=%d ins=%d autonops=%d" % (name, nv, mx["a"] + 1, ns, nfv, len(prog.ins), nh),
          file=sys.stderr)
    code = ".text\n.globl %s\n.p2align 8\n.type %s,@function\n%s:\n" % (name, name, name) + prog.text()
    desc = """.section .rodata,"a"
.p2align 6
.amdhsa_kernel %s
  .amdhsa_next_free_vgpr %d
  .amdhsa_next_free_sgpr %d
  .amdhsa_accum_offset %d
  .amdhsa_group_segment_fixed_size %d
  .amdhsa_kernarg_size 112
  .amdhsa_user_sgpr_count 2
  .amdhsa_user_sgpr_kernarg_segment_ptr 1
  .amdhsa_system_sgpr_workgroup_id_x 1
.end_amdhsa_kernel
""" % (name, nfv, ns, acc, lds_static)
    return code, desc
```

```python
from asmlib import *
from layout import *

MF = "v_mfma_f32_16x16x32_bf16"
WS_BYTES = 268435456


def srd(p, d, lo, hi, size):
    p("s_mov_b32 s%d, s%d" % (d, lo))
    p("s_and_b32 s%d, s%d, 0xffff" % (d + 1, hi))
    p("s_mov_b32 s%d, 0x%x" % (d + 2, size))
    p("s_mov_b32 s%d, 0x20000" % (d + 3))


def vr(b, n=4, k="v"):
    return "%s[%d:%d]" % (k, b, b + n - 1)


def ar(b, n=4):
    return vr(b, n, "a")


class Stamper:
    def __init__(self, p, on, base=0):
        self.p, self.on, self.base = p, on, base

    def __call__(self, i):
        if self.on:
            self.p('s_memtime s[%d:%d]' % (64 + 2 * i, 65 + 2 * i))
            self.p('s_memrealtime s[%d:%d]' % (80 + 2 * i, 81 + 2 * i))
            self.p('s_waitcnt lgkmcnt(0)')

    def dump(self, wave_sgpr, nw=4):
        if not self.on:
            return
        p = self.p
        p("s_load_dwordx2 s[96:97], s[0:1], 104")
        p("s_waitcnt lgkmcnt(0)")
        p("s_add_u32 s96, s96, 0x%x" % (WS_STAMP + self.base * 0x20000))
        p("s_addc_u32 s97, s97, 0")
        srd(p, 56, 96, 97, 1024 * 128)
        p("s_mul_i32 s3, s2, %d" % nw)
        p("s_add_u32 s3, s3, s%d" % wave_sgpr)
        p("s_lshl_b32 s3, s3, 7")
        p("v_mov_b32 v3, 0")
        for i in range(32):
            p("v_mov_b32 v4, s%d" % (64 + i))
            p("buffer_store_dword v4, v3, s[56:59], s3 offen offset:%d" % (4 * i))


def xsum_345(p, v, t):
    p("v_add_f32_dpp v%d, v%d, v%d row_ror:8 row_mask:0xf bank_mask:0xf" % (v, v, v))
    p("v_mov_b32 v%d, v%d" % (t, v))
    p("v_permlane16_swap_b32 v%d, v%d" % (v, t))
    p("v_add_f32 v%d, v%d, v%d" % (v, v, t))
    p("v_mov_b32 v%d, v%d" % (t, v))
    p("v_permlane32_swap_b32 v%d, v%d" % (v, t))
    p("v_add_f32 v%d, v%d, v%d" % (v, v, t))


def xop_45(p, v, t, op):
    p("v_mov_b32 v%d, v%d" % (t, v))
    p("v_permlane16_swap_b32 v%d, v%d" % (v, t))
    p("%s v%d, v%d, v%d" % (op, v, v, t))
    p("v_mov_b32 v%d, v%d" % (t, v))
    p("v_permlane32_swap_b32 v%d, v%d" % (v, t))
    p("%s v%d, v%d, v%d" % (op, v, v, t))


def f32bits(x):
    import struct
    return "0x%08x" % struct.unpack("<I", struct.pack("<f", x))[0]


def round_bf16(p, v):
    p("v_cvt_pk_bf16_f32 v%d, v%d, v%d" % (v, v, v))
    p("v_and_b32 v%d, 0xffff0000, v%d" % (v, v))


class Sched:
    def __init__(self, n, cap=2):
        self.n, self.cap = n, cap
        self.g = [[] for _ in range(n)]
        self.used = [0] * n
        self.pre = []

    @staticmethod
    def cost(s):
        return 2 if s.startswith(("v_exp", "v_rcp", "v_rsq", "v_log")) else 1

    def at(self, gap, s):
        self.g[gap].append(s)
        self.used[gap] += self.cost(s)

    def stream(self, items, start=0, end=None):
        end = self.n if end is None else end
        g = start
        for s in items:
            c = self.cost(s)
            while g < end - 1 and self.used[g] + c > max(self.cap, c if self.used[g] == 0 else 0):
                g += 1
            self.at(g, s)
        return g

    def weave(self, mfmas):
        assert len(mfmas) == self.n
        out = list(self.pre)
        for m, f in zip(mfmas, self.g):
            out.append(m)
            out.extend(f)
        return "\n".join(out)

    def flat(self):
        out = list(self.pre)
        for f in self.g:
            out.extend(f)
        return "\n".join(out)
```

```python
from common import *

SPLIT = 38
OP_STRIDE = 0x12000
L16, BKV, BWQ, BWO, ACT, RKV = 2, 3, 4, 5, 6, 14
WQB, WOB, CUR = 16, 24, 28
THR0, THR, LS, BS, T0 = 36, 37, 38, 40, 42
ZER = 44
NEGM, PF, S, PP, XT, Q, MRG, TMP = 48, 56, 64, 80, 96, 112, 176, 240
NEGBIG = 15
FA, FB = 128, 192
RING = 4 * 32768
sWAVE, sHEAD, sROLE = 18, 19, 20
sPO, sPS, sRW, sRR = 21, 22, 24, 25
sT, sB0, sNB, sACT = 26, 27, 28, 29
sT2, sNB2 = 30, 31
sCNT, sB, sD0, sPUB, sPAIR = 32, 33, 34, 35, 36
sX, sY, sZ = 37, 38, 39
sTHRESH = 48
sW1K = 49
sO0, sO1 = 50, 51


def Sreg(kt, qt):
    return S + (kt * 2 + qt) * 4


def Hreg(ks, qt):
    return MRG + (ks * 2 + qt) * 4 if ks < 8 else S + ((ks - 8) * 2 + qt) * 4


def Oreg(dt, qt):
    return (dt * 2 + qt) * 4


def gen_attn(stamp=False, thresh=2.0 ** 30):
    p = Prog()
    st = Stamper(p, stamp, 1)
    p("s_cmp_ge_u32 s2, 256")
    p("s_cbranch_scc1 AT_END")
    st(0)
    p("s_load_dwordx2 s[12:13], s[0:1], 104")
    p("s_load_dwordx2 s[14:15], s[0:1], 16")
    p("s_load_dwordx2 s[16:17], s[0:1], 40")
    p("v_and_b32 v1, 63, v0")
    p("v_lshrrev_b32 v%d, 6, v0" % TMP)
    p("v_readfirstlane_b32 s%d, v%d" % (sWAVE, TMP))
    p("s_and_b32 s3, s2, 7")
    p("s_lshr_b32 s%d, s2, 3" % sX)
    p("s_and_b32 s%d, s%d, 1" % (sY, sX))
    p("s_lshl_b32 s3, s3, 1")
    p("s_add_u32 s%d, s3, s%d" % (sHEAD, sY))
    p("s_lshr_b32 s%d, s%d, 1" % (sROLE, sX))
    p("s_mov_b32 s%d, 0" % sPUB)
    p("s_cmp_lt_u32 s%d, 6" % sROLE)
    p("s_cbranch_scc1 AT_ROLE_A")
    p("s_cmp_lt_u32 s%d, 12" % sROLE)
    p("s_cbranch_scc1 AT_ROLE_B")
    p("s_sub_u32 s%d, s%d, 6" % (sT, sROLE))
    p("s_mov_b32 s%d, 0" % sB0)
    p("s_lshl_b32 s%d, s%d, 2" % (sNB, sT))
    p("s_add_u32 s%d, s%d, 4" % (sNB, sNB))
    p("s_mov_b32 s%d, 0" % sACT)
    p("s_mov_b32 s%d, 0" % sX)
    p("s_branch AT_ROLE_DONE")
    p.label("AT_ROLE_A")
    p("s_add_u32 s%d, s%d, 10" % (sT, sROLE))
    p("s_mov_b32 s%d, 0" % sB0)
    p("s_mov_b32 s%d, %d" % (sNB, SPLIT))
    p("s_mov_b32 s%d, 1" % sACT)
    p("s_mov_b32 s%d, s%d" % (sX, sROLE))
    p("s_branch AT_ROLE_DONE")
    p.label("AT_ROLE_B")
    p("s_add_u32 s%d, s%d, 4" % (sT, sROLE))
    p("s_mov_b32 s%d, %d" % (sB0, SPLIT))
    p("s_lshl_b32 s%d, s%d, 2" % (sNB, sT))
    p("s_sub_u32 s%d, s%d, %d" % (sNB, sNB, SPLIT - 4))
    p("s_mov_b32 s%d, 2" % sACT)
    p("s_sub_u32 s%d, s%d, 6" % (sX, sROLE))
    p.label("AT_ROLE_DONE")
    p("s_sub_u32 s%d, 15, s%d" % (sT2, sT))
    p("s_lshl_b32 s%d, s%d, 2" % (sNB2, sT2))
    p("s_add_u32 s%d, s%d, 4" % (sNB2, sNB2))
    p("s_mul_i32 s%d, s%d, 6" % (sPAIR, sHEAD))
    p("s_add_u32 s%d, s%d, s%d" % (sPAIR, sPAIR, sX))
    p("s_mov_b32 s%d, %s" % (sTHRESH, f32bits(thresh)))
    p("s_lshl_b32 s%d, s%d, 10" % (sW1K, sWAVE))
    W, HI, G, R, C = TMP, TMP + 1, TMP + 2, TMP + 3, TMP + 4
    a, b, c = TMP + 5, TMP + 6, TMP + 7
    p("v_lshlrev_b32 v%d, 4, v1" % L16)
    p("v_lshrrev_b32 v%d, 5, v1" % HI)
    p("v_lshrrev_b32 v%d, 4, v1" % G)
    p("v_bfe_u32 v%d, v1, 2, 2" % R)
    p("v_and_b32 v%d, 3, v1" % C)
    p("v_lshl_add_u32 v%d, v%d, 10, v%d" % (BKV, W, L16))
    p("v_lshl_add_u32 v%d, v%d, 1, v%d" % (a, W, HI))
    p("v_lshlrev_b32 v%d, 1, v%d" % (b, a))
    p("v_and_b32 v%d, 31, v1" % c)
    p("v_xor_b32 v%d, v%d, v%d" % (b, b, c))
    p("v_lshlrev_b32 v%d, 4, v%d" % (b, b))
    p("v_lshl_add_u32 v%d, v%d, 13, v%d" % (BWQ, a, b))
    p("v_lshrrev_b32 v%d, 3, v1" % a)
    p("v_lshl_add_u32 v%d, v%d, 3, v%d" % (a, W, a))
    p("v_bfe_u32 v%d, v%d, 1, 2" % (b, a))
    p("v_lshlrev_b32 v%d, 1, v%d" % (b, b))
    p("v_and_b32 v%d, 7, v1" % c)
    p("v_xor_b32 v%d, v%d, v%d" % (b, b, c))
    p("v_lshlrev_b32 v%d, 4, v%d" % (b, b))
    p("v_mul_u32_u24 v%d, 896, v%d" % (a, a))
    p("v_add_u32 v%d, v%d, v%d" % (BWO, a, b))
    p("v_lshrrev_b32 v%d, 2, v1" % a)
    p("v_lshlrev_b32 v%d, 9, v%d" % (b, a))
    p("v_lshl_add_u32 v%d, v%d, 3, v%d" % (b, C, b))
    p("v_and_b32 v%d, 7, v%d" % (c, a))
    p("v_lshl_add_u32 v%d, v%d, 5, v%d" % (b, c, b))
    for x in range(8):
        p("v_xor_b32 v%d, %d, v%d" % (WQB + x, x * 32, b))
    p("v_lshlrev_b32 v%d, 7, v%d" % (b, a))
    p("v_lshl_add_u32 v%d, v%d, 3, v%d" % (b, C, b))
    p("v_bfe_u32 v%d, v%d, 1, 2" % (c, a))
    p("v_lshl_add_u32 v%d, v%d, 5, v%d" % (b, c, b))
    for x in range(4):
        p("v_xor_b32 v%d, %d, v%d" % (WOB + x, x * 32, b))
    p("v_and_b32 v%d, 15, v1" % a)
    p("v_lshlrev_b32 v%d, 2, v%d" % (b, G))
    p("v_sub_u32 v%d, v%d, v%d" % (a, a, b))
    p("v_lshl_add_u32 v%d, v%d, 5, v%d" % (THR0, W, a))
    p("v_mov_b32 v%d, %s" % (NEGBIG, f32bits(-1e30)))
    for i in range(4):
        p("v_mov_b32 v%d, 0" % (ZER + i))
    p("s_waitcnt lgkmcnt(0)")
    srd(p, 8, 12, 13, WS_BYTES)
    p("s_mov_b32 s7, 0x20000")

    def prod_set(kind):
        lo, size, base, js, ps = {"wq": (14, 448 * 4096 * 2, BWQ, 65536, 0x80000),
                                  "wo": (16, 448 * 4096 * 2, BWO, 28672, 128),
                                  "kv": (12, WS_BYTES, BKV, 4096, 32768)}[kind]
        o = ["s_mov_b32 s4, s%d" % lo, "s_and_b32 s5, s%d, 0xffff" % (lo + 1), "s_mov_b32 s6, 0x%x" % size,
             "s_mov_b32 s%d, 0x%x" % (sPS, ps)]
        if kind == "wq":
            o += ["s_lshl_b32 s%d, s%d, 9" % (sPO, sHEAD)]
        elif kind == "wo":
            o += ["s_mul_i32 s%d, s%d, 229376" % (sPO, sHEAD)]
        else:
            o += ["s_lshl_b32 s%d, s%d, 6" % (sPO, sHEAD), "s_add_u32 s%d, s%d, s%d" % (sPO, sPO, sB0),
                  "s_lshl_b32 s%d, s%d, 15" % (sPO, sPO), "s_add_u32 s%d, s%d, 0x%x" % (sPO, sPO, WS_KV - 16384)]
        o += ["v_mov_b32 v%d, v%d" % (ACT, base)]
        for j in range(1, 8):
            o += ["v_add_u32 v%d, 0x%x, v%d" % (ACT + j, j * js, base)]
        return o

    def dma(j):
        return ["s_add_u32 m0, s%d, %d" % (sRW, j * 4096),
                "buffer_load_dwordx4 v%d, s[4:7], s%d offen lds" % (ACT + j, sPO)]

    def prod_adv():
        return ["s_add_u32 s%d, s%d, s%d" % (sPO, sPO, sPS), "s_add_u32 s%d, s%d, 0x8000" % (sRW, sRW),
                "s_and_b32 s%d, s%d, 0x%x" % (sRW, sRW, RING - 1)]

    def sched_dma(sc):
        for j in range(8):
            d = dma(j)
            sc.at(4 * j, d[0])
            sc.at(4 * j + 1, d[1])
        for k, s in enumerate(prod_adv()):
            sc.at(30 + (k > 0), s)

    def ring_adv():
        return ["s_add_u32 s%d, s%d, 0x8000" % (sRR, sRR), "s_and_b32 s%d, s%d, 0x%x" % (sRR, sRR, RING - 1)]

    def cur_set(kind):
        if kind == "kv":
            return ["v_add_u32 v%d, s%d, v%d" % (RKV, sRR, L16)]
        n, base = (8, WQB) if kind == "wq" else (4, WOB)
        return ["v_add_u32 v%d, s%d, v%d" % (CUR + x, sRR, base + x) for x in range(n)]

    def reads(kind, half):
        F = FA if half == 0 else FB
        o = []
        if kind == "kv":
            for f in range(16):
                o.append("ds_read_b128 %s, v%d offset:%d" % (ar(F + 4 * f), RKV, (16384 if half == 0 else 0) + 1024 * f))
        elif kind == "wq":
            for dt in range(16):
                for i in range(2):
                    o.append("ds_read_b64_tr_b16 %s, v%d offset:%d" % (
                        ar(F + 4 * dt + 2 * i, 2), CUR + (dt & 7), half * 16384 + i * 8192 + (dt >> 3) * 256))
        else:
            for mt in range(2):
                for u in range(8):
                    for i in range(2):
                        o.append("ds_read_b64_tr_b16 %s, v%d offset:%d" % (
                            ar(F + 4 * (mt * 8 + u) + 2 * i, 2), CUR + 2 * half + mt, u * 4096 + i * 2048))
        return o

    def next_fa(kind):
        return ring_adv() + cur_set(kind) + reads(kind, 0)

    def h_loads(tile_s, ks_list):
        o = ["s_lshl_b32 s%d, s%d, 3" % (sX, tile_s), "s_lshl_b32 s%d, s%d, 1" % (sY, sWAVE),
             "s_add_u32 s%d, s%d, s%d" % (sX, sX, sY), "s_mul_i32 s%d, s%d, 14336" % (sX, sX),
             "s_add_u32 s%d, s%d, 0x%x" % (sX, sX, WS_H)]
        for ks in ks_list:
            for qt in range(2):
                off = qt * 14336 + ks * 1024
                o.append("s_add_u32 s%d, s%d, %d" % (sY, sX, off & ~0xfff))
                o.append("buffer_load_dwordx4 %s, v%d, s[8:11], s%d offen offset:%d" % (vr(Hreg(ks, qt)), L16, sY, off & 0xfff))
        return o

    BAR = "s_waitcnt vmcnt(16) lgkmcnt(0)\ns_barrier"

    p("\n".join(h_loads(sT, range(14))))
    p("\n".join(prod_set("wq")))
    p("s_mov_b32 s%d, s%d" % (sRW, sW1K))
    p("s_mov_b32 s%d, 0" % sRR)
    for g in range(3):
        for j in range(8):
            p("\n".join(dma(j)))
        p("\n".join(prod_adv()))
    p("\n".join(cur_set("wq")))
    st(1)
    p("s_waitcnt vmcnt(16)")
    p("s_barrier")
    p("\n".join(reads("wq", 0)))

    p.label("AT_JOB")
    for t in range(7):
        for half in range(2):
            ks = 2 * t + half
            F = FA if half == 0 else FB
            mf = []
            for dt in range(16):
                for qt in range(2):
                    acc = ar(Oreg(dt, qt))
                    mf.append("%s %s, %s, %s, %s" % (MF, acc, ar(F + 4 * dt), vr(Hreg(ks, qt)), "0" if ks == 0 else acc))
            sc = Sched(32)
            if half == 0:
                p("s_waitcnt lgkmcnt(0)")
                sched_dma(sc)
                sc.stream(reads("wq", 1))
                p(sc.weave(mf))
                if t == 2:
                    p("s_cmp_eq_u32 s%d, 0" % sPUB)
                    p("s_cbranch_scc1 AT_NOPUB")
                    p("s_waitcnt vmcnt(0) lgkmcnt(0)")
                    p("s_barrier")
                    p("s_mov_b32 s%d, 0" % sPUB)
                    p("s_cmp_lg_u32 s%d, 0" % sWAVE)
                    p("s_cbranch_scc1 AT_PUBDONE")
                    p("s_lshl_b32 s%d, s%d, 2" % (sX, sPAIR))
                    p("s_add_u32 s%d, s%d, 0x%x" % (sX, sX, WS_FLAG))
                    p("v_mov_b32 v%d, 1" % T0)
                    p("s_mov_b64 exec, 1")
                    p("buffer_store_dword v%d, v%d, s[8:11], s%d offen sc1" % (T0, ZER, sX))
                    p("s_mov_b64 exec, -1")
                    p("s_branch AT_PUBDONE")
                    p.label("AT_NOPUB")
                    p(BAR)
                    p.label("AT_PUBDONE")
                else:
                    p(BAR)
            else:
                g = sc.stream(next_fa("wq" if t < 6 else "kv"))
                if t == 3:
                    sc.stream(prod_set("kv"), g)
                p(sc.weave(mf))
    st(2)

    def convert(kind):
        n = 0
        for u in range(8):
            for qt in range(2):
                T = TMP + (n % 2) * 8
                n += 1
                for k in range(8):
                    p("v_accvgpr_read_b32 v%d, a%d" % (T + k, Oreg(2 * u + (k >> 2), qt) + (k & 3)))
                if kind != "q":
                    for k in range(8):
                        p("v_mul_f32 v%d, v%d, v%d" % (T + k, T + k, BS + qt))
                if kind == "merge":
                    for d in range(4):
                        m = MRG + (qt * 8 + u) * 4 + d
                        p("v_lshlrev_b32 v%d, 16, v%d" % (T0, m))
                        p("v_and_b32 v%d, 0xffff0000, v%d" % (T0 + 1, m))
                        p("v_fmac_f32 v%d, v%d, v%d" % (T + 2 * d, T0, LS + qt))
                        p("v_fmac_f32 v%d, v%d, v%d" % (T + 2 * d + 1, T0 + 1, LS + qt))
                for d in range(4):
                    p("v_cvt_pk_bf16_f32 v%d, v%d, v%d" % (Q + (qt * 8 + u) * 4 + d, T + 2 * d, T + 2 * d + 1))

    convert("q")
    p("s_mov_b32 s%d, s%d" % (sB, sB0))
    p("s_lshl_b32 s%d, s%d, 2" % (sD0, sT))
    p("s_mov_b32 s%d, s%d" % (sCNT, sNB))
    p("v_mov_b32 v%d, v%d" % (THR, THR0))

    def qk_mf(first):
        mf = []
        for kt in range(2):
            for u in range(8):
                for qt in range(2):
                    d = vr(Sreg(kt, qt))
                    cc = d if u else ("0" if first else vr(NEGM + 4 * qt))
                    mf.append("%s %s, %s, %s, %s" % (MF, d, ar(FA + 4 * (kt * 8 + u)), vr(Q + (qt * 8 + u) * 4), cc))
        return mf

    def pv_mf():
        mf = []
        for dt in range(16):
            for qt in range(2):
                acc = ar(Oreg(dt, qt))
                mf.append("%s %s, %s, %s, %s" % (MF, acc, ar(FB + 4 * dt), vr(PF + 4 * qt), acc))
        return mf

    def mask_code():
        o = []
        for kt in range(2):
            for qt in range(2):
                for r in range(4):
                    o.append("v_cmp_gt_i32 s[%d:%d], %d, v%d" % (40 + 2 * r, 41 + 2 * r, 16 * (kt - qt) + r, THR))
                for r in range(4):
                    s = Sreg(kt, qt) + r
                    o.append("v_cndmask_b32 v%d, v%d, v%d, s[%d:%d]" % (s, s, NEGBIG, 40 + 2 * r, 41 + 2 * r))
        o.append("v_subrev_u32 v%d, 32, v%d" % (THR, THR))
        return o

    def exp_sum():
        ex = ["v_exp_f32 v%d, v%d" % (PP + i, S + i) for i in range(16)]
        ad = {}
        for i in range(16):
            qt = (i >> 2) & 1
            if i in (1, 5):
                ad[i] = "v_add_f32 v%d, v%d, v%d" % (BS + qt, PP + i - 1, PP + i)
            elif i not in (0, 4):
                ad[i] = "v_add_f32 v%d, v%d, v%d" % (BS + qt, BS + qt, PP + i)
        return ex, ad

    def cvt_p():
        o = []
        for qt in range(2):
            for kt in range(2):
                for d in range(2):
                    s = PP + (kt * 2 + qt) * 4 + 2 * d
                    o.append("v_cvt_pk_bf16_f32 v%d, v%d, v%d" % (PF + 4 * qt + 2 * kt + d, s, s + 1))
        return o

    def rowmax(qt, dst):
        s0, s1 = Sreg(0, qt), Sreg(1, qt)
        p("v_max3_f32 v%d, v%d, v%d, v%d" % (dst, s0, s0 + 1, s0 + 2))
        p("v_max3_f32 v%d, v%d, v%d, v%d" % (dst, dst, s0 + 3, s1))
        p("v_max3_f32 v%d, v%d, v%d, v%d" % (dst, dst, s1 + 1, s1 + 2))
        p("v_max_f32 v%d, v%d, v%d" % (dst, dst, s1 + 3))
        xop_45(p, dst, TMP + 15, "v_max_f32")

    sc = Sched(32)
    p("s_waitcnt lgkmcnt(0)")
    sched_dma(sc)
    p(sc.weave(qk_mf(True)))
    p(BAR)
    p("\n".join(next_fa("kv")))
    for i in range(8):
        p("v_mfma_f32_32x32x16_bf16 a[%d:%d], %s, %s, 0" % (16 * i, 16 * i + 15, vr(ZER), vr(ZER)))
    p("s_cmp_lt_u32 s%d, s%d" % (sB, sD0))
    p("s_cbranch_scc1 AT_S0_NOMASK")
    p("\n".join(mask_code()))
    p.label("AT_S0_NOMASK")
    for qt in range(2):
        rowmax(qt, TMP + qt)
        for r in range(4):
            p("v_sub_f32 v%d, 0, v%d" % (NEGM + 4 * qt + r, TMP + qt))
        for kt in range(2):
            for r in range(4):
                s = Sreg(kt, qt) + r
                p("v_sub_f32 v%d, v%d, v%d" % (s, s, TMP + qt))
        p("v_mov_b32 v%d, 0" % (LS + qt))
    ex, ad = exp_sum()
    p("\n".join(ex))
    p("\n".join(ad[i] for i in sorted(ad)))
    p("s_add_u32 s%d, s%d, 1" % (sB, sB))
    p("s_sub_u32 s%d, s%d, 1" % (sCNT, sCNT))

    ladd = ["v_add_f32 v%d, v%d, v%d" % (LS + qt, LS + qt, BS + qt) for qt in range(2)]
    p(".p2align 6")
    p.label("AT_LOOP")
    sc = Sched(32)
    sched_dma(sc)
    rd = reads("kv", 1)
    sc.stream(rd + cvt_p() + ladd)
    p("s_waitcnt lgkmcnt(0)")
    p(sc.weave(qk_mf(False)))
    p("s_cmp_eq_u32 s%d, 3" % sCNT)
    p("s_cbranch_scc1 AT_SWITCH")
    p.label("AT_SWITCH_RET")
    p(BAR)
    p("s_cmp_ge_u32 s%d, s%d" % (sB, sD0))
    p("s_cbranch_scc1 AT_MASK")
    p.label("AT_MASK_RET")
    sc = Sched(32)
    nf = next_fa("kv")
    items = nf[:7]
    rest = nf[7:]
    for i in range(16):
        items.append(ex[i])
        if rest:
            items.append(rest.pop(0))
        if i - 1 in ad:
            items.append(ad[i - 1])
    items.append(ad[15])
    items += ["v_max_f32 v%d, v%d, v%d" % (T0, BS, BS + 1), "s_add_u32 s%d, s%d, 1" % (sB, sB),
              "v_cmp_lt_f32 vcc, s%d, v%d" % (sTHRESH, T0), "s_sub_u32 s%d, s%d, 1" % (sCNT, sCNT)]
    sc.stream(items)
    p(sc.weave(pv_mf()))
    p("s_cbranch_vccnz AT_RARE")
    p.label("AT_RARE_RET")
    p("s_cmp_lg_u32 s%d, 0" % sCNT)
    p("s_cbranch_scc1 AT_LOOP")

    sc = Sched(32)
    sched_dma(sc)
    sc.stream(rd + cvt_p() + ladd)
    p(sc.flat())
    p(BAR)
    p("s_cmp_eq_u32 s%d, 2" % sACT)
    p("s_cbranch_scc1 AT_LAST_Q")
    sc = Sched(32)
    sc.stream(next_fa("wo"))
    p(sc.weave(pv_mf()))
    p("s_branch AT_LAST_DONE")
    p.label("AT_LAST_Q")
    sc = Sched(32)
    sc.stream(next_fa("wq"))
    p(sc.weave(pv_mf()))
    p.label("AT_LAST_DONE")
    st(3)
    for qt in range(2):
        xop_45(p, LS + qt, TMP + 15, "v_add_f32")
    p("s_waitcnt vmcnt(8)")
    p("s_cmp_eq_u32 s%d, 1" % sACT)
    p("s_cbranch_scc1 AT_MERGE")
    for qt in range(2):
        p("v_rcp_f32 v%d, v%d" % (BS + qt, LS + qt))
    convert("plain")
    p("s_cmp_eq_u32 s%d, 2" % sACT)
    p("s_cbranch_scc0 AT_OPROJ")
    p("s_mul_i32 s%d, s%d, 0x%x" % (sX, sPAIR, OP_STRIDE))
    p("s_mul_i32 s%d, s%d, 17408" % (sY, sWAVE))
    p("s_add_u32 s%d, s%d, s%d" % (sX, sX, sY))
    p("s_add_u32 s%d, s%d, 0x%x" % (sX, sX, WS_OP))
    for f in range(16):
        if f % 4 == 0 and f:
            p("s_add_u32 s%d, s%d, 4096" % (sX, sX))
        p("buffer_store_dwordx4 %s, v%d, s[8:11], s%d offen offset:%d sc1" % (vr(Q + 4 * f), L16, sX, (f % 4) * 1024))
    p("s_add_u32 s%d, s%d, 4096" % (sX, sX))
    p("v_mov_b32 v%d, v%d" % (TMP, NEGM))
    p("v_mov_b32 v%d, v%d" % (TMP + 1, LS))
    p("v_mov_b32 v%d, v%d" % (TMP + 2, NEGM + 4))
    p("v_mov_b32 v%d, v%d" % (TMP + 3, LS + 1))
    p("buffer_store_dwordx4 %s, v%d, s[8:11], s%d offen sc1" % (vr(TMP), L16, sX))
    p("s_mov_b32 s%d, s%d" % (sT, sT2))
    p("s_mov_b32 s%d, s%d" % (sNB, sNB2))
    p("s_mov_b32 s%d, 0" % sB0)
    p("s_mov_b32 s%d, 0" % sACT)
    p("s_mov_b32 s%d, 1" % sPUB)
    p("\n".join(h_loads(sT, range(8, 14))))
    p("s_branch AT_JOB")
    p.label("AT_MERGE")
    for qt in range(2):
        nB, lB = XT + 2 * qt, XT + 2 * qt + 1
        nA = NEGM + 4 * qt
        p("v_min_f32 v%d, v%d, v%d" % (T0, nA, nB))
        p("v_sub_f32 v%d, v%d, v%d" % (T0 + 1, T0, nA))
        p("v_sub_f32 v%d, v%d, v%d" % (T0, T0, nB))
        p("v_exp_f32 v%d, v%d" % (T0 + 1, T0 + 1))
        p("v_exp_f32 v%d, v%d" % (T0, T0))
        p("v_mul_f32 v%d, v%d, v%d" % (lB, lB, T0))
        p("v_fma_f32 v%d, v%d, v%d, v%d" % (T0, LS + qt, T0 + 1, lB))
        p("v_rcp_f32 v%d, v%d" % (T0, T0))
        p("v_mul_f32 v%d, v%d, v%d" % (BS + qt, T0 + 1, T0))
        p("v_mul_f32 v%d, v%d, v%d" % (LS + qt, lB, T0))
    convert("merge")

    p.label("AT_OPROJ")
    st(4)
    p("s_lshl_b32 s%d, s%d, 3" % (sX, sT))
    p("s_lshl_b32 s%d, s%d, 1" % (sY, sWAVE))
    p("s_add_u32 s%d, s%d, s%d" % (sX, sX, sY))
    p("s_mul_i32 s%d, s%d, 14336" % (sX, sX))
    p("s_mul_i32 s%d, s%d, 0x%x" % (sY, sHEAD, H_BYTES))
    p("s_add_u32 s%d, s%d, s%d" % (sX, sX, sY))
    p("s_add_u32 s%d, s%d, 0x%x" % (sZ, sX, WS_PART))
    p("s_mov_b32 s%d, 0xf0000000" % sO0)
    p("s_mov_b32 s%d, 0xf0000000" % sO1)
    p("s_mov_b32 s%d, 0" % sCNT)

    def op_mf(half):
        F = FA if half == 0 else FB
        A = S if half == 0 else PP
        mf = []
        for mt in range(2):
            for u in range(8):
                for qt in range(2):
                    acc = vr(A + (qt * 2 + mt) * 4)
                    mf.append("%s %s, %s, %s, %s" % (MF, acc, ar(F + 4 * (mt * 8 + u)), vr(Q + (qt * 8 + u) * 4), acc if u else "0"))
        return mf

    def op_out(half):
        A = S if half == 0 else PP
        o = []
        for qt in range(2):
            T = XT + half * 8 + qt * 4
            for d in range(4):
                o.append("v_cvt_pk_bf16_f32 v%d, v%d, v%d" % (T + d, A + qt * 8 + 2 * d, A + qt * 8 + 2 * d + 1))
            o.append("buffer_store_dwordx4 %s, v%d, s[8:11], s%d offen offset:%d" % (vr(T), L16, sO0 + qt, half * 1024))
        return o

    p(".p2align 6")
    p.label("AT_OLOOP")
    sc = Sched(32)
    sched_dma(sc)
    g = sc.stream(reads("wo", 1))
    sc.stream(op_out(1) + ["s_mov_b32 s%d, s%d" % (sO0, sZ), "s_add_u32 s%d, s%d, 14336" % (sO1, sZ),
                           "s_add_u32 s%d, s%d, 2048" % (sZ, sZ)], g)
    p("s_waitcnt lgkmcnt(0)")
    p(sc.weave(op_mf(0)))
    p(BAR)
    sc = Sched(32)
    g = sc.stream(next_fa("wo"))
    sc.stream(op_out(0) + ["s_add_u32 s%d, s%d, 1" % (sCNT, sCNT), "s_cmp_ge_u32 s%d, 4" % sCNT,
                           "s_cselect_b32 s6, 0, s6", "s_cmp_lg_u32 s%d, 7" % sCNT], g)
    p(sc.weave(op_mf(1)))
    p("s_cbranch_scc1 AT_OLOOP")
    p("\n".join(op_out(1)))
    st(5)
    p("s_waitcnt lgkmcnt(0)")
    st.dump(sWAVE)
    p("s_endpgm")

    p.label("AT_MASK")
    p("\n".join(mask_code()))
    p("s_branch AT_MASK_RET")

    p.label("AT_SWITCH")
    p("s_cmp_eq_u32 s%d, 2" % sACT)
    p("s_cbranch_scc1 AT_SW_Q")
    p("\n".join(prod_set("wo")))
    p("s_cmp_eq_u32 s%d, 1" % sACT)
    p("s_cbranch_scc0 AT_SWITCH_RET")
    p("s_lshl_b32 s%d, s%d, 2" % (sX, sPAIR))
    p("s_add_u32 s%d, s%d, 0x%x" % (sX, sX, WS_FLAG))
    p("s_mov_b32 s%d, 0" % sZ)
    p.label("AT_POLL")
    p("buffer_load_dword v%d, v%d, s[8:11], s%d offen sc1" % (T0, ZER, sX))
    p("s_waitcnt vmcnt(0)")
    p("v_readfirstlane_b32 s%d, v%d" % (sY, T0))
    p("s_add_u32 s%d, s%d, 1" % (sZ, sZ))
    p("s_cmp_ge_u32 s%d, 0x100000" % sZ)
    p("s_cbranch_scc1 AT_POLLED")
    p("s_cmp_eq_u32 s%d, 1" % sY)
    p("s_cbranch_scc1 AT_POLLED")
    p("s_sleep 4")
    p("s_branch AT_POLL")
    p.label("AT_POLLED")
    p("s_mul_i32 s%d, s%d, 0x%x" % (sX, sPAIR, OP_STRIDE))
    p("s_mul_i32 s%d, s%d, 17408" % (sY, sWAVE))
    p("s_add_u32 s%d, s%d, s%d" % (sX, sX, sY))
    p("s_add_u32 s%d, s%d, 0x%x" % (sX, sX, WS_OP))
    for f in range(16):
        if f % 4 == 0 and f:
            p("s_add_u32 s%d, s%d, 4096" % (sX, sX))
        p("buffer_load_dwordx4 %s, v%d, s[8:11], s%d offen offset:%d sc1" % (vr(MRG + 4 * f), L16, sX, (f % 4) * 1024))
    p("s_add_u32 s%d, s%d, 4096" % (sX, sX))
    p("buffer_load_dwordx4 %s, v%d, s[8:11], s%d offen sc1" % (vr(XT), L16, sX))
    p("s_branch AT_SWITCH_RET")
    p.label("AT_SW_Q")
    p("\n".join(prod_set("wq")))
    p("\n".join(h_loads(sT2, range(8))))
    p("s_branch AT_SWITCH_RET")

    p.label("AT_RARE")
    p("s_nop 7")
    for qt in range(2):
        D, Fc = TMP + qt, TMP + 2 + qt
        rowmax(qt, D)
        p("v_max_f32 v%d, 0, v%d" % (D, D))
        p("v_sub_f32 v%d, 0, v%d" % (Fc, D))
        p("v_exp_f32 v%d, v%d" % (Fc, Fc))
        for r in range(4):
            p("v_sub_f32 v%d, v%d, v%d" % (NEGM + 4 * qt + r, NEGM + 4 * qt + r, D))
        p("v_mul_f32 v%d, v%d, v%d" % (LS + qt, LS + qt, Fc))
        for kt in range(2):
            for r in range(4):
                s = Sreg(kt, qt) + r
                p("v_sub_f32 v%d, v%d, v%d" % (s, s, D))
    for dt in range(16):
        for qt in range(2):
            for r in range(4):
                p("v_accvgpr_read_b32 v%d, a%d" % (TMP + 4 + r, Oreg(dt, qt) + r))
            for r in range(4):
                p("v_mul_f32 v%d, v%d, v%d" % (TMP + 4 + r, TMP + 4 + r, TMP + 2 + qt))
            for r in range(4):
                p("v_accvgpr_write_b32 a%d, v%d" % (Oreg(dt, qt) + r, TMP + 4 + r))
    p("\n".join(ex))
    p("\n".join(ad[i] for i in sorted(ad)))
    p("s_branch AT_RARE_RET")
    p.label("AT_END")
    p("s_endpgm")
    return p
```

```python
from common import *


def gen_kv(stamp=False, order=0):
    p = Prog()

    st = Stamper(p, stamp, 0)
    XB = [32, 96]
    WB = [64, 128]
    p("s_cmp_ge_u32 s2, 256")
    p("s_cbranch_scc1 KV_END")
    st(0)
    p("s_load_dwordx2 s[4:5], s[0:1], 8")
    p("s_load_dwordx4 s[40:43], s[0:1], 24")
    p("s_load_dwordx2 s[10:11], s[0:1], 104")
    p("v_and_b32 v1, 63, v0")
    p("v_lshrrev_b32 v30, 6, v0")
    p("v_readfirstlane_b32 s24, v30")
    p("s_and_b32 s25, s2, 7")
    p("s_lshr_b32 s3, s2, 3")
    p("s_and_b32 s27, s3, 7")
    p("s_lshr_b32 s3, s3, 3")
    p("s_lshr_b32 s26, s3, 1")
    p("s_and_b32 s3, s3, 1")
    p("s_lshl_b32 s25, s25, 1")
    p("s_add_u32 s25, s25, s3")
    p("v_lshrrev_b32 v31, 5, v1")
    p("v_and_b32 v29, 31, v1")
    p("v_lshlrev_b32 v28, 3, v30")
    p("v_add_u32 v28, v28, v31")
    for j in range(4):
        p("v_add_u32 v24, %d, v28" % (2 * j))
        p("v_and_b32 v25, 3, v24")
        p("v_bfe_u32 v26, v24, 3, 1")
        p("v_lshl_add_u32 v25, v26, 2, v25")
        p("v_lshlrev_b32 v25, 1, v25")
        p("v_xor_b32 v25, v29, v25")
        p("v_lshlrev_b32 v25, 4, v25")
        p("v_lshl_add_u32 v%d, v24, 13, v25" % (2 + j))
    p("v_lshrrev_b32 v28, 3, v1")
    p("v_lshl_add_u32 v28, v30, 5, v28")
    p("v_and_b32 v26, 7, v1")
    for j in range(4):
        p("v_add_u32 v24, %d, v28" % (8 * j))
        p("v_bfe_u32 v25, v24, 1, 3")
        p("v_xor_b32 v25, v26, v25")
        p("v_lshlrev_b32 v25, 4, v25")
        p("v_lshl_add_u32 v%d, v24, 11, v25" % (6 + j))
    p("v_lshrrev_b32 v28, 1, v30")
    p("v_and_b32 v27, 15, v1")
    p("v_lshl_add_u32 v28, v28, 7, v27")
    p("v_lshlrev_b32 v28, 7, v28")
    p("v_add_u32 v28, 0x10000, v28")
    p("v_bfe_u32 v24, v1, 1, 3")
    p("v_lshrrev_b32 v26, 4, v1")
    for ks in range(2):
        p("v_add_u32 v25, %d, v26" % (4 * ks))
        p("v_xor_b32 v25, v25, v24")
        p("v_lshl_add_u32 v%d, v25, 4, v28" % (10 + ks))
    p("v_bfe_u32 v28, v1, 2, 2")
    p("v_lshl_add_u32 v24, v26, 3, v28")
    p("v_lshlrev_b32 v24, 9, v24")
    p("v_and_b32 v25, 1, v30")
    p("v_lshl_add_u32 v24, v25, 8, v24")
    p("v_and_b32 v25, 3, v1")
    p("v_lshl_add_u32 v24, v25, 3, v24")
    p("v_bfe_u32 v25, v1, 2, 3")
    p("v_lshl_add_u32 v24, v25, 5, v24")
    for nt in range(8):
        p("v_xor_b32 v%d, %d, v24" % (16 + nt, nt * 32))
    p("s_waitcnt lgkmcnt(0)")
    srd(p, 12, 4, 5, 2048 * 1024 * 2)
    p("s_cmp_eq_u32 s26, 0")
    p("s_cselect_b32 s6, s40, s42")
    p("s_cselect_b32 s7, s41, s43")
    srd(p, 16, 6, 7, 1024 * 4096 * 2)
    p("s_add_u32 s10, s10, 0x%x" % WS_KV)
    p("s_addc_u32 s11, s11, 0")
    srd(p, 20, 10, 11, KV_BYTES)
    p("s_lshl_b32 s30, s24, 12")
    p("s_add_u32 s31, s30, 0x10000")
    p("s_lshl_b32 s28, s25, 9")
    p("s_lshl_b32 s29, s27, 19")

    def dma_w(slot, j):
        return ["s_add_u32 m0, s30, %d" % (slot * 16384 + j * 1024),
                "buffer_load_dwordx4 v%d, s[16:19], s28 offen lds" % (2 + j)]

    def dma_x(e, j):
        return ["s_add_u32 m0, s36, %d" % (e * 16384 + j * 1024),
                "buffer_load_dwordx4 v%d, s[12:15], s%d offen lds" % (6 + j, 35 if e else 29)]

    p("s_mov_b32 s36, s31")
    p("s_add_u32 s35, s29, 0x40000")
    for j in range(4):
        p("\n".join(dma_x(0, j)))
    for g in range(4):
        for j in range(4):
            p("\n".join(dma_w(g, j)))
        p("s_add_u32 s28, s28, 0x40000")
        if g % 2 == 0:
            for j in range(4):
                p("\n".join(dma_x(1, j)))
        else:
            p("s_add_u32 s36, s36, 0x8000")
            p("s_add_u32 s29, s29, 128")
            p("s_add_u32 s35, s35, 128")
            for j in range(4):
                p("\n".join(dma_x(0, j)))
    p("s_mov_b32 s34, 0x10000")
    p("s_mov_b32 s32, 0")
    p("s_mov_b32 s33, 8")
    for i in range(256):
        p("v_accvgpr_write_b32 a%d, 0" % i)

    def reads(buf, xks, wslot):
        out = []
        for i in range(8):
            out.append("ds_read_b128 v[%d:%d], v14 offset:%d" % (XB[buf] + 4 * i, XB[buf] + 4 * i + 3, i * 2048))
            for h in range(2):
                out.append("ds_read_b64_tr_b16 v[%d:%d], v%d offset:%d" % (
                    WB[buf] + 4 * i + 2 * h, WB[buf] + 4 * i + 2 * h + 1, 16 + i, wslot * 16384 + h * 2048))
        out[0] = ["v_add_u32 v14, s32, v%d" % (10 + xks), out[0]]
        return out

    st(1)
    p("s_waitcnt vmcnt(24)")
    p("s_barrier")
    st(2)
    for r in reads(0, 0, 0):
        p(r if isinstance(r, str) else "\n".join(r))
    p("s_cmp_eq_u32 s26, 0")
    p("s_cbranch_scc0 KV_LOOP_V")

    def mfmas(buf, isk):
        out = []
        for a in range(8):
            for b in range(8):
                if order == 0:
                    i, j = a, b
                elif order == 1:
                    i, j = b, a
                elif order == 2:
                    i, j = (a, b) if isk else (b, a)
                else:
                    i, j = (b, a) if isk else (a, b)
                n = (i * 8 + j) if isk else (j * 8 + i)
                acc = "a[%d:%d]" % (n * 4, n * 4 + 3)
                x = "v[%d:%d]" % (XB[buf] + 4 * i, XB[buf] + 4 * i + 3)
                w = "v[%d:%d]" % (WB[buf] + 4 * j, WB[buf] + 4 * j + 3)
                out.append("%s %s, %s, %s, %s" % ((MF, acc, w, x, acc) if isk else (MF, acc, x, w, acc)))
        return out

    def loop(isk, name):
        p(".p2align 6")
        p.label(name)
        for t in range(4):
            p("s_waitcnt vmcnt(16) lgkmcnt(0)")
            p("s_barrier")
            fill = {}
            if t & 1:
                fill[0] = ["s_add_u32 s32, s32, 0x8000", "s_cmp_eq_u32 s32, 0x18000"]
                fill[1] = ["s_cselect_b32 s32, 0, s32"]
                fill[3] = ["s_add_u32 s34, s34, 0x8000", "s_cmp_eq_u32 s34, 0x18000"]
                fill[5] = ["s_cselect_b32 s34, 0, s34"]
                fill[7] = ["s_add_u32 s36, s31, s34"]
                fill[9] = ["s_add_u32 s29, s29, 128"]
                fill[11] = ["s_add_u32 s35, s35, 128"]
            rd = reads((t + 1) & 1, (t + 1) & 1, (t + 1) % 4)
            for k, r in enumerate(rd):
                fill.setdefault(2 + 2 * k, []).extend([r] if isinstance(r, str) else r)
            e = 0 if t & 1 else 1
            d = [dma_w(t, j) for j in range(4)] + [dma_x(e, j) for j in range(4)]
            for k in range(8):
                fill.setdefault(13 + 6 * k, []).append(d[k][0])
                fill.setdefault(15 + 6 * k, []).append(d[k][1])
            fill.setdefault(61, []).append("s_add_u32 s28, s28, 0x40000")
            if t == 3:
                fill.setdefault(62, []).append("s_sub_u32 s33, s33, 1")
                fill.setdefault(63, []).append("s_cmp_lg_u32 s33, 0")
            p("\n".join(weave(mfmas(t & 1, isk), fill)))
        p("s_cbranch_scc1 %s" % name)

    def epi(isk):
        p("s_waitcnt lgkmcnt(0)")
        st(3)
        p("v_lshlrev_b32 v2, 4, v1")
        p("s_lshl_b32 s3, s25, 6")
        p("s_lshl_b32 s4, s27, 3")
        p("s_add_u32 s3, s3, s4")
        p("s_lshr_b32 s4, s24, 1")
        p("s_lshl_b32 s4, s4, 2")
        p("s_add_u32 s3, s3, s4")
        p("s_lshl_b32 s3, s3, 15")
        p("s_lshl_b32 s4, s26, 14")
        p("s_add_u32 s3, s3, s4")
        p("s_and_b32 s4, s24, 1")
        p("s_lshl_b32 s4, s4, %d" % (12 if isk else 13))
        p("s_add_u32 s3, s3, s4")
        n = 0
        for o in range(8):
            for u in range(4):
                T = 32 + (n % 8) * 12
                n += 1
                a0 = (o * 8 + 2 * u) * 4
                for r in range(8):
                    p("v_accvgpr_read_b32 v%d, a%d" % (T + r, a0 + r))
                for r in range(4):
                    p("v_cvt_pk_bf16_f32 v%d, v%d, v%d" % (T + 8 + r, T + 2 * r, T + 2 * r + 1))
                off = ((o >> 1) * 32768 + (o & 1) * 8192 + u * 1024) if isk else (u * 32768 + o * 1024)
                p("s_add_u32 s4, s3, %d" % off)
                p("buffer_store_dwordx4 v[%d:%d], v2, s[20:23], s4 offen" % (T + 8, T + 11))

    loop(True, "KV_LOOP_K")
    epi(True)
    p("s_branch KV_FIN")
    loop(False, "KV_LOOP_V")
    epi(False)
    p.label("KV_FIN")
    if stamp:
        st(4)
        p("s_waitcnt vmcnt(0)")
        st(5)
        st.dump(24)
    p.label("KV_END")
    p("s_endpgm")
    return p
```

```python
import math
from common import *


def gen_mlp1(stamp=False):
    p = Prog()
    st = Stamper(p, stamp, 2)
    p("s_cmp_ge_u32 s2, 224")
    p("s_cbranch_scc1 M1_END")
    st(0)
    p("s_load_dwordx2 s[12:13], s[0:1], 104")
    p("s_load_dwordx2 s[14:15], s[0:1], 56")
    p("v_and_b32 v1, 63, v0")
    p("v_lshrrev_b32 v20, 6, v0")
    p("v_readfirstlane_b32 s18, v20")
    p("s_and_b32 s3, s2, 7")
    p("s_lshr_b32 s20, s2, 3")
    p("s_and_b32 s19, s20, 1")
    p("s_lshl_b32 s3, s3, 1")
    p("s_add_u32 s19, s19, s3")
    p("s_lshr_b32 s20, s20, 1")
    p("v_lshlrev_b32 v2, 4, v1")
    p("v_lshrrev_b32 v21, 4, v1")
    p("v_lshl_add_u32 v21, v20, 2, v21")
    p("v_and_b32 v22, 7, v21")
    p("v_lshlrev_b32 v22, 1, v22")
    p("v_and_b32 v23, 15, v1")
    p("v_xor_b32 v22, v22, v23")
    p("v_lshlrev_b32 v22, 4, v22")
    p("v_mul_u32_u24 v21, 3584, v21")
    p("v_add_u32 v3, v21, v22")
    p("v_lshrrev_b32 v21, 2, v1")
    p("v_lshlrev_b32 v22, 8, v21")
    p("v_and_b32 v23, 3, v1")
    p("v_lshl_add_u32 v22, v23, 3, v22")
    p("v_and_b32 v23, 7, v21")
    p("v_lshl_add_u32 v22, v23, 5, v22")
    for x in range(8):
        p("v_xor_b32 v%d, %d, v22" % (4 + x, 32 * x))
        p("v_add_u32 v%d, 0x10000, v%d" % (12 + x, 4 + x))
    p("s_waitcnt lgkmcnt(0)")
    srd(p, 8, 12, 13, WS_BYTES)
    srd(p, 4, 14, 15, 448 * 1792 * 2)
    p("s_lshl_b32 s21, s20, 8")
    p("s_lshl_b32 s24, s18, 10")
    p("s_lshl_b32 s22, s19, 3")
    p("s_lshl_b32 s3, s18, 1")
    p("s_add_u32 s22, s22, s3")
    p("s_mul_i32 s25, s22, 14336")
    p("s_add_u32 s25, s25, 0x%x" % WS_H2)
    p("s_add_u32 s26, s25, 14336")
    H = 32
    ACC = 144
    for ks in range(14):
        for qt in range(2):
            if ks % 4 == 0 and ks:
                p("s_add_u32 s%d, s%d, 4096" % (25 + qt, 25 + qt))
            p("buffer_load_dwordx4 %s, v2, s[8:11], s%d offen offset:%d" % (vr(H + (ks * 2 + qt) * 4), 25 + qt, (ks % 4) * 1024))
        for jj in range(2):
            j = 2 * ks + jj
            p("s_add_u32 m0, s24, %d" % (j * 4096))
            p("s_nop 0")
            p("buffer_load_dwordx4 v3, s[4:7], s21 offen lds")
            p("s_add_u32 s21, s21, 57344")
    st(1)

    def reads(c):
        o = []
        for k in range(2):
            ks = 2 * c + k
            for ft in range(8):
                for i in range(2):
                    off = ks * 8192 + i * 4096
                    base = 4 + ft if off < 65536 else 12 + ft
                    o.append("ds_read_b64_tr_b16 %s, v%d offset:%d" % (
                        ar((c & 1) * 64 + (k * 8 + ft) * 4 + 2 * i, 2), base, off & 0xffff))
        return o

    def mf(c):
        o = []
        for k in range(2):
            ks = 2 * c + k
            for ft in range(8):
                for qt in range(2):
                    acc = vr(ACC + (qt * 8 + ft) * 4)
                    o.append("%s %s, %s, %s, %s" % (MF, acc, ar((c & 1) * 64 + (k * 8 + ft) * 4), vr(H + (ks * 2 + qt) * 4), acc if ks else "0"))
        return o

    p("s_waitcnt vmcnt(48)")
    p("s_barrier")
    st(2)
    p("\n".join(reads(0)))
    for c in range(7):
        sc = Sched(32)
        if c < 6:
            p("s_waitcnt vmcnt(%d) lgkmcnt(0)" % (40 - 8 * c))
            p("s_barrier")
            sc.stream(reads(c + 1))
        else:
            p("s_waitcnt lgkmcnt(0)")
        p(sc.weave(mf(c)))
    st(3)
    p("s_mul_i32 s25, s22, 57344")
    p("s_lshl_b32 s3, s20, 12")
    p("s_add_u32 s25, s25, s3")
    p("s_add_u32 s25, s25, 0x%x" % WS_ACT)
    p("s_add_u32 s26, s25, 57344")
    p("s_mov_b32 s27, %s" % f32bits(-math.log2(math.e)))
    for qt in range(2):
        for u in range(4):
            A = ACC + (qt * 8 + 2 * u) * 4
            T = 32 + ((qt * 4 + u) % 2) * 16
            for k in range(8):
                p("v_mul_f32 v%d, s27, v%d" % (T + k, A + k))
            for k in range(8):
                p("v_exp_f32 v%d, v%d" % (T + k, T + k))
            for k in range(8):
                p("v_add_f32 v%d, 1.0, v%d" % (T + k, T + k))
            for k in range(8):
                p("v_rcp_f32 v%d, v%d" % (T + k, T + k))
            for k in range(8):
                p("v_mul_f32 v%d, v%d, v%d" % (T + k, T + k, A + k))
            for d in range(4):
                p("v_cvt_pk_bf16_f32 v%d, v%d, v%d" % (T + 8 + d, T + 2 * d, T + 2 * d + 1))
            p("buffer_store_dwordx4 %s, v2, s[8:11], s%d offen offset:%d" % (vr(T + 8), 25 + qt, u * 1024))
    st(4)
    st(5)
    st.dump(18)
    p.label("M1_END")
    p("s_endpgm")
    return p


def gen_mlp2(stamp=False):
    p = Prog()
    st = Stamper(p, stamp, 3)
    p("s_cmp_ge_u32 s2, 224")
    p("s_cbranch_scc1 M2_END")
    st(0)
    p("s_load_dwordx2 s[12:13], s[0:1], 104")
    p("s_load_dwordx2 s[14:15], s[0:1], 64")
    p("s_load_dwordx2 s[16:17], s[0:1], 88")
    p("v_and_b32 v1, 63, v0")
    p("v_lshrrev_b32 v20, 6, v0")
    p("v_readfirstlane_b32 s18, v20")
    p("s_and_b32 s3, s2, 7")
    p("s_lshr_b32 s20, s2, 3")
    p("s_and_b32 s19, s20, 3")
    p("s_lshl_b32 s3, s3, 2")
    p("s_add_u32 s19, s19, s3")
    p("s_lshr_b32 s20, s20, 2")
    p("v_lshlrev_b32 v2, 4, v1")
    p("v_lshrrev_b32 v21, 3, v1")
    p("v_bfe_u32 v22, v21, 1, 2")
    p("v_lshlrev_b32 v22, 1, v22")
    p("v_and_b32 v23, 7, v1")
    p("v_xor_b32 v22, v22, v23")
    p("v_lshlrev_b32 v22, 4, v22")
    p("v_mul_u32_u24 v21, 896, v21")
    p("v_add_u32 v3, v21, v22")
    p("v_lshrrev_b32 v21, 2, v1")
    p("v_lshlrev_b32 v22, 7, v21")
    p("v_and_b32 v23, 3, v1")
    p("v_lshl_add_u32 v22, v23, 3, v22")
    p("v_bfe_u32 v23, v21, 1, 2")
    p("v_lshl_add_u32 v22, v23, 5, v22")
    p("v_mul_u32_u24 v23, 28672, v20")
    for x in range(4):
        p("v_xor_b32 v%d, %d, v22" % (4 + x, 32 * x))
        p("v_add_u32 v%d, v%d, v23" % (4 + x, 4 + x))
    p("v_add_u32 v8, v2, v23")
    p("s_waitcnt lgkmcnt(0)")
    srd(p, 8, 12, 13, WS_BYTES)
    srd(p, 4, 14, 15, 448 * 1792 * 2)
    srd(p, 28, 16, 17, H_BYTES)
    p("s_mul_i32 s24, s18, 28672")
    p("s_mul_i32 s21, s18, %d" % (14 * 32 * 896))
    p("s_lshl_b32 s3, s20, 7")
    p("s_add_u32 s21, s21, s3")
    p("s_lshl_b32 s22, s19, 2")
    p("s_mul_i32 s25, s22, 57344")
    p("s_mul_i32 s3, s18, 14336")
    p("s_add_u32 s25, s25, s3")
    p("s_add_u32 s25, s25, 0x%x" % WS_ACT)
    WF = 32
    ACC = 64

    def group(k):
        o = []
        for qt in range(4):
            off = qt * 57344 + k * 1024
            o.append("s_add_u32 s26, s25, %d" % (off & ~0xfff))
            o.append("buffer_load_dwordx4 %s, v2, s[8:11], s26 offen offset:%d" % (ar((k * 4 + qt) * 4), off & 0xfff))
        for j in range(4):
            o.append("s_add_u32 m0, s24, %d" % ((k % 7) * 4096 + j * 1024))
            o.append("s_add_u32 s26, s21, %d" % ((k * 32 + j * 8) * 896))
            o.append("buffer_load_dwordx4 v3, s[4:7], s26 offen lds")
        return o

    def reads(k):
        o = []
        for mt in range(4):
            for i in range(2):
                o.append("ds_read_b64_tr_b16 %s, v%d offset:%d" % (vr(WF + (k & 1) * 16 + mt * 4 + 2 * i, 2), 4 + mt, (k % 7) * 4096 + i * 2048))
        return o

    for k in range(7):
        p("\n".join(group(k)))
    st(1)
    p("s_waitcnt vmcnt(48)")
    st(2)
    p("\n".join(reads(0)))
    for k in range(14):
        mf = []
        for mt in range(4):
            for qt in range(4):
                acc = vr(ACC + (qt * 4 + mt) * 4)
                mf.append("%s %s, %s, %s, %s" % (MF, acc, vr(WF + (k & 1) * 16 + mt * 4), ar((k * 4 + qt) * 4), acc if k else "0"))
        sc = Sched(16)
        issued = min(13, k + 6)
        if k < 13:
            p("s_waitcnt vmcnt(%d) lgkmcnt(0)" % ((issued - (k + 1)) * 8))
            g = sc.stream(reads(k + 1))
            if k + 7 < 14:
                sc.stream(group(k + 7), g)
        else:
            p("s_waitcnt lgkmcnt(0)")
        p(sc.weave(mf))
    st(3)
    p("s_add_u32 s22, s22, s18")
    p("s_mul_i32 s25, s22, 14336")
    p("s_lshl_b32 s3, s20, 11")
    p("s_add_u32 s25, s25, s3")
    p("s_add_u32 s25, s25, 0x%x" % WS_X1)
    p("buffer_load_dwordx4 v[32:35], v2, s[8:11], s25 offen")
    p("buffer_load_dwordx4 v[36:39], v2, s[8:11], s25 offen offset:1024")
    p("v_lshrrev_b32 v21, 4, v1")
    p("v_lshlrev_b32 v21, 4, v21")
    p("s_lshl_b32 s3, s20, 8")
    p("s_add_u32 s26, s3, %d" % (WS_MOD + 5 * 448 * 4))
    for mt in range(4):
        p("buffer_load_dwordx4 %s, v21, s[8:11], s26 offen offset:%d" % (vr(40 + 4 * mt), 64 * mt))
    for t in range(16):
        p("ds_write_b128 v8, %s offset:%d" % (vr(ACC + 4 * t), 1024 * t))
    p("s_waitcnt lgkmcnt(0)")
    p("s_barrier")
    p("s_lshl_b32 s3, s18, 12")
    p("v_add_u32 v9, s3, v2")
    p("v_add_u32 v10, 0xe000, v9")
    for w in range(4):
        for mt in range(4):
            p("ds_read_b128 %s, v%d offset:%d" % (vr(ACC + (w * 4 + mt) * 4), 9 + (w >> 1), (w & 1) * 28672 + mt * 1024))
    p("v_and_b32 v22, 15, v1")
    p("s_lshl_b32 s3, s22, 4")
    p("v_add_u32 v22, s3, v22")
    p("v_mul_u32_u24 v22, 896, v22")
    p("v_lshrrev_b32 v21, 1, v21")
    p("v_add_u32 v22, v22, v21")
    p("s_lshl_b32 s27, s20, 7")
    p("s_waitcnt vmcnt(0) lgkmcnt(0)")
    for i in range(16):
        a = ACC + i
        p("v_add_f32 v%d, v%d, v%d" % (a, a, a + 16))
        p("v_add_f32 v%d, v%d, v%d" % (a + 32, a + 32, a + 48))
        p("v_add_f32 v%d, v%d, v%d" % (a, a, a + 32))
        round_bf16(p, a)
        p("v_mul_f32 v%d, v%d, v%d" % (a, a, 40 + i))
        round_bf16(p, a)
        src = 32 + i // 2
        if i & 1:
            p("v_and_b32 v23, 0xffff0000, v%d" % src)
        else:
            p("v_lshlrev_b32 v23, 16, v%d" % src)
        p("v_add_f32 v%d, v%d, v23" % (a, a))
    for mt in range(4):
        for d in range(2):
            p("v_cvt_pk_bf16_f32 v%d, v%d, v%d" % (56 + 2 * mt + d, ACC + 4 * mt + 2 * d, ACC + 4 * mt + 2 * d + 1))
        p("buffer_store_dwordx2 %s, v22, s[28:31], s27 offen offset:%d" % (vr(56 + 2 * mt, 2), 32 * mt))
    st(4)
    st(5)
    st.dump(18)
    p.label("M2_END")
    p("s_endpgm")
    return p


def kernels(stamp):
    return [("mlp1_kernel", gen_mlp1(stamp), 224, 256, 114688),
            ("mlp2_kernel", gen_mlp2(stamp), 224, 256, 114688)]
```

```python
import math
from common import *

QSCALE = math.log2(math.e) / 16.0


def gen_mod():
    p = Prog()
    p("s_cmp_ge_u32 s2, 42")
    p("s_cbranch_scc1 MOD_END")
    p("s_load_dwordx4 s[4:7], s[0:1], 72")
    p("s_load_dwordx2 s[8:9], s[0:1], 104")
    p("v_lshrrev_b32 v1, 3, v0")
    p("v_and_b32 v2, 7, v0")
    p("v_lshlrev_b32 v3, 1, v1")
    p("s_mov_b32 s3, 5376")
    p("v_mul_lo_u32 v4, v1, s3")
    p("v_lshl_add_u32 v4, v2, 4, v4")
    p("s_waitcnt lgkmcnt(0)")
    srd(p, 12, 4, 5, 896)
    srd(p, 16, 6, 7, 448 * 2688 * 2)
    srd(p, 20, 8, 9, WS_BYTES)
    p("s_lshl_b32 s24, s2, 7")
    for i in range(14):
        p("buffer_load_ushort v%d, v3, s[12:15], 0 offen offset:%d" % (8 + i, 64 * i))
    for i in range(14):
        p("buffer_load_dwordx4 %s, v4, s[16:19], s24 offen" % vr(32 + 4 * i))
        p("s_add_u32 s24, s24, %d" % (32 * 5376))
    for j in range(8):
        p("v_mov_b32 v%d, 0" % (24 + j))
    p("s_waitcnt vmcnt(14)")
    for i in range(14):
        v = 8 + i
        p("v_lshlrev_b32 v%d, 16, v%d" % (v, v))
        p("v_mul_f32 v5, %s, v%d" % (f32bits(-math.log2(math.e)), v))
        p("v_exp_f32 v5, v5")
        p("v_add_f32 v5, 1.0, v5")
        p("v_rcp_f32 v5, v5")
        p("v_mul_f32 v%d, v%d, v5" % (v, v))
        round_bf16(p, v)
    for i in range(14):
        p("s_waitcnt vmcnt(%d)" % (13 - i))
        for d in range(4):
            w = 32 + 4 * i + d
            p("v_lshlrev_b32 v5, 16, v%d" % w)
            p("v_and_b32 v6, 0xffff0000, v%d" % w)
            p("v_fmac_f32 v%d, v%d, v5" % (24 + 2 * d, 8 + i))
            p("v_fmac_f32 v%d, v%d, v6" % (25 + 2 * d, 8 + i))
    p("v_lshlrev_b32 v5, 5, v0")
    p("ds_write_b128 v5, v[24:27]")
    p("ds_write_b128 v5, v[28:31] offset:16")
    p("s_waitcnt lgkmcnt(0)")
    p("s_barrier")
    p("v_cmp_gt_u32 vcc, 64, v0")
    p("s_and_saveexec_b64 s[26:27], vcc")
    p("s_cbranch_execz MOD_END")
    p("v_lshlrev_b32 v5, 2, v0")
    for i in range(32):
        p("ds_read_b32 v%d, v5 offset:%d" % (32 + i, 256 * i))
    p("s_waitcnt lgkmcnt(0)")
    for i in range(1, 32):
        p("v_add_f32 v32, v32, v%d" % (32 + i))
    round_bf16(p, 32)
    p("s_lshl_b32 s24, s2, 8")
    p("buffer_store_dword v32, v5, s[20:23], s24 offen offset:%d" % WS_MOD)
    p.label("MOD_END")
    p("s_endpgm")
    return p


def lane_piece_setup(p):
    p("v_and_b32 v1, 63, v0")
    p("v_and_b32 v2, 7, v1")
    p("v_lshrrev_b32 v3, 5, v1")
    p("v_bfe_u32 v4, v1, 3, 2")
    p("v_lshlrev_b32 v5, 6, v3")
    p("v_lshl_add_u32 v5, v4, 3, v5")


def load_modvec(p, dst, srd_ws, idx, voff):
    for i in range(7):
        for h in range(2):
            off = WS_MOD + idx * 448 * 4 + i * 256 + h * 64
            p("s_mov_b32 s30, %d" % (off & ~0xfff))
            p("buffer_load_dwordx4 %s, v%d, s[%d:%d], s30 offen offset:%d" % (
                vr(dst + 8 * i + 4 * h), voff, srd_ws, srd_ws + 3, off & 0xfff))


def ln_mod(p, X, SC, SH, scale):
    p("v_mov_b32 v6, v%d" % X)
    for i in range(1, 56):
        p("v_add_f32 v6, v6, v%d" % (X + i))
    xsum_345(p, 6, 7)
    p("v_mul_f32 v6, %s, v6" % f32bits(1.0 / 448))
    p("v_mov_b32 v8, 0")
    for i in range(56):
        p("v_sub_f32 v%d, v%d, v6" % (X + i, X + i))
        p("v_fmac_f32 v8, v%d, v%d" % (X + i, X + i))
    xsum_345(p, 8, 7)
    p("v_mov_b32 v9, %s" % f32bits(1e-5))
    p("v_fmac_f32 v9, %s, v8" % f32bits(1.0 / 448))
    p("v_rsq_f32 v9, v9")
    for i in range(56):
        p("v_add_f32 v10, 1.0, v%d" % (SC + i))
        round_bf16(p, 10)
        p("v_mul_f32 v%d, v%d, v9" % (X + i, X + i))
        p("v_fma_f32 v%d, v%d, v10, v%d" % (X + i, X + i, SH + i))
        if scale != 1.0:
            p("v_mul_f32 v%d, %s, v%d" % (X + i, f32bits(scale), X + i))


def frag_voff(p, dst):
    p("s_lshr_b32 s3, s2, 1")
    p("s_mul_i32 s3, s3, 14336")
    p("s_and_b32 s31, s2, 1")
    p("s_lshl_b32 s31, s31, 7")
    p("s_add_u32 s3, s3, s31")
    p("v_lshlrev_b32 v%d, 10, v3" % dst)
    p("v_lshl_add_u32 v%d, v4, 8, v%d" % (dst, dst))
    p("v_lshl_add_u32 v%d, v2, 4, v%d" % (dst, dst))
    p("v_add_u32 v%d, s3, v%d" % (dst, dst))


def load_x_rows(p, dst, srd_x, voff):
    for i in range(7):
        p("buffer_load_dwordx2 %s, v%d, s[%d:%d], 0 offen offset:%d" % (vr(dst + 4 * i, 2), voff, srd_x, srd_x + 3, 128 * i))
        p("buffer_load_dwordx2 %s, v%d, s[%d:%d], 0 offen offset:%d" % (vr(dst + 4 * i + 2, 2), voff, srd_x, srd_x + 3, 128 * i + 32))


def unpack(p, dst, src, n):
    for i in range(n):
        p("v_lshlrev_b32 v%d, 16, v%d" % (dst + 2 * i, src + i))
        p("v_and_b32 v%d, 0xffff0000, v%d" % (dst + 2 * i + 1, src + i))


def row_voff(p, dst):
    p("s_lshl_b32 s3, s2, 3")
    p("v_add_u32 v%d, s3, v2" % dst)
    p("s_mov_b32 s3, 896")
    p("v_mul_lo_u32 v%d, v%d, s3" % (dst, dst))
    p("v_add_u32 v%d, v%d, v5" % (dst, dst))


def store_frags(p, X, T, voff, srd_ws, base):
    for i in range(7):
        for d in range(4):
            p("v_cvt_pk_bf16_f32 v%d, v%d, v%d" % (T + 4 * i + d, X + 8 * i + 2 * d, X + 8 * i + 2 * d + 1))
        p("s_mov_b32 s30, 0x%x" % (base + 2048 * i))
        p("buffer_store_dwordx4 %s, v%d, s[%d:%d], s30 offen" % (vr(T + 4 * i), voff, srd_ws, srd_ws + 3))


def gen_ln1():
    p = Prog()
    p("s_cmp_ge_u32 s2, 256")
    p("s_cbranch_scc1 LN1_END")
    p("s_load_dwordx2 s[4:5], s[0:1], 0")
    p("s_load_dwordx2 s[8:9], s[0:1], 104")
    lane_piece_setup(p)
    row_voff(p, 12)
    frag_voff(p, 13)
    p("v_lshlrev_b32 v14, 1, v5")
    p("s_waitcnt lgkmcnt(0)")
    srd(p, 12, 4, 5, H_BYTES)
    srd(p, 20, 8, 9, WS_BYTES)
    X, SC, SH, T = 16, 72, 128, 184
    load_x_rows(p, T, 12, 12)
    load_modvec(p, SC, 20, 1, 14)
    load_modvec(p, SH, 20, 0, 14)
    p("s_cmp_lg_u32 s2, 0")
    p("s_cbranch_scc1 LN1_NOZ")
    p("v_lshlrev_b32 v6, 4, v1")
    for i in range(4):
        p("v_mov_b32 v%d, 0" % (8 + i))
    p("s_mov_b32 s30, 0x%x" % WS_FLAG)
    p("buffer_store_dwordx4 v[8:11], v6, s[20:23], s30 offen")
    p.label("LN1_NOZ")
    p("s_waitcnt vmcnt(0)")
    unpack(p, X, T, 28)
    ln_mod(p, X, SC, SH, QSCALE)
    store_frags(p, X, T, 13, 20, WS_H)
    p.label("LN1_END")
    p("s_endpgm")
    return p


def gen_red():
    p = Prog()
    p("s_cmp_ge_u32 s2, 256")
    p("s_cbranch_scc1 RED_END")
    p("s_load_dwordx2 s[4:5], s[0:1], 0")
    p("s_load_dwordx2 s[8:9], s[0:1], 104")
    lane_piece_setup(p)
    p("v_lshrrev_b32 v15, 6, v0")
    p("v_readfirstlane_b32 s24, v15")
    row_voff(p, 12)
    frag_voff(p, 13)
    p("v_lshlrev_b32 v14, 1, v5")
    p("s_waitcnt lgkmcnt(0)")
    srd(p, 12, 4, 5, H_BYTES)
    srd(p, 20, 8, 9, WS_BYTES)
    X, L = 16, 72
    p("s_mul_i32 s25, s24, %d" % (4 * H_BYTES))
    p("s_add_u32 s25, s25, 0x%x" % WS_PART)
    for h in range(4):
        for i in range(7):
            p("s_add_u32 s30, s25, %d" % (h * H_BYTES + i * 2048))
            p("buffer_load_dwordx4 %s, v13, s[20:23], s30 offen" % vr(L + (h * 7 + i) * 4))
    for h in range(4):
        p("s_waitcnt vmcnt(%d)" % (21 - 7 * h))
        for i in range(28):
            s = L + h * 28 + i
            if h == 0:
                p("v_lshlrev_b32 v%d, 16, v%d" % (X + 2 * i, s))
                p("v_and_b32 v%d, 0xffff0000, v%d" % (X + 2 * i + 1, s))
            else:
                p("v_lshlrev_b32 v6, 16, v%d" % s)
                p("v_and_b32 v7, 0xffff0000, v%d" % s)
                p("v_add_f32 v%d, v%d, v6" % (X + 2 * i, X + 2 * i))
                p("v_add_f32 v%d, v%d, v7" % (X + 2 * i + 1, X + 2 * i + 1))
    p("v_lshlrev_b32 v6, 4, v1")
    p("s_mul_i32 s3, s24, 14336")
    p("v_add_u32 v7, s3, v6")
    for i in range(14):
        p("ds_write_b128 v7, %s offset:%d" % (vr(X + 4 * i), 1024 * i))
    p("s_waitcnt lgkmcnt(0)")
    p("s_barrier")
    p("s_cmp_lg_u32 s24, 0")
    p("s_cbranch_scc1 RED_END")
    GA, SC, SH, T = 72, 128, 184, 72
    load_modvec(p, GA, 20, 2, 14)
    XT = 128
    load_x_rows(p, XT, 12, 12)
    R = 184
    for w in range(1, 4):
        for i in range(14):
            p("ds_read_b128 %s, v6 offset:%d" % (vr(R + 4 * i), w * 14336 + 1024 * i))
        p("s_waitcnt lgkmcnt(0)")
        for i in range(56):
            p("v_add_f32 v%d, v%d, v%d" % (X + i, X + i, R + i))
    p("s_waitcnt vmcnt(0)")
    unpack(p, R, XT, 28)
    for i in range(56):
        round_bf16(p, X + i)
        p("v_mul_f32 v%d, v%d, v%d" % (X + i, X + i, GA + i))
        round_bf16(p, X + i)
        p("v_add_f32 v%d, v%d, v%d" % (X + i, X + i, R + i))
        round_bf16(p, X + i)
    load_modvec(p, SC, 20, 4, 14)
    load_modvec(p, SH, 20, 3, 14)
    store_frags(p, X, T, 13, 20, WS_X1)
    p("s_waitcnt vmcnt(0)")
    ln_mod(p, X, SC, SH, 1.0)
    store_frags(p, X, T, 13, 20, WS_H2)
    p.label("RED_END")
    p("s_endpgm")
    return p
```

```python
WS_MOD = 0
WS_FLAG = 0x4000
FL_H, FL_KV, FL_P, FL_H2, FL_A, FL_PAIR, FL_K1 = 0, 16, 32, 48, 64, 80, 176
NFLAG_KB = 13
WS_H = 0x100000
H_BYTES = 2048 * 448 * 2
WS_X1 = 0x400000
WS_H2 = 0x800000
WS_ACT = 0xC00000
WS_KV = 0x2000000
KV_BYTES = 16 * 64 * 32768
WS_PART = 0x5000000
PART_BYTES = 16 * 2048 * 448 * 2
WS_OP = 0x8000000
WS_STAMP = 0xC000000
```

```python
import sys
from asmlib import *
import k_kv16, k_small, k_attn

NAME = "adaLN_cond__compressed_kv_cla__dense_activation_silu__prompt"
HEAD = open("cdna_kernels/%s.s.ref" % NAME).read().split("; Override launch")[0]

def build(kernels, out):
    launches, codes, descs = [], [], []
    for name, prog, grid, block, lds in kernels:
        c, d = kernel_text(name, prog)
        launches.append("; @launch kernel=%s grid=(%d,1,1) block=(%d,1,1) lds=%d" % (name, grid, block, lds))
        codes.append(c)
        descs.append(d)
    txt = HEAD + "\n".join(launches) + "\n" + '.amdgcn_target "amdgcn-amd-amdhsa--gfx950"\n' + "".join(codes) + "".join(descs)
    open(out, "w").write(txt)

def opt(name, default):
    for a in sys.argv:
        if a.startswith(name + "="):
            return type(default)(a[len(name) + 1:])
    return default

if __name__ == "__main__":
    stamp = "stamp" in sys.argv
    ks = [("mod_kernel", k_small.gen_mod(), 42, 256, 8192),
          ("ln1_kernel", k_small.gen_ln1(), 256, 64, 0),
          ("kv_kernel", k_kv16.gen_kv(stamp=stamp), 256, 256, 163840),
          ("attn_kernel", k_attn.gen_attn(stamp=stamp, thresh=opt("thresh", 2.0 ** 30)), 256, 256, 131072),
          ("red_kernel", k_small.gen_red(), 256, 256, 57344)]
    try:
        import k_mlp
        ks += k_mlp.kernels(stamp)
    except ImportError:
        pass
    build(ks, sys.argv[1])
```

```python
from asmlib import *
from layout import *

MF = "v_mfma_f32_16x16x32_bf16"
WS_BYTES = 268435456


def srd(p, d, lo, hi, size):
    p("s_mov_b32 s%d, s%d" % (d, lo))
    p("s_and_b32 s%d, s%d, 0xffff" % (d + 1, hi))
    p("s_mov_b32 s%d, 0x%x" % (d + 2, size))
    p("s_mov_b32 s%d, 0x20000" % (d + 3))


def vr(b, n=4, k="v"):
    return "%s[%d:%d]" % (k, b, b + n - 1)


def ar(b, n=4):
    return vr(b, n, "a")


class Stamper:
    def __init__(self, p, on, base=0):
        self.p, self.on, self.base = p, on, base

    def __call__(self, i):
        if self.on:
            self.p('s_memtime s[98:99]')
            self.p('s_memrealtime s[100:101]')
            self.p('s_waitcnt lgkmcnt(0)')
            self.p('s_mov_b32 s%d, s98' % (64 + i))
            self.p('s_mov_b32 s%d, s100' % (80 + i))

    def dump(self, wave_sgpr, nw=4):
        if not self.on:
            return
        p = self.p
        p("s_load_dwordx2 s[96:97], s[0:1], 104")
        p("s_waitcnt lgkmcnt(0)")
        p("s_add_u32 s96, s96, 0x%x" % (WS_STAMP + self.base * 0x20000))
        p("s_addc_u32 s97, s97, 0")
        srd(p, 4, 96, 97, 1024 * 128)
        p("s_mul_i32 s3, s2, %d" % nw)
        p("s_add_u32 s3, s3, s%d" % wave_sgpr)
        p("s_lshl_b32 s3, s3, 7")
        p("v_mov_b32 v3, 0")
        for i in range(32):
            p("v_mov_b32 v4, s%d" % (64 + i))
            p("buffer_store_dword v4, v3, s[4:7], s3 offen offset:%d" % (4 * i))


def xsum_345(p, v, t):
    p("v_add_f32_dpp v%d, v%d, v%d row_ror:8 row_mask:0xf bank_mask:0xf" % (v, v, v))
    p("v_mov_b32 v%d, v%d" % (t, v))
    p("v_permlane16_swap_b32 v%d, v%d" % (v, t))
    p("v_add_f32 v%d, v%d, v%d" % (v, v, t))
    p("v_mov_b32 v%d, v%d" % (t, v))
    p("v_permlane32_swap_b32 v%d, v%d" % (v, t))
    p("v_add_f32 v%d, v%d, v%d" % (v, v, t))


def xop_45(p, v, t, op):
    p("v_mov_b32 v%d, v%d" % (t, v))
    p("v_permlane16_swap_b32 v%d, v%d" % (v, t))
    p("%s v%d, v%d, v%d" % (op, v, v, t))
    p("v_mov_b32 v%d, v%d" % (t, v))
    p("v_permlane32_swap_b32 v%d, v%d" % (v, t))
    p("%s v%d, v%d, v%d" % (op, v, v, t))


def f32bits(x):
    import struct
    return "0x%08x" % struct.unpack("<I", struct.pack("<f", x))[0]


def round_bf16(p, v):
    p("v_cvt_pk_bf16_f32 v%d, v%d, v%d" % (v, v, v))
    p("v_and_b32 v%d, 0xffff0000, v%d" % (v, v))


class Sched:
    def __init__(self, n, cap=2):
        self.n, self.cap = n, cap
        self.g = [[] for _ in range(n)]
        self.used = [0] * n
        self.pre = []

    @staticmethod
    def cost(s):
        return 2 if s.startswith(("v_exp", "v_rcp", "v_rsq", "v_log")) else 1

    def at(self, gap, s):
        self.g[gap].append(s)
        self.used[gap] += self.cost(s)

    def stream(self, items, start=0, end=None):
        end = self.n if end is None else end
        g = start
        for s in items:
            c = self.cost(s)
            while g < end - 1 and self.used[g] + c > max(self.cap, c if self.used[g] == 0 else 0):
                g += 1
            self.at(g, s)
        return g

    def even(self, items, start, end):
        n = len(items)
        for k, s in enumerate(items):
            self.at(start + (k * (end - start)) // n, s)

    def weave(self, mfmas):
        assert len(mfmas) == self.n
        out = list(self.pre)
        for m, f in zip(mfmas, self.g):
            out.append(m)
            out.extend(f)
        return "\n".join(out)

    def flat(self):
        out = list(self.pre)
        for f in self.g:
            out.extend(f)
        return "\n".join(out)


def iclass(s):
    op = s.split()[0]
    if op.startswith("ds_"):
        return "d"
    if op.startswith(("buffer_", "global_")):
        return "m"
    if op.startswith(("v_exp", "v_rcp", "v_rsq", "v_log")):
        return "e"
    if op.startswith("v_"):
        return "v"
    return "s"


class Gaps:
    def __init__(self, n):
        self.n = n
        self.g = [[] for _ in range(n)]

    def at(self, gap, *ins):
        self.g[gap].extend(ins)

    def put(self, gaps, items):
        assert len(gaps) >= len(items), (len(gaps), len(items))
        for g, s in zip(gaps, items):
            self.at(g, s)

    def ordered(self, k):
        f = self.g[k]
        lead = [x for x in f if iclass(x) == "s"][:1]
        rest = list(f)
        for x in lead:
            rest.remove(x)
        return lead + [x for x in rest if iclass(x) == "d"] + [x for x in rest if iclass(x) == "m"] + \
            [x for x in rest if iclass(x) not in "dm"]

    def penalty(self):
        tot = 0
        for k in range(self.n):
            o = [iclass(x) for x in self.ordered(k)]
            if o and o[0] == "s":
                o = o[1:]
            c = sum(2 if x in "em" else 1 for x in o) + max(0, o.count("d") - 1)
            tot += 4 * max(0, c - 2)
        return tot

    def weave(self, mfmas, name=None):
        assert len(mfmas) == self.n
        out = []
        for k, m in enumerate(mfmas):
            out.append(m)
            out.extend(self.ordered(k))
        if name:
            import sys
            print("   sched %s: est penalty %d cycles" % (name, self.penalty()), file=sys.stderr)
        return "\n".join(out)
```

```python
import math
from common import *

QSCALE = math.log2(math.e) / 16.0
sWAVE, sHEAD, sROLE = 18, 19, 20
pX, pWQ, pWO, pW1, pW2, pOUT, pWS = 50, 52, 54, 56, 58, 60, 62
SPIN = 0x40000


def flag_off(p, dst, base, idx_s):
    p("s_lshl_b32 s%d, s%d, 6" % (dst, idx_s))
    p("s_add_u32 s%d, s%d, 0x%x" % (dst, dst, WS_FLAG + base * 64))


def signal(p, off_s, vone, vzero, name, srd_=8):
    p("s_cmp_lg_u32 s%d, 0" % sWAVE)
    p("s_cbranch_scc1 %s" % name)
    p("v_mov_b32 v%d, 1" % vone)
    p("v_mov_b32 v%d, 0" % vzero)
    p("s_mov_b64 exec, 1")
    p("buffer_atomic_add v%d, v%d, s[%d:%d], s%d offen sc1" % (vone, vzero, srd_, srd_ + 3, off_s))
    p("s_mov_b64 exec, -1")
    p.label(name)


def poll(p, off_s, want, vt, vzero, s1, s2, name, srd_=8, first_loaded=False):
    p("s_mov_b32 s%d, 0" % s2)
    if first_loaded:
        p("s_branch %s_CHK" % name)
    p.label(name)
    p("buffer_load_dword v%d, v%d, s[%d:%d], s%d offen sc1" % (vt, vzero, srd_, srd_ + 3, off_s))
    p("s_waitcnt vmcnt(0)")
    p.label(name + "_CHK")
    p("v_readfirstlane_b32 s%d, v%d" % (s1, vt))
    p("s_cmp_ge_u32 s%d, %d" % (s1, want))
    p("s_cbranch_scc1 %s_OK" % name)
    p("s_add_u32 s%d, s%d, 1" % (s2, s2))
    p("s_cmp_ge_u32 s%d, 0x%x" % (s2, SPIN))
    p("s_cbranch_scc1 %s_OK" % name)
    p("s_sleep 2")
    p("s_branch %s" % name)
    p.label(name + "_OK")


def xsum_row32(p, v, t):
    for k in (1, 2, 4, 8):
        p("v_add_f32_dpp v%d, v%d, v%d row_ror:%d row_mask:0xf bank_mask:0xf" % (v, v, v, k))
    p("v_mov_b32 v%d, v%d" % (t, v))
    p("v_permlane16_swap_b32 v%d, v%d" % (v, t))
    p("v_add_f32 v%d, v%d, v%d" % (v, v, t))


def unpack(p, dst, src, n):
    for i in range(n):
        p("v_lshlrev_b32 v%d, 16, v%d" % (dst + 2 * i, src + i))
        p("v_and_b32 v%d, 0xffff0000, v%d" % (dst + 2 * i + 1, src + i))
```

```python
from fused_common import *
import phase_kv

SPLIT = 38
OP_STRIDE = 0x12000
L16, BKV, BWQ, BWO, ACT, RKV, NEGBIG = 2, 3, 4, 5, 6, 14, 15
WQB, WOB, CUR = 16, 24, 28
THR0, THR, LS, BS, T0 = 36, 37, 38, 40, 42
ZER = 44
NEGM, PF, S, PP, XT, Q, MRG, TMP = 48, 56, 64, 80, 96, 112, 176, 240
FA, FB = 128, 192
RING = 5 * 32768
sPO, sPS, sRW, sRR = 21, 22, 24, 25
sT, sB0, sNB, sACT = 26, 27, 28, 29
sT2, sNB2 = 30, 31
sCNT, sB, sD0, sSIG, sPAIR = 32, 33, 34, 35, 36
sX, sY, sZ = 37, 38, 39
sTHRESH, sW1K = 48, 49
sO0, sO1 = 16, 17


def Sreg(kt, qt):
    return S + (kt * 2 + qt) * 4


def Hreg(ks, qt):
    return MRG + (ks * 2 + qt) * 4 if ks < 8 else S + ((ks - 8) * 2 + qt) * 4


def Oreg(dt, qt):
    return (dt * 2 + qt) * 4


def prod_set(kind):
    lo, size, base, js, ps = {"wq": (pWQ, 448 * 4096 * 2, BWQ, 65536, 0x80000),
                              "wo": (pWO, 448 * 4096 * 2, BWO, 28672, 128),
                              "w1": (pW1, 448 * 1792 * 2, BWQ, 57344, 128 * 3584),
                              "kv": (pWS, WS_BYTES, BKV, 4096, 32768)}[kind]
    o = ["s_mov_b32 s4, s%d" % lo, "s_and_b32 s5, s%d, 0xffff" % (lo + 1), "s_mov_b32 s6, 0x%x" % size,
         "s_mov_b32 s%d, 0x%x" % (sPS, ps)]
    if kind == "wq":
        o += ["s_lshl_b32 s%d, s%d, 9" % (sPO, sHEAD)]
    elif kind == "wo":
        o += ["s_mul_i32 s%d, s%d, 229376" % (sPO, sHEAD)]
    elif kind == "w1":
        o += ["s_lshl_b32 s%d, s%d, 8" % (sPO, sROLE), "s_cmp_lt_u32 s%d, 14" % sROLE, "s_cselect_b32 s6, s6, 0"]
    else:
        o += ["s_lshl_b32 s%d, s%d, 6" % (sPO, sHEAD), "s_add_u32 s%d, s%d, s%d" % (sPO, sPO, sB0),
              "s_lshl_b32 s%d, s%d, 15" % (sPO, sPO), "s_add_u32 s%d, s%d, 0x%x" % (sPO, sPO, WS_KV - 16384)]
    v = ["v_mov_b32 v%d, v%d" % (ACT, base)]
    for j in range(1, 8):
        v += ["v_add_u32 v%d, 0x%x, v%d" % (ACT + j, j * js, base)]
    return o, v


def dma(j):
    return ["s_add_u32 m0, s%d, %d" % (sRW, j * 4096),
            "buffer_load_dwordx4 v%d, s[4:7], s%d offen sc1 lds" % (ACT + j, sPO)]


PROD_ADV = ["s_add_u32 s%d, s%d, s%d" % (sPO, sPO, sPS), "s_add_u32 s%d, s%d, 0x8000" % (sRW, sRW),
            "s_cmp_ge_u32 s%d, 0x%x" % (sRW, RING), "s_cselect_b32 s%d, s%d, s%d" % (sRW, sW1K, sRW)]
RING_ADV = ["s_add_u32 s%d, s%d, 0x8000" % (sRR, sRR), "s_cmp_ge_u32 s%d, 0x%x" % (sRR, RING),
            "s_cselect_b32 s%d, 0, s%d" % (sRR, sRR)]


def cur_set(kind):
    if kind == "kv":
        return ["v_add_u32 v%d, s%d, v%d" % (RKV, sRR, L16)]
    n, base = (8, WQB) if kind == "wq" else (4, WOB)
    return ["v_add_u32 v%d, s%d, v%d" % (CUR + x, sRR, base + x) for x in range(n)]


def reads(kind, half):
    F = FA if half == 0 else FB
    o = []
    if kind == "kv":
        for f in range(16):
            o.append("ds_read_b128 %s, v%d offset:%d" % (ar(F + 4 * f), RKV, (16384 if half == 0 else 0) + 1024 * f))
    elif kind == "wq":
        for dt in range(16):
            for i in range(2):
                o.append("ds_read_b64_tr_b16 %s, v%d offset:%d" % (
                    ar(F + 4 * dt + 2 * i, 2), CUR + (dt & 7), half * 16384 + i * 8192 + (dt >> 3) * 256))
    else:
        for mt in range(2):
            for u in range(8):
                for i in range(2):
                    o.append("ds_read_b64_tr_b16 %s, v%d offset:%d" % (
                        ar(F + 4 * (mt * 8 + u) + 2 * i, 2), CUR + 2 * half + mt, u * 4096 + i * 2048))
    return o


DG = [2, 6, 10, 14, 18, 22, 26, 30]


def place_dma(G, base=0, adv=True):
    for j in range(8):
        d = dma(j)
        G.at(base + DG[j] - 1, d[0])
        G.at(base + DG[j], d[1])


def spread_reads(G, rd, gaps):
    n, m = len(rd), len(gaps)
    for k, r in enumerate(rd):
        G.at(gaps[(k * m) // n], r)


def h_loads(tile_s, ks_list):
    o = ["s_lshl_b32 s%d, s%d, 3" % (sX, tile_s), "s_lshl_b32 s%d, s%d, 1" % (sY, sWAVE),
         "s_add_u32 s%d, s%d, s%d" % (sX, sX, sY), "s_mul_i32 s%d, s%d, 14336" % (sX, sX),
         "s_add_u32 s%d, s%d, 0x%x" % (sX, sX, WS_H)]
    for ks in ks_list:
        for qt in range(2):
            off = qt * 14336 + ks * 1024
            o.append("s_add_u32 s%d, s%d, %d" % (sY, sX, off & ~0xfff))
            o.append("buffer_load_dwordx4 %s, v%d, s[8:11], s%d offen offset:%d sc1" % (vr(Hreg(ks, qt)), L16, sY, off & 0xfff))
    return o


def tr_h1(G, kind, base, dma_too=False, busy=()):
    cs = cur_set(kind)
    G.at(base, cs[0], cs[1])
    for x in range(2, len(cs)):
        G.at(base + x - 1, cs[x])
    gaps = [g for g in range(base + 1, base + 32) if not (dma_too and (g - base) in DG) and g not in busy]
    spread_reads(G, reads(kind, 0), gaps)


def gen(p, st, stubs, thresh):
    J = lambda l: p("\n".join(l))
    p("s_cmp_lt_u32 s%d, 6" % sROLE)
    p("s_cbranch_scc1 AT_ROLE_A")
    p("s_cmp_lt_u32 s%d, 12" % sROLE)
    p("s_cbranch_scc1 AT_ROLE_B")
    p("s_sub_u32 s%d, s%d, 6" % (sT, sROLE))
    p("s_mov_b32 s%d, 0" % sB0)
    p("s_lshl_b32 s%d, s%d, 2" % (sNB, sT))
    p("s_add_u32 s%d, s%d, 4" % (sNB, sNB))
    p("s_mov_b32 s%d, 0" % sACT)
    p("s_mov_b32 s%d, 0" % sX)
    p("s_branch AT_ROLE_DONE")
    p.label("AT_ROLE_A")
    p("s_add_u32 s%d, s%d, 10" % (sT, sROLE))
    p("s_mov_b32 s%d, 0" % sB0)
    p("s_mov_b32 s%d, %d" % (sNB, SPLIT))
    p("s_mov_b32 s%d, 1" % sACT)
    p("s_mov_b32 s%d, s%d" % (sX, sROLE))
    p("s_branch AT_ROLE_DONE")
    p.label("AT_ROLE_B")
    p("s_add_u32 s%d, s%d, 4" % (sT, sROLE))
    p("s_mov_b32 s%d, %d" % (sB0, SPLIT))
    p("s_lshl_b32 s%d, s%d, 2" % (sNB, sT))
    p("s_sub_u32 s%d, s%d, %d" % (sNB, sNB, SPLIT - 4))
    p("s_mov_b32 s%d, 2" % sACT)
    p("s_sub_u32 s%d, s%d, 6" % (sX, sROLE))
    p.label("AT_ROLE_DONE")
    for i in range(4):
        p("v_mov_b32 v%d, 0" % (ZER + i))
    p("s_sub_u32 s%d, 15, s%d" % (sT2, sT))
    flag_off(p, sY, FL_H, sT)
    flag_off(p, sZ, FL_H, sT2)
    p("buffer_load_dword v%d, v%d, s[8:11], s%d offen sc1" % (T0, ZER, sY))
    p("buffer_load_dword v%d, v%d, s[8:11], s%d offen sc1" % (T0 + 1, ZER, sZ))
    p("s_lshl_b32 s%d, s%d, 2" % (sNB2, sT2))
    p("s_add_u32 s%d, s%d, 4" % (sNB2, sNB2))
    p("s_mul_i32 s%d, s%d, 6" % (sPAIR, sHEAD))
    p("s_add_u32 s%d, s%d, s%d" % (sPAIR, sPAIR, sX))
    p("s_mov_b32 s%d, %s" % (sTHRESH, f32bits(thresh)))
    p("s_lshl_b32 s%d, s%d, 10" % (sW1K, sWAVE))
    flag_off(p, sSIG, FL_KV, sHEAD)
    W, HI, G_, C = TMP, TMP + 1, TMP + 2, TMP + 4
    a, b, c = TMP + 5, TMP + 6, TMP + 7
    p("v_lshrrev_b32 v%d, 6, v0" % W)
    p("v_lshlrev_b32 v%d, 4, v1" % L16)
    p("v_lshrrev_b32 v%d, 5, v1" % HI)
    p("v_lshl_add_u32 v%d, v%d, 1, v%d" % (a, W, HI))
    p("v_lshlrev_b32 v%d, 1, v%d" % (b, a))
    p("v_and_b32 v%d, 31, v1" % c)
    p("v_xor_b32 v%d, v%d, v%d" % (b, b, c))
    p("v_lshlrev_b32 v%d, 4, v%d" % (b, b))
    p("v_lshl_add_u32 v%d, v%d, 13, v%d" % (BWQ, a, b))
    so, vo = prod_set("wq")
    J(so + vo)
    p("s_mov_b32 s%d, s%d" % (sRW, sW1K))
    p("s_mov_b32 s%d, 0" % sRR)
    for g in range(3):
        for j in range(8):
            J(dma(j))
        J(PROD_ADV)
    p("s_waitcnt vmcnt(24)")
    poll(p, sY, 16, T0, ZER, 40, 41, "AT_POLLH", first_loaded=True)
    poll(p, sZ, 16, T0 + 1, ZER, 40, 41, "AT_POLLH2", first_loaded=True)
    J(h_loads(sT, range(14)))
    p("v_lshrrev_b32 v%d, 4, v1" % G_)
    p("v_and_b32 v%d, 3, v1" % C)
    p("v_lshl_add_u32 v%d, v%d, 10, v%d" % (BKV, W, L16))
    p("v_lshrrev_b32 v%d, 3, v1" % a)
    p("v_lshl_add_u32 v%d, v%d, 3, v%d" % (a, W, a))
    p("v_bfe_u32 v%d, v%d, 1, 2" % (b, a))
    p("v_lshlrev_b32 v%d, 1, v%d" % (b, b))
    p("v_and_b32 v%d, 7, v1" % c)
    p("v_xor_b32 v%d, v%d, v%d" % (b, b, c))
    p("v_lshlrev_b32 v%d, 4, v%d" % (b, b))
    p("v_mul_u32_u24 v%d, 896, v%d" % (a, a))
    p("v_add_u32 v%d, v%d, v%d" % (BWO, a, b))
    p("v_lshrrev_b32 v%d, 2, v1" % a)
    p("v_lshlrev_b32 v%d, 9, v%d" % (b, a))
    p("v_lshl_add_u32 v%d, v%d, 3, v%d" % (b, C, b))
    p("v_and_b32 v%d, 7, v%d" % (c, a))
    p("v_lshl_add_u32 v%d, v%d, 5, v%d" % (b, c, b))
    for x in range(8):
        p("v_xor_b32 v%d, %d, v%d" % (WQB + x, x * 32, b))
    p("v_lshlrev_b32 v%d, 7, v%d" % (b, a))
    p("v_lshl_add_u32 v%d, v%d, 3, v%d" % (b, C, b))
    p("v_bfe_u32 v%d, v%d, 1, 2" % (c, a))
    p("v_lshl_add_u32 v%d, v%d, 5, v%d" % (b, c, b))
    for x in range(4):
        p("v_xor_b32 v%d, %d, v%d" % (WOB + x, x * 32, b))
    p("v_and_b32 v%d, 15, v1" % a)
    p("v_lshlrev_b32 v%d, 2, v%d" % (b, G_))
    p("v_sub_u32 v%d, v%d, v%d" % (a, a, b))
    p("v_lshl_add_u32 v%d, v%d, 5, v%d" % (THR0, W, a))
    p("v_mov_b32 v%d, %s" % (NEGBIG, f32bits(-1e30)))
    J(cur_set("wq"))
    phase_kv.epilogue(p, L16, Q)
    st(3)
    p("s_waitcnt vmcnt(32)")
    p("s_barrier")
    J(reads("wq", 0))

    p.label("AT_JOB")
    p("s_waitcnt lgkmcnt(0)")
    VM = {2: 16, 3: 16, 4: 8, 5: 0}
    for t in range(7):
        mf = []
        for half in range(2):
            ks = 2 * t + half
            F = FA if half == 0 else FB
            for dt in range(16):
                for qt in range(2):
                    acc = ar(Oreg(dt, qt))
                    mf.append("%s %s, %s, %s, %s" % (MF, acc, ar(F + 4 * dt), vr(Hreg(ks, qt)), "0" if ks == 0 else acc))
        G = Gaps(64)
        d0 = t <= 3 or t == 6
        if d0:
            place_dma(G, 0)
        spread_reads(G, reads("wq", 1), [g for g in range(32) if not (d0 and g in DG)])
        G.at(12, "s_waitcnt lgkmcnt(8)")
        G.put([24, 27, 28], RING_ADV if t < 6 else [])
        G.at(31, "s_waitcnt %slgkmcnt(8)" % ("vmcnt(%d) " % VM[t] if t in VM else ""))
        d1 = t >= 5
        if t in (2, 4, 5):
            p(Gaps_slice(G, mf, 0, 32))
            p("s_barrier")
            if t == 2:
                signal(p, sSIG, T0, T0 + 1, "AT_SIG")
            elif t == 4:
                flag_off(p, sZ, FL_KV, sHEAD)
                p("buffer_load_dword v%d, v%d, s[8:11], s%d offen sc1" % (T0, ZER, sZ))
            else:
                poll(p, sZ, 16, T0, ZER, 40, 41, "AT_POLLKV", first_loaded=True)
        else:
            G.at(32, "s_barrier")
        if d0:
            G.put([35, 36, 39, 40] if not d1 else [32, 32, 32, 32], PROD_ADV)
        if t < 6:
            tr_h1(G, "wq", 32, dma_too=d1)
        if d1:
            place_dma(G, 32)
            G.at(63, *PROD_ADV)
        G.at(44, "s_waitcnt lgkmcnt(%d)" % (8 if t < 6 else 0))
        if t < 6:
            G.at(63 if not d1 else 62, "s_waitcnt lgkmcnt(8)")
        if t == 4:
            so, vo = prod_set("kv")
            G.put(range(45, 45 + len(so)), so)
            G.put(range(45, 45 + len(vo)), vo)
        if t in (2, 4, 5):
            p(Gaps_slice(G, mf, 32, 64))
        else:
            p(G.weave(mf, "qproj%d" % t))
    st(4)

    def convert(kind, mid=None):
        n = 0
        for u in range(8):
            if u == 5 and mid:
                mid()
            for qt in range(2):
                T = TMP + (n % 2) * 8
                n += 1
                for k in range(8):
                    p("v_accvgpr_read_b32 v%d, a%d" % (T + k, Oreg(2 * u + (k >> 2), qt) + (k & 3)))
                if kind != "q":
                    for k in range(8):
                        p("v_mul_f32 v%d, v%d, v%d" % (T + k, T + k, BS + qt))
                if kind == "merge":
                    for d in range(4):
                        m = MRG + (qt * 8 + u) * 4 + d
                        p("v_lshlrev_b32 v%d, 16, v%d" % (T0, m))
                        p("v_and_b32 v%d, 0xffff0000, v%d" % (T0 + 1, m))
                        p("v_fmac_f32 v%d, v%d, v%d" % (T + 2 * d, T0, LS + qt))
                        p("v_fmac_f32 v%d, v%d, v%d" % (T + 2 * d + 1, T0 + 1, LS + qt))
                for d in range(4):
                    p("v_cvt_pk_bf16_f32 v%d, v%d, v%d" % (Q + (qt * 8 + u) * 4 + d, T + 2 * d, T + 2 * d + 1))

    def first_k():
        J(RING_ADV + cur_set("kv"))
        p("s_waitcnt vmcnt(16)")
        p("s_barrier")
        J(reads("kv", 0))

    convert("q", first_k)
    p("s_mov_b32 s%d, s%d" % (sB, sB0))
    p("s_lshl_b32 s%d, s%d, 2" % (sD0, sT))
    p("s_mov_b32 s%d, s%d" % (sCNT, sNB))
    p("v_mov_b32 v%d, v%d" % (THR, THR0))

    def qk_mf(first):
        mf = []
        for kt in range(2):
            for u in range(8):
                for qt in range(2):
                    d = vr(Sreg(kt, qt))
                    cc = d if u else ("0" if first else vr(NEGM + 4 * qt))
                    mf.append("%s %s, %s, %s, %s" % (MF, d, ar(FA + 4 * (kt * 8 + u)), vr(Q + (qt * 8 + u) * 4), cc))
        return mf

    pv_mf = []
    for dt in range(16):
        for qt in range(2):
            acc = ar(Oreg(dt, qt))
            pv_mf.append("%s %s, %s, %s, %s" % (MF, acc, ar(FB + 4 * dt), vr(PF + 4 * qt), acc))

    def mask_code(kt):
        o = []
        for qt in range(2):
            for r in range(4):
                o.append("v_cmp_gt_i32 s[%d:%d], %d, v%d" % (40 + 2 * r, 41 + 2 * r, 16 * (kt - qt) + r, THR))
            for r in range(4):
                s = Sreg(kt, qt) + r
                o.append("v_cndmask_b32 v%d, v%d, v%d, s[%d:%d]" % (s, s, NEGBIG, 40 + 2 * r, 41 + 2 * r))
        if kt == 1:
            o.append("v_subrev_u32 v%d, 32, v%d" % (THR, THR))
        return o

    ex = ["v_exp_f32 v%d, v%d" % (PP + i, S + i) for i in range(16)]
    ad = []
    for i in range(16):
        qt = (i >> 2) & 1
        if i in (1, 5):
            ad.append("v_add_f32 v%d, v%d, v%d" % (BS + qt, PP + i - 1, PP + i))
        elif i not in (0, 4):
            ad.append("v_add_f32 v%d, v%d, v%d" % (BS + qt, BS + qt, PP + i))
    cvt_p = []
    for kt in range(2):
        for qt in range(2):
            for d in range(2):
                s = PP + (kt * 2 + qt) * 4 + 2 * d
                cvt_p.append("v_cvt_pk_bf16_f32 v%d, v%d, v%d" % (PF + 4 * qt + 2 * kt + d, s, s + 1))
    ladd = ["v_add_f32 v%d, v%d, v%d" % (LS + qt, LS + qt, BS + qt) for qt in range(2)]

    def rowmax(q, qt, dst):
        s0, s1 = Sreg(0, qt), Sreg(1, qt)
        q("v_max3_f32 v%d, v%d, v%d, v%d" % (dst, s0, s0 + 1, s0 + 2))
        q("v_max3_f32 v%d, v%d, v%d, v%d" % (dst, dst, s0 + 3, s1))
        q("v_max3_f32 v%d, v%d, v%d, v%d" % (dst, dst, s1 + 1, s1 + 2))
        q("v_max_f32 v%d, v%d, v%d" % (dst, dst, s1 + 3))
        xop_45(q, dst, TMP + 15, "v_max_f32")

    G = Gaps(32)
    place_dma(G)
    G.put([24, 27, 28], RING_ADV)
    G.at(31, *cur_set("kv"))
    p("s_waitcnt lgkmcnt(0)")
    p(G.weave(qk_mf(True)))
    J(PROD_ADV)
    p("s_waitcnt vmcnt(16)")
    p("s_barrier")
    J(reads("kv", 0))
    for i in range(8):
        p("v_mfma_f32_32x32x16_bf16 a[%d:%d], %s, %s, 0" % (16 * i, 16 * i + 15, vr(ZER), vr(ZER)))
    p("s_cmp_lt_u32 s%d, s%d" % (sB, sD0))
    p("s_cbranch_scc1 AT_S0_NOMASK")
    J(mask_code(0) + mask_code(1))
    p.label("AT_S0_NOMASK")
    for qt in range(2):
        rowmax(p, qt, TMP + qt)
        for r in range(4):
            p("v_sub_f32 v%d, 0, v%d" % (NEGM + 4 * qt + r, TMP + qt))
        for kt in range(2):
            for r in range(4):
                s = Sreg(kt, qt) + r
                p("v_sub_f32 v%d, v%d, v%d" % (s, s, TMP + qt))
        p("v_mov_b32 v%d, 0" % (LS + qt))
    J(ex + ad)
    p("s_add_u32 s%d, s%d, 1" % (sB, sB))
    p("s_sub_u32 s%d, s%d, 1" % (sCNT, sCNT))
    p("s_waitcnt lgkmcnt(0)")

    RG0 = [0, 1, 3, 4, 5, 7, 8, 9, 11, 12, 13, 15, 16, 17, 19, 20]
    p(".p2align 6")
    p.label("AT_LOOP")
    G = Gaps(64)
    place_dma(G)
    G.put(RG0, reads("kv", 1))
    G.put(RG0, cvt_p + ladd)
    G.at(19, "s_cmp_ge_u32 s%d, s%d" % (sB, sD0))
    G.at(20, "s_cbranch_scc1 AT_MASK0\nAT_MASK0_RET:")
    G.put([21, 23, 24, 25, 27, 28, 29, 31], ex[:8])
    G.put([23, 27, 28], RING_ADV)
    G.at(31, "s_waitcnt vmcnt(16) lgkmcnt(0)")
    G.at(32, "s_barrier", cur_set("kv")[0], ad[0])
    RG1 = [33, 34, 35, 37, 39, 41, 43, 45, 47, 49, 51, 52, 53, 54, 55, 56]
    G.put(RG1, reads("kv", 0))
    G.at(34, "s_cmp_ge_u32 s%d, s%d" % (sB, sD0))
    G.at(35, "s_cbranch_scc1 AT_MASK1\nAT_MASK1_RET:")
    G.put(range(36, 52, 2), ex[8:])
    G.put([33, 34, 35, 37, 39, 41, 43, 45, 47, 49, 51, 52, 53], ad[1:])
    G.at(54, "v_max_f32 v%d, v%d, v%d" % (T0, BS, BS + 1))
    G.at(55, "v_cmp_lt_f32 vcc, s%d, v%d" % (sTHRESH, T0))
    G.put([36, 37, 38, 39], PROD_ADV)
    G.at(41, "s_sub_u32 s%d, s%d, 3" % (sX, sCNT))
    G.at(42, "s_cmp_lt_u32 s%d, 2" % sX)
    G.at(43, "s_cbranch_scc1 AT_SWITCH\nAT_SWITCH_RET:")
    G.at(58, "s_add_u32 s%d, s%d, 1" % (sB, sB))
    G.at(59, "s_sub_u32 s%d, s%d, 1" % (sCNT, sCNT))
    G.at(60, "s_cmp_lg_u32 s%d, 0" % sCNT)
    G.at(61, "s_waitcnt lgkmcnt(0)")
    p(G.weave(qk_mf(False) + pv_mf, "attn"))
    p("s_cbranch_vccnz AT_RARE")
    p.label("AT_RARE_RET")
    p("s_cbranch_scc1 AT_LOOP")

    rd = reads("kv", 1)
    for j in range(8):
        d = dma(j)
        J([d[0], rd[2 * j], d[1], rd[2 * j + 1], cvt_p[j]])
    J(ladd + PROD_ADV + RING_ADV)
    p("s_waitcnt vmcnt(16) lgkmcnt(0)")
    p("s_barrier")
    p("s_cmp_eq_u32 s%d, 2" % sACT)
    p("s_cbranch_scc1 AT_LAST_Q")
    G = Gaps(32)
    tr_h1(G, "wo", 0)
    p(G.weave(pv_mf))
    p("s_branch AT_LAST_DONE")
    p.label("AT_LAST_Q")
    G = Gaps(32)
    tr_h1(G, "wq", 0)
    p(G.weave(pv_mf))
    p.label("AT_LAST_DONE")
    st(5)
    for qt in range(2):
        xop_45(p, LS + qt, TMP + 15, "v_add_f32")
    p("s_waitcnt vmcnt(8)")
    p("s_cmp_eq_u32 s%d, 1" % sACT)
    p("s_cbranch_scc1 AT_MERGE")
    for qt in range(2):
        p("v_rcp_f32 v%d, v%d" % (BS + qt, LS + qt))
    convert("plain")
    p("s_cmp_eq_u32 s%d, 2" % sACT)
    p("s_cbranch_scc0 AT_OPROJ")

    def op_base(q):
        q("s_mul_i32 s%d, s%d, 0x%x" % (sX, sPAIR, OP_STRIDE))
        q("s_mul_i32 s%d, s%d, 17408" % (sY, sWAVE))
        q("s_add_u32 s%d, s%d, s%d" % (sX, sX, sY))
        q("s_add_u32 s%d, s%d, 0x%x" % (sX, sX, WS_OP))

    op_base(p)
    for f in range(16):
        if f % 4 == 0 and f:
            p("s_add_u32 s%d, s%d, 4096" % (sX, sX))
        p("buffer_store_dwordx4 %s, v%d, s[8:11], s%d offen offset:%d sc1" % (vr(Q + 4 * f), L16, sX, (f % 4) * 1024))
    p("s_add_u32 s%d, s%d, 4096" % (sX, sX))
    p("v_mov_b32 v%d, v%d" % (TMP, NEGM))
    p("v_mov_b32 v%d, v%d" % (TMP + 1, LS))
    p("v_mov_b32 v%d, v%d" % (TMP + 2, NEGM + 4))
    p("v_mov_b32 v%d, v%d" % (TMP + 3, LS + 1))
    p("buffer_store_dwordx4 %s, v%d, s[8:11], s%d offen sc1" % (vr(TMP), L16, sX))
    p("s_mov_b32 s%d, s%d" % (sT, sT2))
    p("s_mov_b32 s%d, s%d" % (sNB, sNB2))
    p("s_mov_b32 s%d, 0" % sB0)
    p("s_mov_b32 s%d, 0" % sACT)
    flag_off(p, sSIG, FL_PAIR, sPAIR)
    J(h_loads(sT, range(8, 14)))
    p("s_waitcnt vmcnt(29)")
    p("s_branch AT_JOB")
    p.label("AT_MERGE")
    for qt in range(2):
        nB, lB = XT + 2 * qt, XT + 2 * qt + 1
        nA = NEGM + 4 * qt
        p("v_min_f32 v%d, v%d, v%d" % (T0, nA, nB))
        p("v_sub_f32 v%d, v%d, v%d" % (T0 + 1, T0, nA))
        p("v_sub_f32 v%d, v%d, v%d" % (T0, T0, nB))
        p("v_exp_f32 v%d, v%d" % (T0 + 1, T0 + 1))
        p("v_exp_f32 v%d, v%d" % (T0, T0))
        p("v_mul_f32 v%d, v%d, v%d" % (lB, lB, T0))
        p("v_fma_f32 v%d, v%d, v%d, v%d" % (T0, LS + qt, T0 + 1, lB))
        p("v_rcp_f32 v%d, v%d" % (T0, T0))
        p("v_mul_f32 v%d, v%d, v%d" % (BS + qt, T0 + 1, T0))
        p("v_mul_f32 v%d, v%d, v%d" % (LS + qt, lB, T0))
    convert("merge")

    p.label("AT_OPROJ")
    st(6)
    p("s_lshl_b32 s%d, s%d, 3" % (sX, sT))
    p("s_lshl_b32 s%d, s%d, 1" % (sY, sWAVE))
    p("s_add_u32 s%d, s%d, s%d" % (sX, sX, sY))
    p("s_mul_i32 s%d, s%d, 14336" % (sX, sX))
    p("s_mul_i32 s%d, s%d, 0x%x" % (sY, sHEAD, H_BYTES))
    p("s_add_u32 s%d, s%d, s%d" % (sX, sX, sY))
    p("s_add_u32 s%d, s%d, 0x%x" % (sZ, sX, WS_PART))
    p("s_mov_b32 s%d, 0xf0000000" % sO0)
    p("s_mov_b32 s%d, 0xf0000000" % sO1)
    p("s_mov_b32 s%d, 0" % sCNT)
    p("v_lshrrev_b32 v%d, 4, v0" % a)
    p("v_and_b32 v%d, 7, v%d" % (b, a))
    p("v_lshlrev_b32 v%d, 1, v%d" % (b, b))
    p("v_and_b32 v%d, 15, v1" % c)
    p("v_xor_b32 v%d, v%d, v%d" % (b, b, c))
    p("v_lshlrev_b32 v%d, 4, v%d" % (b, b))
    p("v_mul_u32_u24 v%d, 3584, v%d" % (a, a))
    p("v_add_u32 v%d, v%d, v%d" % (BWQ, a, b))
    p("s_waitcnt lgkmcnt(0)")

    def op_mf(half):
        F = FA if half == 0 else FB
        A = S if half == 0 else PP
        mf = []
        for mt in range(2):
            for u in range(8):
                for qt in range(2):
                    acc = vr(A + (qt * 2 + mt) * 4)
                    mf.append("%s %s, %s, %s, %s" % (MF, acc, ar(F + 4 * (mt * 8 + u)), vr(Q + (qt * 8 + u) * 4), acc if u else "0"))
        return mf

    def op_out(half):
        A = S if half == 0 else PP
        cv, stq = [], []
        for qt in range(2):
            T = XT + half * 8 + qt * 4
            for d in range(4):
                cv.append("v_cvt_pk_bf16_f32 v%d, v%d, v%d" % (T + d, A + qt * 8 + 2 * d, A + qt * 8 + 2 * d + 1))
            stq.append("buffer_store_dwordx4 %s, v%d, s[8:11], s%d offen offset:%d sc1" % (vr(T), L16, sO0 + qt, half * 1024))
        return cv, stq

    p(".p2align 6")
    p.label("AT_OLOOP")
    G = Gaps(64)
    place_dma(G)
    spread_reads(G, reads("wo", 1), [g for g in range(32) if g not in DG])
    cv, stq = op_out(1)
    G.put([5, 8, 9, 12, 13, 16, 17, 20], cv)
    G.at(12, "s_waitcnt lgkmcnt(8)")
    G.put([24, 27, 28], RING_ADV)
    G.at(31, "s_waitcnt vmcnt(16) lgkmcnt(8)")
    G.at(32, "s_barrier")
    G.put([36, 40], stq)
    G.put([41, 42, 43], ["s_mov_b32 s%d, s%d" % (sO0, sZ), "s_add_u32 s%d, s%d, 14336" % (sO1, sZ),
                         "s_add_u32 s%d, s%d, 2048" % (sZ, sZ)])
    G.put([33, 34, 35, 37], PROD_ADV)
    cv0, st0 = op_out(0)
    G.put([38, 41, 43, 45, 47, 49, 51, 53], cv0)
    G.put([56, 60], st0)
    tr_h1(G, "wo", 32, busy=(36, 40, 56, 60))
    G.at(44, "s_waitcnt lgkmcnt(8)")
    G.at(46, "s_add_u32 s%d, s%d, 1" % (sCNT, sCNT))
    G.at(47, "s_cmp_eq_u32 s%d, 4" % sCNT)
    G.at(48, "s_cbranch_scc1 AT_W1SW\nAT_W1SW_RET:")
    G.at(62, "s_cmp_lg_u32 s%d, 7" % sCNT)
    G.at(63, "s_waitcnt lgkmcnt(8)")
    p(G.weave(op_mf(0) + op_mf(1), "oproj"))
    p("s_cbranch_scc1 AT_OLOOP")
    J(cv + stq)
    st(7)

    q = stubs
    JQ = lambda l: q("\n".join(l))
    for kt in range(2):
        q.label("AT_MASK%d" % kt)
        JQ(mask_code(kt))
        q("s_branch AT_MASK%d_RET" % kt)
    q.label("AT_W1SW")
    so, vo = prod_set("w1")
    JQ(so + vo)
    q("s_branch AT_W1SW_RET")

    q.label("AT_SWITCH")
    q("s_cmp_eq_u32 s%d, 3" % sCNT)
    q("s_cbranch_scc1 AT_SW3")
    q("s_cmp_eq_u32 s%d, 1" % sACT)
    q("s_cbranch_scc0 AT_SWITCH_RET")
    flag_off(q, sZ, FL_PAIR, sPAIR)
    q("buffer_load_dword v%d, v%d, s[8:11], s%d offen sc1" % (T0 + 1, ZER, sZ))
    q("s_branch AT_SWITCH_RET")
    q.label("AT_SW3")
    q("s_cmp_eq_u32 s%d, 2" % sACT)
    q("s_cbranch_scc1 AT_SW_Q")
    so, vo = prod_set("wo")
    JQ(so + vo)
    q("s_cmp_eq_u32 s%d, 1" % sACT)
    q("s_cbranch_scc0 AT_SWITCH_RET")
    q("s_waitcnt vmcnt(8)")
    poll(q, sZ, 1, T0 + 1, ZER, sX, sY, "AT_POLLP", first_loaded=True)
    op_base(q)
    for f in range(16):
        if f % 4 == 0 and f:
            q("s_add_u32 s%d, s%d, 4096" % (sX, sX))
        q("buffer_load_dwordx4 %s, v%d, s[8:11], s%d offen offset:%d sc1" % (vr(MRG + 4 * f), L16, sX, (f % 4) * 1024))
    q("s_add_u32 s%d, s%d, 4096" % (sX, sX))
    q("buffer_load_dwordx4 %s, v%d, s[8:11], s%d offen sc1" % (vr(XT), L16, sX))
    q("s_branch AT_SWITCH_RET")
    q.label("AT_SW_Q")
    so, vo = prod_set("wq")
    JQ(so + vo)
    JQ(h_loads(sT2, range(8)))
    q("s_branch AT_SWITCH_RET")

    q.label("AT_RARE")
    q("s_nop 7")
    for qt in range(2):
        D, Fc = TMP + qt, TMP + 2 + qt
        rowmax(q, qt, D)
        q("v_max_f32 v%d, 0, v%d" % (D, D))
        q("v_sub_f32 v%d, 0, v%d" % (Fc, D))
        q("v_exp_f32 v%d, v%d" % (Fc, Fc))
        for r in range(4):
            q("v_sub_f32 v%d, v%d, v%d" % (NEGM + 4 * qt + r, NEGM + 4 * qt + r, D))
        q("v_mul_f32 v%d, v%d, v%d" % (LS + qt, LS + qt, Fc))
        for kt in range(2):
            for r in range(4):
                s = Sreg(kt, qt) + r
                q("v_sub_f32 v%d, v%d, v%d" % (s, s, D))
    for dt in range(16):
        for qt in range(2):
            for r in range(4):
                q("v_accvgpr_read_b32 v%d, a%d" % (TMP + 4 + r, Oreg(dt, qt) + r))
            for r in range(4):
                q("v_mul_f32 v%d, v%d, v%d" % (TMP + 4 + r, TMP + 4 + r, TMP + 2 + qt))
            for r in range(4):
                q("v_accvgpr_write_b32 a%d, v%d" % (Oreg(dt, qt) + r, TMP + 4 + r))
    JQ(ex + ad)
    q("s_branch AT_RARE_RET")


def Gaps_slice(G, mf, a, b):
    out = []
    for k in range(a, b):
        out.append(mf[k])
        out.extend(G.ordered(k))
    return "\n".join(out)
```

```python
from fused_common import *

XB = [32, 96]
WB = [64, 128]
XN, FLG, XOFF, MOFF, HOFF, VALID, MV, ZV = 160, 176, 177, 178, 179, 212, 180, 213
sKB, sWHICH = 27, 26


def entry(p, st):
    p("s_cmp_ge_u32 s2, 256")
    p("s_cbranch_scc1 K_END")
    st(0)
    p("s_load_dwordx4 s[48:51], s[0:1], 0")
    p("s_load_dwordx2 s[%d:%d], s[0:1], 16" % (pWQ, pWQ + 1))
    p("s_load_dwordx4 s[40:43], s[0:1], 24")
    p("s_load_dwordx2 s[%d:%d], s[0:1], 40" % (pWO, pWO + 1))
    p("s_load_dwordx4 s[%d:%d], s[0:1], 56" % (pW1, pW1 + 3))
    p("s_load_dwordx4 s[36:39], s[0:1], 72")
    p("s_load_dwordx2 s[%d:%d], s[0:1], 88" % (pOUT, pOUT + 1))
    p("s_load_dwordx2 s[16:17], s[0:1], 96")
    p("s_load_dwordx2 s[%d:%d], s[0:1], 104" % (pWS, pWS + 1))
    p("v_and_b32 v1, 63, v0")
    p("v_lshrrev_b32 v30, 6, v0")
    p("v_readfirstlane_b32 s%d, v30" % sWAVE)
    p("s_and_b32 s3, s2, 7")
    p("s_lshr_b32 s%d, s2, 3" % sROLE)
    p("s_and_b32 s%d, s%d, 1" % (sHEAD, sROLE))
    p("s_lshl_b32 s3, s3, 1")
    p("s_add_u32 s%d, s%d, s3" % (sHEAD, sHEAD))
    p("s_lshr_b32 s%d, s%d, 1" % (sROLE, sROLE))
    p("s_and_b32 s%d, s%d, 7" % (sKB, sROLE))
    p("s_lshr_b32 s%d, s%d, 3" % (sWHICH, sROLE))


def gen(p, st):
    p("v_lshrrev_b32 v31, 5, v1")
    p("v_and_b32 v29, 31, v1")
    p("v_lshlrev_b32 v28, 3, v30")
    p("v_add_u32 v28, v28, v31")
    for j in range(4):
        p("v_add_u32 v24, %d, v28" % (2 * j))
        p("v_and_b32 v25, 3, v24")
        p("v_bfe_u32 v26, v24, 3, 1")
        p("v_lshl_add_u32 v25, v26, 2, v25")
        p("v_lshlrev_b32 v25, 1, v25")
        p("v_xor_b32 v25, v29, v25")
        p("v_lshlrev_b32 v25, 4, v25")
        p("v_lshl_add_u32 v%d, v24, 13, v25" % (2 + j))
    p("v_lshrrev_b32 v28, 3, v1")
    p("v_lshl_add_u32 v28, v30, 5, v28")
    p("v_and_b32 v26, 7, v1")
    for j in range(4):
        p("v_add_u32 v24, %d, v28" % (8 * j))
        p("v_bfe_u32 v25, v24, 1, 3")
        p("v_xor_b32 v25, v26, v25")
        p("v_lshlrev_b32 v25, 4, v25")
        p("v_lshl_add_u32 v%d, v24, 11, v25" % (6 + j))
    p("v_lshrrev_b32 v24, 2, v29")
    p("v_and_b32 v25, 3, v1")
    p("v_lshlrev_b32 v26, 7, v24")
    p("v_lshl_add_u32 v%d, v25, 4, v26" % MOFF)
    p("s_lshl_b32 s3, s2, 3")
    p("v_lshl_add_u32 v27, v30, 1, v31")
    p("v_add_u32 v27, s3, v27")
    p("v_mul_u32_u24 v26, 896, v27")
    p("v_lshrrev_b32 v28, 1, v%d" % MOFF)
    p("v_add_u32 v%d, v26, v28" % XOFF)
    p("v_lshrrev_b32 v26, 4, v27")
    p("v_mul_u32_u24 v26, 14336, v26")
    p("v_lshl_add_u32 v26, v24, 10, v26")
    p("v_lshl_add_u32 v26, v25, 8, v26")
    p("v_and_b32 v27, 15, v27")
    p("v_lshl_add_u32 v%d, v27, 4, v26" % HOFF)
    p("v_cmp_gt_u32 vcc, 28, v29")
    p("v_mov_b32 v26, 0x7f000000")
    p("v_mov_b32 v%d, 0" % ZV)
    p("v_cndmask_b32 v%d, v26, v%d, vcc" % (XOFF, XOFF))
    p("v_cndmask_b32 v%d, v26, v%d, vcc" % (HOFF, HOFF))
    p("v_cndmask_b32 v%d, 0, 1.0, vcc" % VALID)
    p("s_waitcnt lgkmcnt(0)")
    srd(p, 12, 50, 51, 2048 * 1024 * 2)
    p("s_mov_b32 s%d, s48" % pX)
    p("s_mov_b32 s%d, s49" % (pX + 1))
    p("s_cmp_eq_u32 s%d, 0" % sWHICH)
    p("s_cselect_b32 s40, s40, s42")
    p("s_cselect_b32 s41, s41, s43")
    srd(p, 4, 40, 41, 1024 * 4096 * 2)
    srd(p, 8, pWS, pWS + 1, WS_BYTES)
    srd(p, 44, pX, pX + 1, H_BYTES)
    for k, off in enumerate((0, 32, 448, 480)):
        p("buffer_load_dwordx2 %s, v%d, s[44:47], 0 offen offset:%d" % (vr(MV + 2 * k, 2), XOFF, off))
    p("s_sub_u32 s25, s%d, 12" % sROLE)
    p("s_lshl_b32 s25, s25, 4")
    p("s_add_u32 s25, s25, s%d" % sHEAD)
    p("s_cmp_lt_u32 s25, 42")
    p("s_cbranch_scc0 KV_NOMOD1")
    srd(p, 44, 36, 37, 896)
    p("v_lshrrev_b32 v24, 3, v0")
    p("v_mul_u32_u24 v25, 28, v24")
    p("buffer_load_dwordx4 v[96:99], v25, s[44:47], 0 offen")
    p("buffer_load_dwordx3 v[100:102], v25, s[44:47], 0 offen offset:16")
    srd(p, 44, 38, 39, 448 * 2688 * 2)
    p("v_mul_u32_u24 v25, %d, v24" % (14 * 5376))
    p("v_and_b32 v24, 7, v0")
    p("v_lshl_add_u32 v25, v24, 4, v25")
    p("s_lshl_b32 s3, s25, 7")
    for i in range(14):
        p("buffer_load_dwordx4 %s, v25, s[44:47], s3 offen" % vr(32 + 4 * i))
        p("s_add_u32 s3, s3, 5376")
    p.label("KV_NOMOD1")
    p("s_lshl_b32 s30, s%d, 12" % sWAVE)
    p("s_add_u32 s31, s30, 0x10000")
    p("s_lshl_b32 s28, s%d, 9" % sHEAD)
    p("s_lshl_b32 s29, s%d, 19" % sKB)

    def dma_w(slot, j):
        return ["s_add_u32 m0, s30, %d" % (slot * 16384 + j * 1024),
                "buffer_load_dwordx4 v%d, s[4:7], s28 offen lds" % (2 + j)]

    def dma_x(e, j):
        return ["s_add_u32 m0, s36, %d" % (e * 16384 + j * 1024),
                "buffer_load_dwordx4 v%d, s[12:15], s%d offen lds" % (6 + j, 35 if e else 29)]

    p("s_mov_b32 s36, s31")
    p("s_add_u32 s35, s29, 0x40000")
    for j in range(4):
        p("\n".join(dma_x(0, j)))
    for g in range(4):
        for j in range(4):
            p("\n".join(dma_w(g, j)))
        p("s_add_u32 s28, s28, 0x40000")
        if g % 2 == 0:
            for j in range(4):
                p("\n".join(dma_x(1, j)))
        else:
            p("s_add_u32 s36, s36, 0x8000")
            p("s_add_u32 s29, s29, 128")
            p("s_add_u32 s35, s35, 128")
            for j in range(4):
                p("\n".join(dma_x(0, j)))
    p("s_mov_b32 s34, 0x10000")
    p("s_mov_b32 s32, 0")
    p("s_mov_b32 s33, 8")
    p("v_lshrrev_b32 v28, 1, v30")
    p("v_and_b32 v27, 15, v1")
    p("v_lshl_add_u32 v28, v28, 7, v27")
    p("v_lshlrev_b32 v28, 7, v28")
    p("v_add_u32 v28, 0x10000, v28")
    p("v_bfe_u32 v24, v1, 1, 3")
    p("v_lshrrev_b32 v26, 4, v1")
    for ks in range(2):
        p("v_add_u32 v25, %d, v26" % (4 * ks))
        p("v_xor_b32 v25, v25, v24")
        p("v_lshl_add_u32 v%d, v25, 4, v28" % (10 + ks))
    p("v_bfe_u32 v28, v1, 2, 2")
    p("v_lshl_add_u32 v24, v26, 3, v28")
    p("v_lshlrev_b32 v24, 9, v24")
    p("v_and_b32 v25, 1, v30")
    p("v_lshl_add_u32 v24, v25, 8, v24")
    p("v_and_b32 v25, 3, v1")
    p("v_lshl_add_u32 v24, v25, 3, v24")
    p("v_bfe_u32 v25, v1, 2, 3")
    p("v_lshl_add_u32 v24, v25, 5, v24")
    for nt in range(8):
        p("v_xor_b32 v%d, %d, v24" % (16 + nt, nt * 32))
    for i in range(4):
        p("v_mov_b32 v%d, 0" % (216 + i))
    for i in range(16):
        p("v_mfma_f32_32x32x16_bf16 a[%d:%d], v[216:219], v[216:219], 0" % (16 * i, 16 * i + 15))
    srd(p, 44, 16, 17, 256)
    p("s_waitcnt vmcnt(36)")
    unpack(p, XN, MV, 8)
    p("v_add_f32 v24, v%d, v%d" % (XN, XN + 1))
    for i in range(2, 16):
        p("v_add_f32 v24, v24, v%d" % (XN + i))
    xsum_row32(p, 24, 25)
    p("v_mul_f32 v24, %s, v24" % f32bits(1.0 / 448))
    p("v_mov_b32 v26, 0")
    for i in range(16):
        p("v_sub_f32 v%d, v%d, v24" % (XN + i, XN + i))
        p("v_fmac_f32 v26, v%d, v%d" % (XN + i, XN + i))
    p("v_mul_f32 v26, v26, v%d" % VALID)
    xsum_row32(p, 26, 25)
    p("v_mov_b32 v27, %s" % f32bits(1e-5))
    p("v_fmac_f32 v27, %s, v26" % f32bits(1.0 / 448))
    p("v_rsq_f32 v27, v27")
    for i in range(16):
        p("v_mul_f32 v%d, v%d, v27" % (XN + i, XN + i))
    p("s_cmp_lt_u32 s25, 42")
    p("s_cbranch_scc0 KV_NOMOD2")
    unpack(p, 104, 96, 7)
    for i in range(14):
        v = 104 + i
        p("v_mul_f32 v24, %s, v%d" % (f32bits(-math.log2(math.e)), v))
        p("v_exp_f32 v24, v24")
        p("v_add_f32 v24, 1.0, v24")
        p("v_rcp_f32 v24, v24")
        p("v_mul_f32 v%d, v%d, v24" % (v, v))
        round_bf16(p, v)
    for i in range(14):
        for d in range(4):
            w = 32 + 4 * i + d
            op = "v_mul_f32" if i == 0 else "v_fmac_f32"
            p("v_lshlrev_b32 v24, 16, v%d" % w)
            p("v_and_b32 v25, 0xffff0000, v%d" % w)
            p("%s v%d, v%d, v24" % (op, 120 + 2 * d, 104 + i))
            p("%s v%d, v%d, v25" % (op, 121 + 2 * d, 104 + i))
    p("v_lshlrev_b32 v24, 5, v0")
    p("v_add_u32 v24, 0x24000, v24")
    p("ds_write_b128 v24, v[120:123]")
    p("ds_write_b128 v24, v[124:127] offset:16")
    p("s_waitcnt lgkmcnt(0)")
    p("s_barrier")
    p("s_cmp_lg_u32 s%d, 0" % sWAVE)
    p("s_cbranch_scc1 KV_NOMOD2")
    p("v_lshlrev_b32 v25, 2, v1")
    p("v_add_u32 v24, 0x24000, v25")
    for i in range(32):
        p("ds_read_b32 v%d, v24 offset:%d" % (32 + i, 256 * i))
    p("s_waitcnt lgkmcnt(0)")
    for i in range(1, 32):
        p("v_add_f32 v32, v32, v%d" % (32 + i))
    round_bf16(p, 32)
    p("s_lshl_b32 s3, s25, 8")
    p("buffer_store_dword v32, v25, s[8:11], s3 offen offset:%d sc1" % WS_MOD)
    p("s_cmp_lg_u32 s25, 0")
    p("s_cbranch_scc1 KV_NOZERO")
    p("v_lshlrev_b32 v25, 4, v1")
    p("s_mov_b32 s3, 0x%x" % WS_FLAG)
    for i in range(11):
        p("buffer_store_dwordx4 v[216:219], v25, s[8:11], s3 offen sc1")
        p("s_add_u32 s3, s3, 1024")
    p.label("KV_NOZERO")
    p("s_waitcnt vmcnt(0)")
    p("s_mov_b32 s3, 0")
    signal(p, 3, 24, 25, "KV_SIGMOD", srd_=44)
    p.label("KV_NOMOD2")

    def reads(buf, xks, wslot):
        out = []
        for i in range(8):
            out.append("ds_read_b128 v[%d:%d], v14 offset:%d" % (XB[buf] + 4 * i, XB[buf] + 4 * i + 3, i * 2048))
            for h in range(2):
                out.append("ds_read_b64_tr_b16 v[%d:%d], v%d offset:%d" % (
                    WB[buf] + 4 * i + 2 * h, WB[buf] + 4 * i + 2 * h + 1, 16 + i, wslot * 16384 + h * 2048))
        return out

    st(1)
    p("s_waitcnt vmcnt(24)")
    p("s_barrier")
    p("v_add_u32 v14, s32, v10")
    p("\n".join(reads(0, 0, 0)))
    p("s_cmp_eq_u32 s%d, 0" % sWHICH)
    p("s_cbranch_scc0 KV_LOOP_V")

    def mfmas(buf, isk):
        out = []
        for i in range(8):
            for j in range(8):
                n = (i * 8 + j) if isk else (j * 8 + i)
                acc = ar(n * 4)
                x = vr(XB[buf] + 4 * i)
                w = vr(WB[buf] + 4 * j)
                out.append("%s %s, %s, %s, %s" % ((MF, acc, w, x, acc) if isk else (MF, acc, x, w, acc)))
        return out

    def loop(isk, name):
        p(".p2align 6")
        p.label(name)
        for t in range(4):
            p("s_waitcnt vmcnt(16) lgkmcnt(0)")
            p("s_barrier")
            G = Gaps(64)
            if t & 1:
                G.at(0, "s_add_u32 s32, s32, 0x8000", "s_cmp_eq_u32 s32, 0x18000", "s_cselect_b32 s32, 0, s32")
                G.at(3, "s_add_u32 s34, s34, 0x8000", "s_cmp_eq_u32 s34, 0x18000", "s_cselect_b32 s34, 0, s34")
                G.at(5, "s_add_u32 s36, s31, s34", "s_add_u32 s29, s29, 128", "s_add_u32 s35, s35, 128")
            G.at(1, "v_add_u32 v14, s32, v%d" % (10 + ((t + 1) & 1)))
            G.put(range(2, 50, 2), reads((t + 1) & 1, (t + 1) & 1, (t + 1) % 4))
            e = 0 if t & 1 else 1
            d = [dma_w(t, j) for j in range(4)] + [dma_x(e, j) for j in range(4)]
            for k in range(8):
                G.at(8 + 6 * k, d[k][0])
                G.at(9 + 6 * k, d[k][1])
            G.at(61, "s_add_u32 s28, s28, 0x40000")
            if t == 3:
                G.at(62, "s_sub_u32 s33, s33, 1")
            p(G.weave(mfmas(t & 1, isk), "kv" if isk and t == 1 else None))
        p("s_branch KV_STUB")

    loop(True, "KV_LOOP_K")
    loop(False, "KV_LOOP_V")
    p.label("KV_STUB")
    p("s_cmp_eq_u32 s33, 6")
    p("s_cbranch_scc0 KV_ST5")
    p("buffer_load_dword v%d, v%d, s[44:47], 0 offen sc1" % (FLG, ZV))
    p("s_branch KV_STRET")
    p.label("KV_ST5")
    p("s_cmp_eq_u32 s33, 5")
    p("s_cbranch_scc0 KV_ST4")
    p("s_mov_b32 s3, 0")
    poll(p, 3, 42, FLG, ZV, 37, 38, "KV_POLLMOD", srd_=44, first_loaded=True)
    for v, idx in ((0, 1), (16, 0)):
        for k, off in enumerate((0, 64, 896, 960)):
            p("buffer_load_dwordx4 %s, v%d, s[8:11], 0 offen offset:%d sc1" % (vr(MV + v + 4 * k), MOFF, WS_MOD + idx * 1792 + off))
    p("s_branch KV_STRET")
    p.label("KV_ST4")
    p("s_cmp_eq_u32 s33, 4")
    p("s_cbranch_scc0 KV_ST3")
    for i in range(16):
        p("v_add_f32 v%d, 1.0, v%d" % (MV + i, MV + i))
        round_bf16(p, MV + i)
        p("v_fma_f32 v%d, v%d, v%d, v%d" % (XN + i, XN + i, MV + i, MV + 16 + i))
        p("v_mul_f32 v%d, %s, v%d" % (XN + i, f32bits(QSCALE), XN + i))
    for d in range(8):
        p("v_cvt_pk_bf16_f32 v%d, v%d, v%d" % (MV + d, XN + 2 * d, XN + 2 * d + 1))
    p("s_mov_b32 s3, 0x%x" % WS_H)
    p("buffer_store_dwordx4 %s, v%d, s[8:11], s3 offen sc1" % (vr(MV), HOFF))
    p("s_mov_b32 s3, 0x%x" % (WS_H + 7168))
    p("buffer_store_dwordx4 %s, v%d, s[8:11], s3 offen sc1" % (vr(MV + 4), HOFF))
    p("s_branch KV_STRET")
    p.label("KV_ST3")
    p("s_cmp_eq_u32 s33, 3")
    p("s_cbranch_scc0 KV_ST1")
    p("s_lshr_b32 s37, s2, 4")
    flag_off(p, 3, FL_H, 37)
    signal(p, 3, 214, 215, "KV_SIGH")
    p("s_branch KV_STRET")
    p.label("KV_ST1")
    p("s_cmp_eq_u32 s33, 0")
    p("s_cbranch_scc1 KV_DONE")
    p("s_cmp_eq_u32 s33, 1")
    p("s_cselect_b32 s6, 0, s6")
    p("s_cselect_b32 s14, 0, s14")
    p.label("KV_STRET")
    p("s_cmp_eq_u32 s%d, 0" % sWHICH)
    p("s_cbranch_scc1 KV_LOOP_K")
    p("s_branch KV_LOOP_V")
    p.label("KV_DONE")
    p("s_waitcnt vmcnt(0) lgkmcnt(0)")
    p("s_barrier")
    st(2)


def epilogue(p, L16, T0):
    p("s_lshl_b32 s3, s%d, 6" % sHEAD)
    p("s_and_b32 s16, s%d, 7" % sROLE)
    p("s_lshl_b32 s16, s16, 3")
    p("s_add_u32 s3, s3, s16")
    p("s_lshr_b32 s16, s%d, 1" % sWAVE)
    p("s_lshl_b32 s16, s16, 2")
    p("s_add_u32 s3, s3, s16")
    p("s_lshl_b32 s3, s3, 15")
    p("s_add_u32 s3, s3, 0x%x" % WS_KV)
    p("s_and_b32 s16, s%d, 1" % sWAVE)
    p("s_lshl_b32 s16, s16, 12")
    p("s_add_u32 s3, s3, s16")
    p("s_add_u32 s17, s3, s16")
    p("s_add_u32 s17, s17, 16384")
    p("s_cmp_lt_u32 s%d, 8" % sROLE)
    p("s_cselect_b32 s3, s3, s17")
    p("s_mov_b32 s16, 32768")
    p("s_cselect_b32 s46, 1024, s16")
    p("s_mov_b32 s16, %d" % (1024 - 3 * 32768))
    p("s_cselect_b32 s47, %d, s16" % (8192 - 3 * 1024))
    p("s_cselect_b32 s17, %d, s16" % (32768 - 8192 - 3 * 1024))
    n = 0
    for o in range(8):
        for u in range(4):
            T = T0 + (n % 5) * 12
            n += 1
            a0 = (o * 8 + 2 * u) * 4
            for r in range(8):
                p("v_accvgpr_read_b32 v%d, a%d" % (T + r, a0 + r))
            for r in range(4):
                p("v_cvt_pk_bf16_f32 v%d, v%d, v%d" % (T + 8 + r, T + 2 * r, T + 2 * r + 1))
            p("buffer_store_dwordx4 v[%d:%d], v%d, s[8:11], s3 offen sc1" % (T + 8, T + 11, L16))
            p("s_add_u32 s3, s3, s%d" % (46 if u < 3 else (47 if (o & 1) == 0 else 17)))
```

```python
from fused_common import *
import phase_attn as A

L16, ZER = A.L16, A.ZER
sRR, sRW = A.sRR, A.sRW


def gen(p, st):
    J = lambda l: p("\n".join(l))
    R_, E_, G_, FO, XO, MO = 16, 17, 18, 19, 20, 21
    flag_off(p, 30, FL_P, A.sT)
    p("v_and_b32 v%d, 7, v1" % R_)
    p("v_lshrrev_b32 v%d, 5, v1" % E_)
    p("v_bfe_u32 v%d, v1, 3, 2" % G_)
    p("s_lshl_b32 s26, s%d, 4" % sHEAD)
    p("s_add_u32 s26, s26, s%d" % sROLE)
    p("s_lshr_b32 s3, s26, 1")
    p("s_mul_i32 s3, s3, 14336")
    p("s_and_b32 s27, s26, 1")
    p("s_lshl_b32 s27, s27, 7")
    p("s_add_u32 s3, s3, s27")
    p("s_lshl_b32 s27, s%d, 11" % sWAVE)
    p("s_add_u32 s3, s3, s27")
    p("v_lshlrev_b32 v%d, 10, v%d" % (FO, E_))
    p("v_lshl_add_u32 v%d, v%d, 8, v%d" % (FO, G_, FO))
    p("v_lshl_add_u32 v%d, v%d, 4, v%d" % (FO, R_, FO))
    p("v_add_u32 v%d, s3, v%d" % (FO, FO))
    p("v_lshlrev_b32 v%d, 7, v%d" % (MO, E_))
    p("v_lshl_add_u32 v%d, v%d, 4, v%d" % (MO, G_, MO))
    p("s_lshl_b32 s3, s%d, 8" % sWAVE)
    p("v_add_u32 v%d, s3, v%d" % (MO, MO))
    p("s_lshl_b32 s3, s26, 3")
    p("v_add_u32 v%d, s3, v%d" % (XO, R_))
    p("v_mul_u32_u24 v%d, 896, v%d" % (XO, XO))
    p("v_lshrrev_b32 v22, 1, v%d" % MO)
    p("v_add_u32 v%d, v%d, v22" % (XO, XO))
    p("s_cmp_eq_u32 s%d, 3" % sWAVE)
    p("s_cselect_b32 s28, 0x70000000, 0")
    p("s_cselect_b32 s29, 0, 1.0")
    p("v_add_u32 v23, s28, v%d" % FO)
    p("v_add_u32 v23, 8192, v23")
    p("v_add_u32 v24, s28, v%d" % XO)
    srd(p, 12, pX, pX + 1, H_BYTES)
    flag_off(p, 31, FL_P, sHEAD)
    p("s_waitcnt vmcnt(0)")
    p("s_barrier")
    signal(p, 30, 26, 27, "T_SIGP")
    st(8)
    XR, GA, SC, SH, X, L = 28, 48, 64, 80, 96, 112
    for k, (vo, off) in enumerate(((XO, 0), (XO, 32), (24, 512), (24, 544))):
        p("buffer_load_dwordx2 %s, v%d, s[12:15], 0 offen offset:%d" % (vr(XR + 2 * k, 2), vo, off))
    for base, idx in ((GA, 2), (SC, 4), (SH, 3)):
        p("s_mov_b32 s3, %d" % (WS_MOD + idx * 1792))
        for k, off in enumerate((0, 64, 1024, 1088)):
            p("buffer_load_dwordx4 %s, v%d, s[8:11], s3 offen offset:%d sc1" % (vr(base + 4 * k), MO, off))
    poll(p, 31, 16, 26, ZER, 32, 33, "T_POLLP")
    st(9)
    p("s_mov_b32 s3, 0x%x" % WS_PART)
    for h in range(16):
        p("buffer_load_dwordx4 %s, v%d, s[8:11], s3 offen sc1" % (vr(L + 8 * h), FO))
        p("buffer_load_dwordx4 %s, v23, s[8:11], s3 offen sc1" % vr(L + 8 * h + 4))
        p("s_add_u32 s3, s3, 0x%x" % H_BYTES)
    for j in range(4):
        J(A.dma(j))
    p("s_mov_b32 s34, 0x3f80")
    p("s_mov_b32 s35, 0x3f800000")
    for i in range(16):
        p("v_mov_b32 v%d, 0" % (X + i))
        p("v_add_f32 v%d, 1.0, v%d" % (SC + i, SC + i))
        round_bf16(p, SC + i)
    for h in range(16):
        if h % 2 == 0:
            p("s_waitcnt vmcnt(%d)" % (4 + 28 - 2 * h))
        for d in range(8):
            p("v_dot2c_f32_bf16 v%d, s34, v%d" % (X + 2 * d, L + 8 * h + d))
            p("v_dot2c_f32_bf16 v%d, s35, v%d" % (X + 2 * d + 1, L + 8 * h + d))
    st(10)
    unpack(p, L, XR, 8)
    p("s_nop 2")
    for i in range(16):
        round_bf16(p, X + i)
        p("v_mul_f32 v%d, v%d, v%d" % (X + i, X + i, GA + i))
        round_bf16(p, X + i)
        p("v_add_f32 v%d, v%d, v%d" % (X + i, X + i, L + i))
    for d in range(8):
        p("v_cvt_pk_bf16_f32 v%d, v%d, v%d" % (XR + d, X + 2 * d, X + 2 * d + 1))
    p("s_mov_b32 s3, 0x%x" % WS_X1)
    p("buffer_store_dwordx4 %s, v%d, s[8:11], s3 offen sc1" % (vr(XR), FO))
    p("buffer_store_dwordx4 %s, v23, s[8:11], s3 offen sc1" % vr(XR + 4))
    unpack(p, X, XR, 8)
    p("s_sub_u32 s3, s%d, s%d" % (sRW, A.sW1K))
    p("s_add_u32 s3, s3, 16384")
    p("v_lshl_add_u32 v25, v%d, 4, s3" % R_)
    p("s_lshl_b32 s3, s%d, 2" % sWAVE)
    p("v_add_u32 v26, s3, v25")
    p("v_add_f32 v36, v%d, v%d" % (X, X + 1))
    for i in range(2, 16):
        p("v_add_f32 v36, v36, v%d" % (X + i))
    xsum_345(p, 36, 37)
    p("ds_write_b32 v26, v36")
    p("s_waitcnt lgkmcnt(0)")
    p("s_barrier")
    p("ds_read_b128 v[40:43], v25")
    p("s_waitcnt lgkmcnt(0)")
    p("v_add_f32 v40, v40, v41")
    p("v_add_f32 v42, v42, v43")
    p("v_add_f32 v40, v40, v42")
    p("v_mul_f32 v40, %s, v40" % f32bits(1.0 / 448))
    p("v_mov_b32 v36, 0")
    p("v_mov_b32 v38, 0")
    for i in range(16):
        p("v_sub_f32 v%d, v%d, v40" % (X + i, X + i))
        p("v_fmac_f32 v%d, v%d, v%d" % (36 if i < 8 else 38, X + i, X + i))
    p("v_fmac_f32 v36, s29, v38")
    xsum_345(p, 36, 37)
    p("ds_write_b32 v26, v36 offset:128")
    p("s_waitcnt lgkmcnt(0)")
    p("s_barrier")
    p("ds_read_b128 v[40:43], v25 offset:128")
    p("s_waitcnt lgkmcnt(0)")
    p("v_add_f32 v40, v40, v41")
    p("v_add_f32 v42, v42, v43")
    p("v_add_f32 v40, v40, v42")
    p("v_mov_b32 v41, %s" % f32bits(1e-5))
    p("v_fmac_f32 v41, %s, v40" % f32bits(1.0 / 448))
    p("v_rsq_f32 v41, v41")
    for i in range(16):
        p("v_mul_f32 v%d, v%d, v41" % (X + i, X + i))
        p("v_fma_f32 v%d, v%d, v%d, v%d" % (X + i, X + i, SC + i, SH + i))
    for d in range(8):
        p("v_cvt_pk_bf16_f32 v%d, v%d, v%d" % (L + d, X + 2 * d, X + 2 * d + 1))
    p("s_mov_b32 s3, 0x%x" % WS_H2)
    p("buffer_store_dwordx4 %s, v%d, s[8:11], s3 offen sc1" % (vr(L), FO))
    p("buffer_store_dwordx4 %s, v23, s[8:11], s3 offen sc1" % vr(L + 4))
    flag_off(p, 30, FL_H2, sHEAD)
    B1, CUR = 16, 24
    p("v_lshrrev_b32 v36, 2, v1")
    p("v_lshlrev_b32 v37, 8, v36")
    p("v_and_b32 v38, 3, v1")
    p("v_lshl_add_u32 v37, v38, 3, v37")
    p("v_and_b32 v38, 7, v36")
    p("v_lshl_add_u32 v37, v38, 5, v37")
    p("s_waitcnt vmcnt(0)")
    p("s_barrier")
    signal(p, 30, 36, 38, "T_SIGH2")
    p("s_cmp_ge_u32 s%d, 14" % sROLE)
    p("s_cbranch_scc1 K_FIN")
    for x in range(8):
        p("v_xor_b32 v%d, %d, v37" % (B1 + x, 32 * x))
    st(11)

    H, ACC = 48, 160

    def cur1():
        return ["v_add_u32 v%d, s%d, v%d" % (CUR + x, sRR, B1 + x) for x in range(8)]

    def reads1(c):
        o = []
        for k in range(2):
            ks = 2 * c + k
            for ft in range(8):
                for i in range(2):
                    o.append("ds_read_b64_tr_b16 %s, v%d offset:%d" % (
                        ar((c & 1) * 64 + (k * 8 + ft) * 4 + 2 * i, 2), CUR + ft, (ks & 3) * 8192 + i * 4096))
        return o

    J(cur1() + reads1(0))
    p("s_lshl_b32 s22, s%d, 3" % sHEAD)
    p("s_lshl_b32 s3, s%d, 1" % sWAVE)
    p("s_add_u32 s22, s22, s3")
    p("s_mul_i32 s26, s22, 14336")
    p("s_add_u32 s26, s26, 0x%x" % WS_H2)
    p("s_add_u32 s27, s26, 14336")
    poll(p, 30, 16, 36, ZER, 32, 33, "T_POLLH2")
    for ks in range(14):
        for qt in range(2):
            if ks % 4 == 0 and ks:
                p("s_add_u32 s%d, s%d, 4096" % (26 + qt, 26 + qt))
            p("buffer_load_dwordx4 %s, v%d, s[8:11], s%d offen offset:%d sc1" % (vr(H + (ks * 2 + qt) * 4), L16, 26 + qt, (ks % 4) * 1024))
    st(12)
    for c in range(7):
        mf = []
        for k in range(2):
            ks = 2 * c + k
            for ft in range(8):
                for qt in range(2):
                    acc = vr(ACC + (qt * 8 + ft) * 4)
                    mf.append("%s %s, %s, %s, %s" % (MF, acc, ar((c & 1) * 64 + (k * 8 + ft) * 4), vr(H + (ks * 2 + qt) * 4), acc if ks else "0"))
        G = Gaps(32)
        p("s_waitcnt vmcnt(%d) lgkmcnt(%d)" % (24 - 4 * c, 0 if c == 0 else 8))
        if c < 6:
            if c & 1:
                J(A.RING_ADV)
                cs = cur1()
                G.at(0, cs[0], cs[1])
                for x in range(2, 8):
                    G.at(x - 1, cs[x])
                A.spread_reads(G, reads1(c + 1), list(range(1, 32)))
            else:
                A.spread_reads(G, reads1(c + 1), list(range(32)))
        G.at(12, "s_waitcnt lgkmcnt(%d)" % (8 if c < 6 else 0))
        p(G.weave(mf))
    p("s_barrier")
    p("v_lshrrev_b32 v36, 3, v1")
    p("v_bfe_u32 v37, v36, 1, 2")
    p("v_lshlrev_b32 v37, 1, v37")
    p("v_and_b32 v38, 7, v1")
    p("v_xor_b32 v37, v37, v38")
    p("v_lshlrev_b32 v37, 4, v37")
    p("v_mul_u32_u24 v36, 896, v36")
    p("v_add_u32 v3, v36, v37")
    srd(p, 4, pW2, pW2 + 1, 448 * 1792 * 2)
    p("s_lshr_b32 s28, s%d, 1" % sROLE)
    p("s_mul_i32 s24, s%d, 40960" % sWAVE)
    p("s_mul_i32 s21, s%d, %d" % (sWAVE, 14 * 32 * 896))
    p("s_lshl_b32 s3, s28, 7")
    p("s_add_u32 s21, s21, s3")

    def w2(k):
        o = []
        for j in range(4):
            o.append("s_add_u32 m0, s24, %d" % ((k % 10) * 4096 + j * 1024))
            o.append("s_add_u32 s29, s21, %d" % ((k * 32 + j * 8) * 896))
            o.append("buffer_load_dwordx4 v3, s[4:7], s29 offen lds")
        return o

    p("s_mul_i32 s26, s22, 57344")
    p("s_lshl_b32 s3, s%d, 12" % sROLE)
    p("s_add_u32 s26, s26, s3")
    p("s_add_u32 s26, s26, 0x%x" % WS_ACT)
    p("s_add_u32 s27, s26, 57344")
    p("s_mov_b32 s31, %s" % f32bits(-math.log2(math.e)))
    J(w2(0) + w2(1))
    for qt in range(2):
        for u in range(4):
            Aa = ACC + (qt * 8 + 2 * u) * 4
            T = 48 + ((qt * 4 + u) % 2) * 16
            for k in range(8):
                p("v_mul_f32 v%d, s31, v%d" % (T + k, Aa + k))
            for k in range(8):
                p("v_exp_f32 v%d, v%d" % (T + k, T + k))
            for k in range(8):
                p("v_add_f32 v%d, 1.0, v%d" % (T + k, T + k))
            for k in range(8):
                p("v_rcp_f32 v%d, v%d" % (T + k, T + k))
            for k in range(8):
                p("v_mul_f32 v%d, v%d, v%d" % (T + k, T + k, Aa + k))
            for d in range(4):
                p("v_cvt_pk_bf16_f32 v%d, v%d, v%d" % (T + 8 + d, T + 2 * d, T + 2 * d + 1))
            p("buffer_store_dwordx4 %s, v%d, s[8:11], s%d offen offset:%d sc1" % (vr(T + 8), L16, 26 + qt, u * 1024))
            J(w2(2 + qt * 4 + u))
    flag_off(p, 30, FL_A, sHEAD)
    p("v_lshrrev_b32 v36, 2, v1")
    p("v_lshlrev_b32 v37, 7, v36")
    p("v_and_b32 v38, 3, v1")
    p("v_lshl_add_u32 v37, v38, 3, v37")
    p("v_bfe_u32 v38, v36, 1, 2")
    p("v_lshl_add_u32 v37, v38, 5, v37")
    for x in range(4):
        p("v_xor_b32 v%d, %d, v37" % (4 + x, 32 * x))
        p("v_add_u32 v%d, s24, v%d" % (4 + x, 4 + x))
    p("v_add_u32 v8, s24, v%d" % L16)
    p("s_waitcnt vmcnt(4)")
    p("s_barrier")
    signal(p, 30, 36, 38, "T_SIGA")
    st(13)

    WF, ACC = 16, 64
    p("s_lshl_b32 s22, s%d, 3" % sHEAD)
    p("s_and_b32 s3, s%d, 1" % sROLE)
    p("s_lshl_b32 s3, s3, 2")
    p("s_add_u32 s22, s22, s3")
    p("s_mul_i32 s25, s22, 57344")
    p("s_mul_i32 s3, s%d, 14336" % sWAVE)
    p("s_add_u32 s25, s25, s3")
    p("s_add_u32 s25, s25, 0x%x" % WS_ACT)
    p("s_add_u32 s22, s22, s%d" % sWAVE)
    p("s_mul_i32 s26, s22, 14336")
    p("s_lshl_b32 s3, s28, 11")
    p("s_add_u32 s26, s26, s3")
    p("s_add_u32 s26, s26, 0x%x" % WS_X1)
    p("buffer_load_dwordx4 v[128:131], v%d, s[8:11], s26 offen sc1" % L16)
    p("buffer_load_dwordx4 v[132:135], v%d, s[8:11], s26 offen offset:1024 sc1" % L16)
    p("v_lshrrev_b32 v11, 4, v1")
    p("v_lshlrev_b32 v11, 4, v11")
    p("s_lshl_b32 s3, s28, 8")
    p("s_add_u32 s26, s3, %d" % (WS_MOD + 5 * 448 * 4))
    for mt in range(4):
        p("buffer_load_dwordx4 %s, v11, s[8:11], s26 offen offset:%d sc1" % (vr(136 + 4 * mt), 64 * mt))

    def reads2(k):
        o = []
        for mt in range(4):
            for i in range(2):
                o.append("ds_read_b64_tr_b16 %s, v%d offset:%d" % (vr(160 + (k % 5) * 16 + mt * 4 + 2 * i, 2), 4 + mt, (k % 10) * 4096 + i * 2048))
        return o

    p("s_waitcnt vmcnt(6)")
    for k in range(4):
        J(reads2(k))
    p("s_waitcnt lgkmcnt(0)")
    for k in range(10, 14):
        J(w2(k))
    poll(p, 30, 14, 36, ZER, 32, 33, "T_POLLA")
    st(14)
    for k in range(14):
        for qt in range(4):
            off = qt * 57344 + k * 1024
            p("s_add_u32 s26, s25, %d" % (off & ~0xfff))
            p("buffer_load_dwordx4 %s, v%d, s[8:11], s26 offen offset:%d sc1" % (ar((k * 4 + qt) * 4), L16, off & 0xfff))
    for k in range(14):
        mf = []
        for mt in range(4):
            for qt in range(4):
                acc = vr(ACC + (qt * 4 + mt) * 4)
                mf.append("%s %s, %s, %s, %s" % (MF, acc, vr(160 + (k % 5) * 16 + mt * 4), ar((k * 4 + qt) * 4), acc if k else "0"))
        G = Gaps(16)
        p("s_waitcnt vmcnt(%d) lgkmcnt(%d)" % (52 - 4 * k, min(15, 8 * min(3, 13 - k))))
        if k + 4 < 14:
            G.put(range(0, 16, 2), reads2(k + 4))
        p(G.weave(mf))
    for t in range(16):
        p("ds_write_b128 v8, %s offset:%d" % (vr(ACC + 4 * t), 1024 * t))
    srd(p, 12, pOUT, pOUT + 1, H_BYTES)
    p("s_lshl_b32 s3, s%d, 12" % sWAVE)
    p("v_add_u32 v9, s3, v%d" % L16)
    p("v_add_u32 v10, 0x14000, v9")
    p("v_and_b32 v12, 15, v1")
    p("s_lshl_b32 s3, s22, 4")
    p("v_add_u32 v12, s3, v12")
    p("v_mul_u32_u24 v12, 896, v12")
    p("v_lshrrev_b32 v11, 1, v11")
    p("v_add_u32 v12, v12, v11")
    p("s_lshl_b32 s27, s28, 7")
    p("s_waitcnt lgkmcnt(0)")
    p("s_barrier")
    for w in range(4):
        for mt in range(4):
            p("ds_read_b128 %s, v%d offset:%d" % (vr(ACC + (w * 4 + mt) * 4), 9 + (w >> 1), (w & 1) * 40960 + mt * 1024))
    unpack(p, 160, 128, 8)
    p("s_waitcnt lgkmcnt(0)")
    for i in range(16):
        a = ACC + i
        p("v_add_f32 v%d, v%d, v%d" % (a, a, a + 16))
        p("v_add_f32 v%d, v%d, v%d" % (a + 32, a + 32, a + 48))
        p("v_add_f32 v%d, v%d, v%d" % (a, a, a + 32))
        round_bf16(p, a)
        p("v_mul_f32 v%d, v%d, v%d" % (a, a, 136 + i))
        round_bf16(p, a)
        p("v_add_f32 v%d, v%d, v%d" % (a, a, 160 + i))
    for mt in range(4):
        for d in range(2):
            p("v_cvt_pk_bf16_f32 v%d, v%d, v%d" % (16 + 2 * mt + d, ACC + 4 * mt + 2 * d, ACC + 4 * mt + 2 * d + 1))
        p("buffer_store_dwordx2 %s, v12, s[12:15], s27 offen offset:%d" % (vr(16 + 2 * mt, 2), 32 * mt))
    st(15)
```

```python
import sys
from asmlib import *
from fused_common import *
import phase_kv, phase_attn, phase_tail

NAME = "adaLN_cond__compressed_kv_cla__dense_activation_silu__prompt"
HEAD = open("cdna_kernels/%s.s.ref" % NAME).read().split("; Override launch")[0]

def opt(name, default):
    for a in sys.argv:
        if a.startswith(name + "="):
            return type(default)(a[len(name) + 1:])
    return default

def gen_all(stamp, thresh):
    p = Prog()
    stubs = Prog()
    st = Stamper(p, stamp, 0)
    phase_kv.entry(p, st)
    phase_kv.gen(p, st)
    phase_attn.gen(p, st, stubs, thresh)
    phase_tail.gen(p, st)
    p.label("K_FIN")
    st.dump(sWAVE)
    p.label("K_END")
    p("s_endpgm")
    p.ins.extend(stubs.ins)
    return p

if __name__ == "__main__":
    p = gen_all("dbg" if "dbg" in sys.argv else "stamp" in sys.argv, opt("thresh", 2.0 ** 30))
    kn = NAME + "_kernel"
    c, d = kernel_text(kn, p)
    if "list" in sys.argv:
        launch = "; @launch kernel=%s grid=(256,1,1) block=(256,1,1) lds=163840\n" % kn
    else:
        launch = "; @launch grid=(256,1,1) block=(256,1,1) lds=163840\n"
    open(sys.argv[1], "w").write(HEAD + launch + '.amdgcn_target "amdgcn-amd-amdhsa--gfx950"\n' + c + d)
```

```python
from asmlib import *
from layout import *

MF = "v_mfma_f32_16x16x32_bf16"
WS_BYTES = 268435456


def srd(p, d, lo, hi, size):
    p("s_mov_b32 s%d, s%d" % (d, lo))
    p("s_and_b32 s%d, s%d, 0xffff" % (d + 1, hi))
    p("s_mov_b32 s%d, 0x%x" % (d + 2, size))
    p("s_mov_b32 s%d, 0x20000" % (d + 3))


def vr(b, n=4, k="v"):
    return "%s[%d:%d]" % (k, b, b + n - 1)


def ar(b, n=4):
    return vr(b, n, "a")


class Stamper:
    def __init__(self, p, on, base=0):
        self.p, self.on, self.base = p, on, base

    def __call__(self, i):
        if self.on:
            self.p('s_memtime s[98:99]')
            self.p('s_memrealtime s[100:101]')
            self.p('s_waitcnt lgkmcnt(0)')
            self.p('s_mov_b32 s%d, s98' % (64 + i))
            self.p('s_mov_b32 s%d, s100' % (80 + i))

    def dump(self, wave_sgpr, nw=4):
        if not self.on:
            return
        p = self.p
        if self.on == "dbg":
            p("s_cmp_lg_u32 s2, 100")
            p("s_cbranch_scc1 K_END")
            p("s_cmp_lg_u32 s%d, 0" % wave_sgpr)
            p("s_cbranch_scc1 K_END")
            p("s_load_dwordx2 s[96:97], s[0:1], 96")
            p("s_waitcnt lgkmcnt(0)")
            srd(p, 4, 96, 97, 256)
            p("v_mov_b32 v3, 0")
            for i in range(1, 16):
                p("s_sub_u32 s3, s%d, s80" % (80 + i))
                p("v_mov_b32 v4, s3")
                p("buffer_store_dword v4, v3, s[4:7], 0 offen offset:%d" % (4 * i))
            return
        p("s_load_dwordx2 s[96:97], s[0:1], 104")
        p("s_waitcnt lgkmcnt(0)")
        p("s_add_u32 s96, s96, 0x%x" % (WS_STAMP + self.base * 0x20000))
        p("s_addc_u32 s97, s97, 0")
        srd(p, 4, 96, 97, 1024 * 128)
        p("s_mul_i32 s3, s2, %d" % nw)
        p("s_add_u32 s3, s3, s%d" % wave_sgpr)
        p("s_lshl_b32 s3, s3, 7")
        p("v_mov_b32 v3, 0")
        for i in range(32):
            p("v_mov_b32 v4, s%d" % (64 + i))
            p("buffer_store_dword v4, v3, s[4:7], s3 offen offset:%d" % (4 * i))


def xsum_345(p, v, t):
    p("v_add_f32_dpp v%d, v%d, v%d row_ror:8 row_mask:0xf bank_mask:0xf" % (v, v, v))
    p("v_mov_b32 v%d, v%d" % (t, v))
    p("v_permlane16_swap_b32 v%d, v%d" % (v, t))
    p("v_add_f32 v%d, v%d, v%d" % (v, v, t))
    p("v_mov_b32 v%d, v%d" % (t, v))
    p("v_permlane32_swap_b32 v%d, v%d" % (v, t))
    p("v_add_f32 v%d, v%d, v%d" % (v, v, t))


def xop_45(p, v, t, op):
    p("v_mov_b32 v%d, v%d" % (t, v))
    p("v_permlane16_swap_b32 v%d, v%d" % (v, t))
    p("%s v%d, v%d, v%d" % (op, v, v, t))
    p("v_mov_b32 v%d, v%d" % (t, v))
    p("v_permlane32_swap_b32 v%d, v%d" % (v, t))
    p("%s v%d, v%d, v%d" % (op, v, v, t))


def f32bits(x):
    import struct
    return "0x%08x" % struct.unpack("<I", struct.pack("<f", x))[0]


def round_bf16(p, v):
    p("v_cvt_pk_bf16_f32 v%d, v%d, v%d" % (v, v, v))
    p("v_and_b32 v%d, 0xffff0000, v%d" % (v, v))


class Sched:
    def __init__(self, n, cap=2):
        self.n, self.cap = n, cap
        self.g = [[] for _ in range(n)]
        self.used = [0] * n
        self.pre = []

    @staticmethod
    def cost(s):
        return 2 if s.startswith(("v_exp", "v_rcp", "v_rsq", "v_log")) else 1

    def at(self, gap, s):
        self.g[gap].append(s)
        self.used[gap] += self.cost(s)

    def stream(self, items, start=0, end=None):
        end = self.n if end is None else end
        g = start
        for s in items:
            c = self.cost(s)
            while g < end - 1 and self.used[g] + c > max(self.cap, c if self.used[g] == 0 else 0):
                g += 1
            self.at(g, s)
        return g

    def even(self, items, start, end):
        n = len(items)
        for k, s in enumerate(items):
            self.at(start + (k * (end - start)) // n, s)

    def weave(self, mfmas):
        assert len(mfmas) == self.n
        out = list(self.pre)
        for m, f in zip(mfmas, self.g):
            out.append(m)
            out.extend(f)
        return "\n".join(out)

    def flat(self):
        out = list(self.pre)
        for f in self.g:
            out.extend(f)
        return "\n".join(out)


def iclass(s):
    op = s.split()[0]
    if op.startswith("ds_"):
        return "d"
    if op.startswith(("buffer_", "global_")):
        return "m"
    if op.startswith(("v_exp", "v_rcp", "v_rsq", "v_log")):
        return "e"
    if op.startswith("v_"):
        return "v"
    return "s"


class Gaps:
    def __init__(self, n):
        self.n = n
        self.g = [[] for _ in range(n)]

    def at(self, gap, *ins):
        self.g[gap].extend(ins)

    def put(self, gaps, items):
        assert len(gaps) >= len(items), (len(gaps), len(items))
        for g, s in zip(gaps, items):
            self.at(g, s)

    def ordered(self, k):
        f = self.g[k]
        lead = [x for x in f if iclass(x) == "s"][:1]
        rest = list(f)
        for x in lead:
            rest.remove(x)
        return lead + [x for x in rest if iclass(x) == "d"] + [x for x in rest if iclass(x) == "m"] + \
            [x for x in rest if iclass(x) not in "dm"]

    def penalty(self):
        tot = 0
        for k in range(self.n):
            o = [iclass(x) for x in self.ordered(k)]
            if o and o[0] == "s":
                o = o[1:]
            c = sum(2 if x in "em" else 1 for x in o) + max(0, o.count("d") - 1)
            tot += 4 * max(0, c - 2)
        return tot

    def weave(self, mfmas, name=None):
        assert len(mfmas) == self.n
        out = []
        for k, m in enumerate(mfmas):
            out.append(m)
            out.extend(self.ordered(k))
        if name:
            import sys
            print("   sched %s: est penalty %d cycles" % (name, self.penalty()), file=sys.stderr)
        return "\n".join(out)
```

```python
from asmlib import *
from layout import *

MF = "v_mfma_f32_16x16x32_bf16"
WS_BYTES = 268435456


def srd(p, d, lo, hi, size):
    p("s_mov_b32 s%d, s%d" % (d, lo))
    p("s_and_b32 s%d, s%d, 0xffff" % (d + 1, hi))
    p("s_mov_b32 s%d, 0x%x" % (d + 2, size))
    p("s_mov_b32 s%d, 0x20000" % (d + 3))


def vr(b, n=4, k="v"):
    return "%s[%d:%d]" % (k, b, b + n - 1)


def ar(b, n=4):
    return vr(b, n, "a")


class Stamper:
    def __init__(self, p, on, base=0, sel=None):
        self.p, self.on, self.base = p, on, base
        self.sel = sel or [str(i) for i in range(16)]

    def __call__(self, name, q=None):
        name = str(name)
        if self.on and name in self.sel:
            i = self.sel.index(name)
            save = self.p
            if q is not None:
                self.p = q
            self._emit(i)
            self.p = save

    def _emit(self, i):
        if True:
            self.p('s_memtime s[98:99]')
            self.p('s_memrealtime s[100:101]')
            self.p('s_waitcnt lgkmcnt(0)')
            self.p('s_mov_b32 s%d, s98' % (64 + i))
            self.p('s_mov_b32 s%d, s100' % (80 + i))

    def dump(self, wave_sgpr, nw=4):
        if not self.on:
            return
        p = self.p
        if self.on == "dbg":
            p("s_cmp_lg_u32 s2, 100")
            p("s_cbranch_scc1 K_END")
            p("s_cmp_lg_u32 s%d, 0" % wave_sgpr)
            p("s_cbranch_scc1 K_END")
            p("s_load_dwordx2 s[96:97], s[0:1], 96")
            p("s_waitcnt lgkmcnt(0)")
            srd(p, 4, 96, 97, 256)
            p("v_mov_b32 v3, 0")
            for i in range(1, 16):
                p("s_sub_u32 s3, s%d, s80" % (80 + i))
                p("v_mov_b32 v4, s3")
                p("buffer_store_dword v4, v3, s[4:7], 0 offen offset:%d" % (4 * i))
            return
        p("s_load_dwordx2 s[96:97], s[0:1], 104")
        p("s_waitcnt lgkmcnt(0)")
        p("s_add_u32 s96, s96, 0x%x" % (WS_STAMP + self.base * 0x20000))
        p("s_addc_u32 s97, s97, 0")
        srd(p, 4, 96, 97, 1024 * 128)
        p("s_mul_i32 s3, s2, %d" % nw)
        p("s_add_u32 s3, s3, s%d" % wave_sgpr)
        p("s_lshl_b32 s3, s3, 7")
        p("v_mov_b32 v3, 0")
        for i in range(32):
            p("v_mov_b32 v4, s%d" % (64 + i))
            p("buffer_store_dword v4, v3, s[4:7], s3 offen offset:%d" % (4 * i))


def xsum_345(p, v, t):
    p("v_add_f32_dpp v%d, v%d, v%d row_ror:8 row_mask:0xf bank_mask:0xf" % (v, v, v))
    p("v_mov_b32 v%d, v%d" % (t, v))
    p("v_permlane16_swap_b32 v%d, v%d" % (v, t))
    p("v_add_f32 v%d, v%d, v%d" % (v, v, t))
    p("v_mov_b32 v%d, v%d" % (t, v))
    p("v_permlane32_swap_b32 v%d, v%d" % (v, t))
    p("v_add_f32 v%d, v%d, v%d" % (v, v, t))


def xop_45(p, v, t, op):
    p("v_mov_b32 v%d, v%d" % (t, v))
    p("v_permlane16_swap_b32 v%d, v%d" % (v, t))
    p("%s v%d, v%d, v%d" % (op, v, v, t))
    p("v_mov_b32 v%d, v%d" % (t, v))
    p("v_permlane32_swap_b32 v%d, v%d" % (v, t))
    p("%s v%d, v%d, v%d" % (op, v, v, t))


def f32bits(x):
    import struct
    return "0x%08x" % struct.unpack("<I", struct.pack("<f", x))[0]


def round_bf16(p, v):
    p("v_cvt_pk_bf16_f32 v%d, v%d, v%d" % (v, v, v))
    p("v_and_b32 v%d, 0xffff0000, v%d" % (v, v))


class Sched:
    def __init__(self, n, cap=2):
        self.n, self.cap = n, cap
        self.g = [[] for _ in range(n)]
        self.used = [0] * n
        self.pre = []

    @staticmethod
    def cost(s):
        return 2 if s.startswith(("v_exp", "v_rcp", "v_rsq", "v_log")) else 1

    def at(self, gap, s):
        self.g[gap].append(s)
        self.used[gap] += self.cost(s)

    def stream(self, items, start=0, end=None):
        end = self.n if end is None else end
        g = start
        for s in items:
            c = self.cost(s)
            while g < end - 1 and self.used[g] + c > max(self.cap, c if self.used[g] == 0 else 0):
                g += 1
            self.at(g, s)
        return g

    def even(self, items, start, end):
        n = len(items)
        for k, s in enumerate(items):
            self.at(start + (k * (end - start)) // n, s)

    def weave(self, mfmas):
        assert len(mfmas) == self.n
        out = list(self.pre)
        for m, f in zip(mfmas, self.g):
            out.append(m)
            out.extend(f)
        return "\n".join(out)

    def flat(self):
        out = list(self.pre)
        for f in self.g:
            out.extend(f)
        return "\n".join(out)


def iclass(s):
    op = s.split()[0]
    if op.startswith("ds_"):
        return "d"
    if op.startswith(("buffer_", "global_")):
        return "m"
    if op.startswith(("v_exp", "v_rcp", "v_rsq", "v_log")):
        return "e"
    if op.startswith("v_"):
        return "v"
    return "s"


class Gaps:
    def __init__(self, n):
        self.n = n
        self.g = [[] for _ in range(n)]

    def at(self, gap, *ins):
        self.g[gap].extend(ins)

    def put(self, gaps, items):
        assert len(gaps) >= len(items), (len(gaps), len(items))
        for g, s in zip(gaps, items):
            self.at(g, s)

    def ordered(self, k):
        f = self.g[k]
        lead = [x for x in f if iclass(x) == "s"][:1]
        rest = list(f)
        for x in lead:
            rest.remove(x)
        return lead + [x for x in rest if iclass(x) == "d"] + [x for x in rest if iclass(x) == "m"] + \
            [x for x in rest if iclass(x) not in "dm"]

    def penalty(self):
        tot = 0
        for k in range(self.n):
            o = [iclass(x) for x in self.ordered(k)]
            if o and o[0] == "s":
                o = o[1:]
            c = sum(2 if x in "em" else 1 for x in o) + max(0, o.count("d") - 1)
            tot += 4 * max(0, c - 2)
        return tot

    def weave(self, mfmas, name=None):
        assert len(mfmas) == self.n
        out = []
        for k, m in enumerate(mfmas):
            out.append(m)
            out.extend(self.ordered(k))
        if name:
            import sys
            print("   sched %s: est penalty %d cycles" % (name, self.penalty()), file=sys.stderr)
        return "\n".join(out)
```

```python
import math
from common import *

QSCALE = math.log2(math.e) / 16.0
sWAVE, sHEAD, sROLE = 18, 19, 20
pX, pWQ, pWO, pW1, pW2, pOUT, pWS = 50, 52, 54, 56, 58, 60, 62
SPIN = 0x40000
sFAST = 96


def flag_off(p, dst, base, idx_s):
    p("s_lshl_b32 s%d, s%d, 6" % (dst, idx_s))
    p("s_add_u32 s%d, s%d, 0x%x" % (dst, dst, WS_FLAG + base * 64))


def signal(p, off_s, vone, vzero, name, srd_=8, release=False):
    p("s_cmp_lg_u32 s%d, 0" % sWAVE)
    p("s_cbranch_scc1 %s" % name)
    if release:
        p("s_cmp_eq_u32 s%d, 1" % sFAST)
        p("s_cbranch_scc1 %s_F" % name)
        p("buffer_wbl2 sc1")
        p("s_waitcnt vmcnt(0)")
        p.label(name + "_F")
    p("v_mov_b32 v%d, 1" % vone)
    p("v_mov_b32 v%d, 0" % vzero)
    p("s_mov_b64 exec, 1")
    p("buffer_atomic_add v%d, v%d, s[%d:%d], s%d offen sc1" % (vone, vzero, srd_, srd_ + 3, off_s))
    p("s_mov_b64 exec, -1")
    p.label(name)


def poll(p, off_s, want, vt, vzero, s1, s2, name, srd_=8, first_loaded=False, acquire=False):
    p("s_mov_b32 s%d, 0" % s2)
    if first_loaded:
        p("s_branch %s_CHK" % name)
    p.label(name)
    p("buffer_load_dword v%d, v%d, s[%d:%d], s%d offen sc1" % (vt, vzero, srd_, srd_ + 3, off_s))
    p("s_waitcnt vmcnt(0)")
    p.label(name + "_CHK")
    p("v_readfirstlane_b32 s%d, v%d" % (s1, vt))
    p("s_cmp_ge_u32 s%d, %d" % (s1, want))
    p("s_cbranch_scc1 %s_OK" % name)
    p("s_add_u32 s%d, s%d, 1" % (s2, s2))
    p("s_cmp_ge_u32 s%d, 0x%x" % (s2, SPIN))
    p("s_cbranch_scc1 %s_OK" % name)
    p("s_sleep 2")
    p("s_branch %s" % name)
    p.label(name + "_OK")
    if acquire:
        p("s_cmp_eq_u32 s%d, 1" % sFAST)
        p("s_cbranch_scc1 %s_F" % name)
        p("buffer_inv sc1")
        p("s_waitcnt vmcnt(0)")
        p.label(name + "_F")


def xsum_row32(p, v, t):
    for k in (1, 2, 4, 8):
        p("v_add_f32_dpp v%d, v%d, v%d row_ror:%d row_mask:0xf bank_mask:0xf" % (v, v, v, k))
    p("v_mov_b32 v%d, v%d" % (t, v))
    p("v_permlane16_swap_b32 v%d, v%d" % (v, t))
    p("v_add_f32 v%d, v%d, v%d" % (v, v, t))


def unpack(p, dst, src, n):
    for i in range(n):
        p("v_lshlrev_b32 v%d, 16, v%d" % (dst + 2 * i, src + i))
        p("v_and_b32 v%d, 0xffff0000, v%d" % (dst + 2 * i + 1, src + i))
```

```python
from fused_common import *
import phase_kv

OP_STRIDE = 0x12000
L16, BKV, BWQ, BWO, ACT, RKV, NEGBIG = 2, 3, 4, 5, 6, 14, 15
WQB, WOB, CUR = 16, 24, 28
THR0, THR, LS, BS, T0 = 36, 37, 38, 40, 42
ZER = 44
NEGM, PF, S, PP, XT, Q, MRG, TMP = 48, 56, 64, 80, 96, 112, 176, 240
FA, FB = 128, 192
RING = 5 * 32768
sPO, sPS, sRW, sRR = 21, 22, 24, 25
sT, sB0, sNB, sACT = 26, 27, 28, 29
sT2, sNB2 = 30, 31
sCNT, sB, sD0, sSIG, sPAIR = 32, 33, 34, 35, 36
sX, sY, sZ = 37, 38, 39
sTHRESH, sW1K = 48, 49
sO0, sO1 = 16, 17
sCHK = 16


def Sreg(kt, qt):
    return S + (kt * 2 + qt) * 4


def Hreg(ks, qt):
    return MRG + (ks * 2 + qt) * 4 if ks < 8 else S + ((ks - 8) * 2 + qt) * 4


def Oreg(dt, qt):
    return (dt * 2 + qt) * 4


def prod_set(kind):
    lo, size, base, js, ps = {"wq": (pWQ, 448 * 4096 * 2, BWQ, 65536, 0x80000),
                              "wo": (pWO, 448 * 4096 * 2, BWO, 28672, 128),
                              "w1": (pW1, 448 * 1792 * 2, BWQ, 57344, 128 * 3584),
                              "kv": (pWS, WS_BYTES, BKV, 4096, 32768)}[kind]
    o = ["s_mov_b32 s4, s%d" % lo, "s_and_b32 s5, s%d, 0xffff" % (lo + 1), "s_mov_b32 s6, 0x%x" % size,
         "s_mov_b32 s%d, 0x%x" % (sPS, ps)]
    if kind == "wq":
        o += ["s_lshl_b32 s%d, s%d, 9" % (sPO, sHEAD)]
    elif kind == "wo":
        o += ["s_mul_i32 s%d, s%d, 229376" % (sPO, sHEAD)]
    elif kind == "w1":
        o += ["s_lshl_b32 s%d, s%d, 8" % (sPO, sROLE), "s_cmp_lt_u32 s%d, 14" % sROLE, "s_cselect_b32 s6, s6, 0"]
    else:
        o += ["s_lshl_b32 s%d, s%d, 6" % (sPO, sHEAD), "s_add_u32 s%d, s%d, s%d" % (sPO, sPO, sB0),
              "s_lshl_b32 s%d, s%d, 15" % (sPO, sPO), "s_add_u32 s%d, s%d, 0x%x" % (sPO, sPO, WS_KV - 16384)]
    v = ["v_mov_b32 v%d, v%d" % (ACT, base)]
    for j in range(1, 8):
        v += ["v_add_u32 v%d, 0x%x, v%d" % (ACT + j, j * js, base)]
    return o, v


def dma(j, konly=False):
    return ["s_add_u32 m0, s%d, %d" % (sRW, j * 4096),
            "buffer_load_dwordx4 v%d, s[4:7], s%d offen sc1 lds" % (ACT + (j | 4 if konly else j), sPO)]


PROD_ADV = ["s_add_u32 s%d, s%d, s%d" % (sPO, sPO, sPS), "s_add_u32 s%d, s%d, 0x8000" % (sRW, sRW),
            "s_cmp_ge_u32 s%d, 0x%x" % (sRW, RING), "s_cselect_b32 s%d, s%d, s%d" % (sRW, sW1K, sRW)]
RING_ADV = ["s_add_u32 s%d, s%d, 0x8000" % (sRR, sRR), "s_cmp_ge_u32 s%d, 0x%x" % (sRR, RING),
            "s_cselect_b32 s%d, 0, s%d" % (sRR, sRR)]


def cur_set(kind):
    if kind == "kv":
        return ["v_add_u32 v%d, s%d, v%d" % (RKV, sRR, L16)]
    n, base = (8, WQB) if kind == "wq" else (4, WOB)
    return ["v_add_u32 v%d, s%d, v%d" % (CUR + x, sRR, base + x) for x in range(n)]


def reads(kind, half):
    F = FA if half == 0 else FB
    o = []
    if kind == "kv":
        for f in range(16):
            o.append("ds_read_b128 %s, v%d offset:%d" % (ar(F + 4 * f), RKV, (16384 if half == 0 else 0) + 1024 * f))
    elif kind == "wq":
        for dt in range(16):
            for i in range(2):
                o.append("ds_read_b64_tr_b16 %s, v%d offset:%d" % (
                    ar(F + 4 * dt + 2 * i, 2), CUR + (dt & 7), half * 16384 + i * 8192 + (dt >> 3) * 256))
    else:
        for mt in range(2):
            for u in range(8):
                for i in range(2):
                    o.append("ds_read_b64_tr_b16 %s, v%d offset:%d" % (
                        ar(F + 4 * (mt * 8 + u) + 2 * i, 2), CUR + 2 * half + mt, u * 4096 + i * 2048))
    return o


DG = [2, 6, 10, 14, 18, 22, 26, 30]


def place_dma(G, base=0, konly=False):
    for j in range(8):
        d = dma(j, konly)
        G.at(base + DG[j] - 1, d[0])
        G.at(base + DG[j], d[1])


def spread_reads(G, rd, gaps):
    n, m = len(rd), len(gaps)
    for k, r in enumerate(rd):
        G.at(gaps[(k * m) // n], r)


def h_loads(tile_s, ks_list, L16=L16):
    o = ["s_lshl_b32 s%d, s%d, 3" % (sX, tile_s), "s_lshl_b32 s%d, s%d, 1" % (sY, sWAVE),
         "s_add_u32 s%d, s%d, s%d" % (sX, sX, sY), "s_mul_i32 s%d, s%d, 14336" % (sX, sX),
         "s_add_u32 s%d, s%d, 0x%x" % (sX, sX, WS_H)]
    for ks in ks_list:
        for qt in range(2):
            off = qt * 14336 + ks * 1024
            o.append("s_add_u32 s%d, s%d, %d" % (sY, sX, off & ~0xfff))
            o.append("buffer_load_dwordx4 %s, v%d, s[8:11], s%d offen offset:%d sc1" % (vr(Hreg(ks, qt)), L16, sY, off & 0xfff))
    return o


def tr_h1(G, kind, base, dma_too=False, busy=()):
    cs = cur_set(kind)
    G.at(base, cs[0], cs[1])
    for x in range(2, len(cs)):
        G.at(base + x - 1, cs[x])
    gaps = [g for g in range(base + 1, base + 32) if not (dma_too and (g - base) in DG) and g not in busy]
    spread_reads(G, reads(kind, 0), gaps)


def kv_hooks(p):
    def st1():
        p("s_add_u32 s21, s%d, 4" % sROLE)
        p("s_add_u32 s22, s%d, 10" % sROLE)
        p("s_cmp_lt_u32 s%d, 6" % sROLE)
        p("s_cselect_b32 s21, s22, s21")
        p("s_sub_u32 s22, s%d, 6" % sROLE)
        p("s_cmp_lt_u32 s%d, 12" % sROLE)
        p("s_cselect_b32 s21, s21, s22")
        p("s_sub_u32 s22, 15, s21")
        flag_off(p, 23, FL_H, 21)
        flag_off(p, 24, FL_H, 22)
        p("buffer_load_dword v12, v%d, s[8:11], s23 offen sc1" % phase_kv.ZV)
        p("buffer_load_dword v13, v%d, s[8:11], s24 offen sc1" % phase_kv.ZV)
    return {"st1": st1}


def PK(n):
    return 64 + 4 * n if n < 12 else (48 + 4 * (n - 12) if n < 16 else Q + 4 * (n - 16))


def gen(p, st, stubs, thresh, tail_pre, SPLIT=40, wb=0):
    J = lambda l: p("\n".join(l))
    assert SPLIT == 40
    p("v_lshlrev_b32 v%d, 4, v1" % L16)
    poll(p, 23, 16, 12, phase_kv.ZV, 37, 38, "AT_POLLH", first_loaded=True)
    poll(p, 24, 16, 13, phase_kv.ZV, 37, 38, "AT_POLLH2", first_loaded=True)
    J(h_loads(21, range(8)))
    p("s_cmp_lt_u32 s%d, 6" % sROLE)
    p("s_cbranch_scc1 AT_ROLE_A")
    p("s_cmp_lt_u32 s%d, 12" % sROLE)
    p("s_cbranch_scc1 AT_ROLE_B")
    p("s_sub_u32 s%d, s%d, 6" % (sT, sROLE))
    p("s_mov_b32 s%d, 0" % sB0)
    p("s_lshl_b32 s%d, s%d, 2" % (sNB, sT))
    p("s_add_u32 s%d, s%d, 4" % (sNB, sNB))
    p("s_mov_b32 s%d, 0" % sACT)
    p("s_mov_b32 s%d, 0" % sX)
    p("s_branch AT_ROLE_DONE")
    p.label("AT_ROLE_A")
    p("s_add_u32 s%d, s%d, 10" % (sT, sROLE))
    p("s_mov_b32 s%d, 0" % sB0)
    p("s_mov_b32 s%d, %d" % (sNB, SPLIT))
    p("s_mov_b32 s%d, 1" % sACT)
    p("s_mov_b32 s%d, s%d" % (sX, sROLE))
    p("s_branch AT_ROLE_DONE")
    p.label("AT_ROLE_B")
    p("s_add_u32 s%d, s%d, 4" % (sT, sROLE))
    p("s_mov_b32 s%d, %d" % (sB0, SPLIT))
    p("s_lshl_b32 s%d, s%d, 2" % (sNB, sT))
    p("s_sub_u32 s%d, s%d, %d" % (sNB, sNB, SPLIT - 4))
    p("s_mov_b32 s%d, 2" % sACT)
    p("s_sub_u32 s%d, s%d, 6" % (sX, sROLE))
    p.label("AT_ROLE_DONE")
    p("s_sub_u32 s%d, 15, s%d" % (sT2, sT))
    p("s_lshl_b32 s%d, s%d, 2" % (sNB2, sT2))
    p("s_add_u32 s%d, s%d, 4" % (sNB2, sNB2))
    p("s_mul_i32 s%d, s%d, 6" % (sPAIR, sHEAD))
    p("s_add_u32 s%d, s%d, s%d" % (sPAIR, sPAIR, sX))
    p("s_mov_b32 s%d, %s" % (sTHRESH, f32bits(thresh)))
    p("s_lshl_b32 s%d, s%d, 10" % (sW1K, sWAVE))
    flag_off(p, sSIG, FL_KV, sHEAD)
    W, HI, G_, C = TMP, TMP + 1, TMP + 2, TMP + 4
    a, b, c = TMP + 5, TMP + 6, TMP + 7
    p("v_lshrrev_b32 v%d, 6, v0" % W)
    p("v_lshrrev_b32 v%d, 5, v1" % HI)
    p("v_lshl_add_u32 v%d, v%d, 1, v%d" % (a, W, HI))
    p("v_lshlrev_b32 v%d, 1, v%d" % (b, a))
    p("v_and_b32 v%d, 31, v1" % c)
    p("v_xor_b32 v%d, v%d, v%d" % (b, b, c))
    p("v_lshlrev_b32 v%d, 4, v%d" % (b, b))
    p("v_lshl_add_u32 v%d, v%d, 13, v%d" % (BWQ, a, b))
    so, vo = prod_set("wq")
    J(so + vo)
    p("s_add_u32 s%d, s%d, 0x100000" % (sPO, sPO))
    p("s_mov_b32 s%d, s%d" % (sRW, sW1K))
    p("s_mov_b32 s%d, 98304" % sRR)
    for j in range(8):
        J(dma(j))
    J(PROD_ADV)
    phase_kv.epi_setup(p)
    p("v_lshrrev_b32 v%d, 4, v1" % G_)
    p("v_and_b32 v%d, 3, v1" % C)
    p("v_lshl_add_u32 v%d, v%d, 10, v%d" % (BKV, W, L16))
    p("v_lshrrev_b32 v%d, 3, v1" % a)
    p("v_lshl_add_u32 v%d, v%d, 3, v%d" % (a, W, a))
    p("v_bfe_u32 v%d, v%d, 1, 2" % (b, a))
    p("v_lshlrev_b32 v%d, 1, v%d" % (b, b))
    p("v_and_b32 v%d, 7, v1" % c)
    p("v_xor_b32 v%d, v%d, v%d" % (b, b, c))
    p("v_lshlrev_b32 v%d, 4, v%d" % (b, b))
    p("v_mul_u32_u24 v%d, 896, v%d" % (a, a))
    p("v_add_u32 v%d, v%d, v%d" % (BWO, a, b))
    p("v_lshrrev_b32 v%d, 2, v1" % a)
    p("v_lshlrev_b32 v%d, 9, v%d" % (b, a))
    p("v_lshl_add_u32 v%d, v%d, 3, v%d" % (b, C, b))
    p("v_and_b32 v%d, 7, v%d" % (c, a))
    p("v_lshl_add_u32 v%d, v%d, 5, v%d" % (b, c, b))
    for x in range(8):
        p("v_xor_b32 v%d, %d, v%d" % (WQB + x, x * 32, b))
    p("v_lshlrev_b32 v%d, 7, v%d" % (b, a))
    p("v_lshl_add_u32 v%d, v%d, 3, v%d" % (b, C, b))
    p("v_bfe_u32 v%d, v%d, 1, 2" % (c, a))
    p("v_lshl_add_u32 v%d, v%d, 5, v%d" % (b, c, b))
    for x in range(4):
        p("v_xor_b32 v%d, %d, v%d" % (WOB + x, x * 32, b))
    p("s_waitcnt lgkmcnt(0)")
    p("v_and_b32 v%d, 15, v1" % a)
    p("v_lshlrev_b32 v%d, 2, v%d" % (b, G_))
    p("v_sub_u32 v%d, v%d, v%d" % (a, a, b))
    p("v_lshl_add_u32 v%d, v%d, 5, v%d" % (THR0, W, a))
    p("v_mov_b32 v%d, %s" % (NEGBIG, f32bits(-1e30)))
    for i in range(4):
        p("v_mov_b32 v%d, 0" % (ZER + i))
    J(cur_set("wq"))
    p("s_lshl_b32 s44, s%d, 1" % sHEAD)
    p("s_lshr_b32 s43, s%d, 1" % sROLE)
    p("s_add_u32 s45, s44, s43")
    p("s_lshr_b32 s43, s%d, 2" % sROLE)
    p("s_cmp_eq_u32 s%d, 2" % sACT)
    p("s_addc_u32 s44, s44, 0")
    flag_off(p, 44, FL_K1, 44)
    flag_off(p, 45, FL_K1, 45)
    p("s_add_u32 s%d, s%d, 2" % (sCHK, sB0))
    hl = h_loads(sT, range(8, 14))
    J(hl[:5])
    for n in range(32):
        J(phase_kv.epi_conv(n, PK(n), TMP + (n & 1) * 8))
        if n % 4 == 3 and n < 28:
            J(phase_kv.epi_store(n // 4, PK(n // 4), L16))
    p("s_cmp_eq_u32 s43, 0")
    p("s_cbranch_scc0 AT_NOPRIO")
    for n in range(7, 32):
        J(phase_kv.epi_store(n, PK(n), L16))
    p("s_mov_b32 s23, 0xf0000000")
    p("s_mov_b32 s46, 0")
    p("s_mov_b32 s47, 0")
    p("s_mov_b32 s17, 0")
    p("s_waitcnt vmcnt(40)")
    p("s_branch AT_PRIODONE")
    p.label("AT_NOPRIO")
    p("s_waitcnt vmcnt(15)")
    p.label("AT_PRIODONE")
    st(3)
    p("s_barrier")
    J(reads("wq", 0))

    def qproj(first):
        p("s_waitcnt lgkmcnt(0)")
        VM = {1: 21, 2: 32, 3: 19, 4: 21, 5: 26, 6: 16} if first else {2: 16, 3: 16, 4: 16, 5: 16, 6: 16}
        for t in range(7):
            mf = []
            for half in range(2):
                ks = 2 * t + half
                F = FA if half == 0 else FB
                for dt in range(16):
                    for qt in range(2):
                        acc = ar(Oreg(dt, qt))
                        mf.append("%s %s, %s, %s, %s" % (MF, acc, ar(F + 4 * dt), vr(Hreg(ks, qt)), "0" if ks == 0 else acc))
            G = Gaps(64)
            place_dma(G, 0, konly=(t == 4))
            spread_reads(G, reads("wq", 1), [g for g in range(32) if g not in DG])
            G.at(12, "s_waitcnt lgkmcnt(8)")
            G.put([24, 27, 28], RING_ADV)
            G.at(31, "s_waitcnt %slgkmcnt(8)" % ("vmcnt(%d) " % VM[t] if t in VM else ""))
            split = (first and t in (1, 2, 3, 6)) or (not first and t == 2)
            if split:
                p(Gaps_slice(G, mf, 0, 32))
                p("s_barrier")
                if not first:
                    signal(p, sSIG, T0, T0 + 1, "AT_SIGP", release=True)
                elif t == 1:
                    p("s_cmp_eq_u32 s43, 0")
                    p("s_cbranch_scc0 AT_SIGK1B")
                    signal(p, 45, T0, T0 + 1, "AT_SIGK1", release=True)
                    signal(p, sSIG, T0, T0 + 1, "AT_SIGK1B")
                elif t == 2:
                    p("buffer_load_dword v%d, v%d, s[8:11], s44 offen sc1" % (T0, ZER))
                elif t == 3:
                    st("f0")
                    poll(p, 44, 2, T0, ZER, 40, 41, "AT_POLLK1", first_loaded=True, acquire=True)
                    st("f1")
                else:
                    p("s_cmp_eq_u32 s43, 0")
                    p("s_cbranch_scc1 AT_SIGKV")
                    signal(p, sSIG, T0, T0 + 1, "AT_SIGKV", release=True)
            else:
                G.at(32, "s_barrier")
            G.put([35, 36, 39, 40], PROD_ADV)
            busy = []
            if first and t <= 4:
                for k, g in enumerate((42, 47, 52, 57, 62)):
                    n = 7 + 5 * t + k
                    e = phase_kv.epi_store(n, PK(n), L16)
                    G.at(g, e[0])
                    G.at(g + 1, e[1])
                    busy.append(g)
            if first and t in (1, 2):
                for k, g in enumerate((34, 38, 45, 50, 55, 60)):
                    i = 5 + 2 * (6 * (t - 1) + k)
                    G.at(g, hl[i], hl[i + 1])
                    busy.append(g)
            if t < 6:
                tr_h1(G, "wq", 32, busy=busy)
                G.at(61, "s_waitcnt lgkmcnt(8)")
            else:
                G.at(32, cur_set("kv")[0])
                G.put(range(33, 62, 2), reads("kv", 0)[:15])
                G.at(62, reads("kv", 0)[15])
            G.at(44, "s_waitcnt lgkmcnt(%d)" % (8 if t < 6 else 4))
            if t == 3:
                so, vo = prod_set("kv")
                G.put([45, 46, 49, 50, 51, 54, 55, 56], so)
                G.put([45, 46, 49, 50, 51, 54, 55, 56], vo)
            if split:
                p(Gaps_slice(G, mf, 32, 64))
            else:
                p(G.weave(mf, "qproj%d_%d" % (first, t)))
            if first:
                st("q%d" % t)

    def convert(kind, mid=None, at=5):
        n = 0
        for u in range(8):
            if u == at and mid:
                mid()
            for qt in range(2):
                T = TMP + (n % 2) * 8
                n += 1
                for k in range(8):
                    p("v_accvgpr_read_b32 v%d, a%d" % (T + k, Oreg(2 * u + (k >> 2), qt) + (k & 3)))
                if kind != "q":
                    for k in range(8):
                        p("v_mul_f32 v%d, v%d, v%d" % (T + k, T + k, BS + qt))
                if kind == "merge":
                    for d in range(4):
                        m = MRG + (qt * 8 + u) * 4 + d
                        p("v_lshlrev_b32 v%d, 16, v%d" % (T0, m))
                        p("v_and_b32 v%d, 0xffff0000, v%d" % (T0 + 1, m))
                        p("v_fmac_f32 v%d, v%d, v%d" % (T + 2 * d, T0, LS + qt))
                        p("v_fmac_f32 v%d, v%d, v%d" % (T + 2 * d + 1, T0 + 1, LS + qt))
                for d in range(4):
                    p("v_cvt_pk_bf16_f32 v%d, v%d, v%d" % (Q + (qt * 8 + u) * 4 + d, T + 2 * d, T + 2 * d + 1))

    qproj(True)
    p("s_branch AT_QDONE")
    p.label("AT_JOB")
    qproj(False)
    p.label("AT_QDONE")
    st(4)
    convert("q")
    p.label("AT_START")
    p("s_mov_b32 s%d, s%d" % (sB, sB0))
    p("s_lshl_b32 s%d, s%d, 2" % (sD0, sT))
    p("s_mov_b32 s%d, s%d" % (sCNT, sNB))
    p("v_mov_b32 v%d, v%d" % (THR, THR0))

    def qk_mf(first):
        mf = []
        for kt in range(2):
            for u in range(8):
                for qt in range(2):
                    d = vr(Sreg(kt, qt))
                    cc = d if u else ("0" if first else vr(NEGM + 4 * qt))
                    mf.append("%s %s, %s, %s, %s" % (MF, d, ar(FA + 4 * (kt * 8 + u)), vr(Q + (qt * 8 + u) * 4), cc))
        return mf

    pv_mf = []
    for dt in range(16):
        for qt in range(2):
            acc = ar(Oreg(dt, qt))
            pv_mf.append("%s %s, %s, %s, %s" % (MF, acc, ar(FB + 4 * dt), vr(PF + 4 * qt), acc))

    def mask_code(kt):
        o = []
        for qt in range(2):
            for r in range(4):
                o.append("v_cmp_gt_i32 s[%d:%d], %d, v%d" % (40 + 2 * r, 41 + 2 * r, 16 * (kt - qt) + r, THR))
            for r in range(4):
                s = Sreg(kt, qt) + r
                o.append("v_cndmask_b32 v%d, v%d, v%d, s[%d:%d]" % (s, s, NEGBIG, 40 + 2 * r, 41 + 2 * r))
        if kt == 1:
            o.append("v_subrev_u32 v%d, 32, v%d" % (THR, THR))
        return o

    ex = ["v_exp_f32 v%d, v%d" % (PP + i, S + i) for i in range(16)]
    ad = []
    for i in range(16):
        qt = (i >> 2) & 1
        if i in (1, 5):
            ad.append("v_add_f32 v%d, v%d, v%d" % (BS + qt, PP + i - 1, PP + i))
        elif i not in (0, 4):
            ad.append("v_add_f32 v%d, v%d, v%d" % (BS + qt, BS + qt, PP + i))
    cvt_p = []
    for kt in range(2):
        for qt in range(2):
            for d in range(2):
                s = PP + (kt * 2 + qt) * 4 + 2 * d
                cvt_p.append("v_cvt_pk_bf16_f32 v%d, v%d, v%d" % (PF + 4 * qt + 2 * kt + d, s, s + 1))
    ladd = ["v_add_f32 v%d, v%d, v%d" % (LS + qt, LS + qt, BS + qt) for qt in range(2)]

    def rowmax(q, qt, dst):
        s0, s1 = Sreg(0, qt), Sreg(1, qt)
        q("v_max3_f32 v%d, v%d, v%d, v%d" % (dst, s0, s0 + 1, s0 + 2))
        q("v_max3_f32 v%d, v%d, v%d, v%d" % (dst, dst, s0 + 3, s1))
        q("v_max3_f32 v%d, v%d, v%d, v%d" % (dst, dst, s1 + 1, s1 + 2))
        q("v_max_f32 v%d, v%d, v%d" % (dst, dst, s1 + 3))
        xop_45(q, dst, TMP + 15, "v_max_f32")

    G = Gaps(32)
    place_dma(G)
    G.put([24, 27, 28], RING_ADV)
    G.at(31, *cur_set("kv"))
    p("s_waitcnt lgkmcnt(0)")
    p(G.weave(qk_mf(True)))
    J(PROD_ADV)
    p("s_waitcnt vmcnt(16)")
    p("s_barrier")
    J(reads("kv", 0))
    for i in range(8):
        p("v_mfma_f32_32x32x16_bf16 a[%d:%d], %s, %s, 0" % (16 * i, 16 * i + 15, vr(ZER), vr(ZER)))
    p("s_cmp_lt_u32 s%d, s%d" % (sB, sD0))
    p("s_cbranch_scc1 AT_S0_NOMASK")
    J(mask_code(0) + mask_code(1))
    p.label("AT_S0_NOMASK")
    for qt in range(2):
        rowmax(p, qt, TMP + qt)
        for r in range(4):
            p("v_sub_f32 v%d, 0, v%d" % (NEGM + 4 * qt + r, TMP + qt))
        for kt in range(2):
            for r in range(4):
                s = Sreg(kt, qt) + r
                p("v_sub_f32 v%d, v%d, v%d" % (s, s, TMP + qt))
        p("v_mov_b32 v%d, 0" % (LS + qt))
    J(ex + ad)
    p("s_add_u32 s%d, s%d, 1" % (sB, sB))
    p("s_sub_u32 s%d, s%d, 1" % (sCNT, sCNT))
    p("s_waitcnt lgkmcnt(0)")

    RG0 = [0, 1, 3, 4, 5, 7, 8, 9, 11, 12, 13, 15, 16, 17, 19, 20]
    p(".p2align 6")
    p.label("AT_LOOP")
    G = Gaps(64)
    place_dma(G)
    G.put(RG0, reads("kv", 1))
    G.put(RG0, cvt_p + ladd)
    G.at(19, "s_cmp_ge_u32 s%d, s%d" % (sB, sD0))
    G.at(20, "s_cbranch_scc1 AT_MASK0\nAT_MASK0_RET:")
    G.put([21, 23, 24, 25, 27, 28, 29, 31], ex[:8])
    G.put([23, 27, 28], RING_ADV)
    G.at(31, "s_waitcnt vmcnt(16) lgkmcnt(0)")
    G.at(32, "s_barrier", cur_set("kv")[0], ad[0])
    RG1 = [33, 34, 35, 37, 39, 41, 43, 45, 47, 49, 51, 52, 53, 54, 55, 56]
    G.put(RG1, reads("kv", 0))
    G.at(34, "s_cmp_ge_u32 s%d, s%d" % (sB, sD0))
    G.at(35, "s_cbranch_scc1 AT_MASK1\nAT_MASK1_RET:")
    G.put(range(36, 52, 2), ex[8:])
    G.put([33, 34, 35, 37, 39, 41, 43, 45, 47, 49, 51, 52, 53], ad[1:])
    G.at(54, "v_max_f32 v%d, v%d, v%d" % (T0, BS, BS + 1))
    G.at(55, "v_cmp_lt_f32 vcc, s%d, v%d" % (sTHRESH, T0))
    G.put([36, 37, 38, 39], PROD_ADV)
    G.at(41, "s_sub_u32 s%d, s%d, 3" % (sX, sCNT))
    G.at(42, "s_cmp_lt_u32 s%d, 2" % sX)
    G.at(43, "s_cbranch_scc1 AT_SWITCH\nAT_SWITCH_RET:")
    G.at(45, "s_sub_u32 s%d, s%d, s%d" % (sX, sB, sCHK))
    G.at(46, "s_cmp_lt_u32 s%d, 2" % sX)
    G.at(47, "s_cbranch_scc1 AT_KVCHK\nAT_KVCHK_RET:")
    G.at(58, "s_add_u32 s%d, s%d, 1" % (sB, sB))
    G.at(59, "s_sub_u32 s%d, s%d, 1" % (sCNT, sCNT))
    G.at(60, "s_cmp_lg_u32 s%d, 0" % sCNT)
    G.at(61, "s_waitcnt lgkmcnt(0)")
    p(G.weave(qk_mf(False) + pv_mf, "attn"))
    p("s_cbranch_vccnz AT_RARE")
    p.label("AT_RARE_RET")
    p("s_cbranch_scc1 AT_LOOP")

    rd = reads("kv", 1)
    for j in range(8):
        d = dma(j)
        J([d[0], rd[2 * j], d[1], rd[2 * j + 1], cvt_p[j]])
    J(ladd + PROD_ADV + RING_ADV)
    p("s_waitcnt vmcnt(16) lgkmcnt(0)")
    p("s_barrier")
    p("s_cmp_eq_u32 s%d, 2" % sACT)
    p("s_cbranch_scc1 AT_LAST_Q")
    G = Gaps(32)
    tr_h1(G, "wo", 0)
    p(G.weave(pv_mf))
    p("s_branch AT_LAST_DONE")
    p.label("AT_LAST_Q")
    G = Gaps(32)
    tr_h1(G, "wq", 0)
    p(G.weave(pv_mf))
    p.label("AT_LAST_DONE")
    st(5)
    for qt in range(2):
        xop_45(p, LS + qt, TMP + 15, "v_add_f32")
    p("s_waitcnt vmcnt(8)")
    p("s_cmp_eq_u32 s%d, 1" % sACT)
    p("s_cbranch_scc1 AT_MERGE")
    for qt in range(2):
        p("v_rcp_f32 v%d, v%d" % (BS + qt, LS + qt))
    convert("plain")
    p("s_cmp_eq_u32 s%d, 2" % sACT)
    p("s_cbranch_scc0 AT_OPROJ")

    def op_base(q):
        q("s_mul_i32 s%d, s%d, 0x%x" % (sX, sPAIR, OP_STRIDE))
        q("s_mul_i32 s%d, s%d, 17408" % (sY, sWAVE))
        q("s_add_u32 s%d, s%d, s%d" % (sX, sX, sY))
        q("s_add_u32 s%d, s%d, 0x%x" % (sX, sX, WS_OP))

    op_base(p)
    for f in range(16):
        if f % 4 == 0 and f:
            p("s_add_u32 s%d, s%d, 4096" % (sX, sX))
        p("buffer_store_dwordx4 %s, v%d, s[8:11], s%d offen offset:%d" % (vr(Q + 4 * f), L16, sX, (f % 4) * 1024))
    p("s_add_u32 s%d, s%d, 4096" % (sX, sX))
    p("v_mov_b32 v%d, v%d" % (TMP, NEGM))
    p("v_mov_b32 v%d, v%d" % (TMP + 1, LS))
    p("v_mov_b32 v%d, v%d" % (TMP + 2, NEGM + 4))
    p("v_mov_b32 v%d, v%d" % (TMP + 3, LS + 1))
    p("buffer_store_dwordx4 %s, v%d, s[8:11], s%d offen" % (vr(TMP), L16, sX))
    p("s_mov_b32 s%d, s%d" % (sT, sT2))
    p("s_mov_b32 s%d, s%d" % (sNB, sNB2))
    p("s_mov_b32 s%d, 0" % sB0)
    p("s_mov_b32 s%d, 0" % sACT)
    flag_off(p, sSIG, FL_PAIR, sPAIR)
    p("s_mov_b32 s%d, 0x1000" % sCHK)
    J(h_loads(sT, range(8, 14)))
    p("s_waitcnt vmcnt(29)")
    p("s_branch AT_JOB")
    p.label("AT_MERGE")
    for qt in range(2):
        nB, lB = XT + 2 * qt, XT + 2 * qt + 1
        nA = NEGM + 4 * qt
        p("v_min_f32 v%d, v%d, v%d" % (T0, nA, nB))
        p("v_sub_f32 v%d, v%d, v%d" % (T0 + 1, T0, nA))
        p("v_sub_f32 v%d, v%d, v%d" % (T0, T0, nB))
        p("v_exp_f32 v%d, v%d" % (T0 + 1, T0 + 1))
        p("v_exp_f32 v%d, v%d" % (T0, T0))
        p("v_mul_f32 v%d, v%d, v%d" % (lB, lB, T0))
        p("v_fma_f32 v%d, v%d, v%d, v%d" % (T0, LS + qt, T0 + 1, lB))
        p("v_rcp_f32 v%d, v%d" % (T0, T0))
        p("v_mul_f32 v%d, v%d, v%d" % (BS + qt, T0 + 1, T0))
        p("v_mul_f32 v%d, v%d, v%d" % (LS + qt, lB, T0))
    convert("merge")

    p.label("AT_OPROJ")
    st(6)
    p("s_lshl_b32 s%d, s%d, 3" % (sX, sT))
    p("s_lshl_b32 s%d, s%d, 1" % (sY, sWAVE))
    p("s_add_u32 s%d, s%d, s%d" % (sX, sX, sY))
    p("s_mul_i32 s%d, s%d, 14336" % (sX, sX))
    p("s_mul_i32 s%d, s%d, 0x%x" % (sY, sHEAD, H_BYTES))
    p("s_add_u32 s%d, s%d, s%d" % (sX, sX, sY))
    p("s_add_u32 s%d, s%d, 0x%x" % (sZ, sX, WS_PART))
    p("s_mov_b32 s%d, 0xf0000000" % sO0)
    p("s_mov_b32 s%d, 0xf0000000" % sO1)
    p("s_mov_b32 s%d, 0" % sCNT)
    p("v_lshrrev_b32 v%d, 4, v0" % a)
    p("v_and_b32 v%d, 7, v%d" % (b, a))
    p("v_lshlrev_b32 v%d, 1, v%d" % (b, b))
    p("v_and_b32 v%d, 15, v1" % c)
    p("v_xor_b32 v%d, v%d, v%d" % (b, b, c))
    p("v_lshlrev_b32 v%d, 4, v%d" % (b, b))
    p("v_mul_u32_u24 v%d, 3584, v%d" % (a, a))
    p("v_add_u32 v%d, v%d, v%d" % (BWQ, a, b))
    tail_pre(p)
    p("s_waitcnt lgkmcnt(0)")

    def op_mf(half):
        F = FA if half == 0 else FB
        A = S if half == 0 else PP
        mf = []
        for mt in range(2):
            for u in range(8):
                for qt in range(2):
                    acc = vr(A + (qt * 2 + mt) * 4)
                    mf.append("%s %s, %s, %s, %s" % (MF, acc, ar(F + 4 * (mt * 8 + u)), vr(Q + (qt * 8 + u) * 4), acc if u else "0"))
        return mf

    def op_out(half):
        A = S if half == 0 else PP
        cv, stq = [], []
        for qt in range(2):
            T = XT + half * 8 + qt * 4
            for d in range(4):
                cv.append("v_cvt_pk_bf16_f32 v%d, v%d, v%d" % (T + d, A + qt * 8 + 2 * d, A + qt * 8 + 2 * d + 1))
            stq.append("buffer_store_dwordx4 %s, v%d, s[8:11], s%d offen offset:%d sc1" % (vr(T), L16, sO0 + qt, half * 1024))
        return cv, stq

    p(".p2align 6")
    p.label("AT_OLOOP")
    G = Gaps(64)
    place_dma(G)
    spread_reads(G, reads("wo", 1), [g for g in range(32) if g not in DG])
    cv, stq = op_out(1)
    G.put([5, 8, 9, 12, 13, 16, 17, 20], cv)
    G.at(12, "s_waitcnt lgkmcnt(8)")
    G.put([24, 27, 28], RING_ADV)
    G.at(31, "s_waitcnt vmcnt(16) lgkmcnt(8)")
    G.at(32, "s_barrier")
    G.put([36, 40], stq)
    G.put([41, 42, 43], ["s_mov_b32 s%d, s%d" % (sO0, sZ), "s_add_u32 s%d, s%d, 14336" % (sO1, sZ),
                         "s_add_u32 s%d, s%d, 2048" % (sZ, sZ)])
    G.put([33, 34, 35, 37], PROD_ADV)
    cv0, st0 = op_out(0)
    G.put([38, 41, 43, 45, 47, 49, 51, 53], cv0)
    G.put([56, 60], st0)
    tr_h1(G, "wo", 32, busy=(36, 40, 56, 60))
    G.at(44, "s_waitcnt lgkmcnt(8)")
    G.at(46, "s_add_u32 s%d, s%d, 1" % (sCNT, sCNT))
    G.at(47, "s_cmp_eq_u32 s%d, 4" % sCNT)
    G.at(48, "s_cbranch_scc1 AT_W1SW\nAT_W1SW_RET:")
    G.at(62, "s_cmp_lg_u32 s%d, 7" % sCNT)
    G.at(63, "s_waitcnt lgkmcnt(8)")
    p(G.weave(op_mf(0) + op_mf(1), "oproj"))
    p("s_cbranch_scc1 AT_OLOOP")
    J(cv + stq)
    st(7)

    q = stubs
    JQ = lambda l: q("\n".join(l))
    for kt in range(2):
        q.label("AT_MASK%d" % kt)
        JQ(mask_code(kt))
        q("s_branch AT_MASK%d_RET" % kt)
    q.label("AT_W1SW")
    so, vo = prod_set("w1")
    JQ(so + vo)
    q("s_branch AT_W1SW_RET")

    q.label("AT_KVCHK")
    q("s_cmp_eq_u32 s%d, 0" % sX)
    q("s_cbranch_scc0 AT_KVCHK2")
    q("buffer_load_dword v%d, v%d, s[8:11], s%d offen sc1" % (XT + 10, ZER, sSIG))
    q("s_branch AT_KVCHK_RET")
    q.label("AT_KVCHK2")
    q("s_waitcnt vmcnt(8)")
    poll(q, sSIG, 16, XT + 10, ZER, sX, sY, "AT_POLLKV", first_loaded=True, acquire=True)
    q("s_sub_u32 s%d, s%d, 12" % (sX, sROLE))
    q("s_cmp_lt_u32 s%d, 3" % sX)
    q("s_cbranch_scc0 AT_KVCHK_RET")
    if wb:
        q("s_add_u32 s%d, s%d, s%d" % (sY, sX, sWAVE))
        q("s_cmp_eq_u32 s%d, 0" % sY)
        q("s_cbranch_scc0 AT_NOWB")
        q("buffer_wbl2 sc1")
        q.label("AT_NOWB")
    q("s_lshl_b32 s%d, s%d, 4" % (sX, sX))
    q("s_add_u32 s%d, s%d, s%d" % (sX, sX, sHEAD))
    q("s_mul_i32 s%d, s%d, 38272" % (sX, sX))
    q("s_cmp_eq_u32 s%d, 1" % sWAVE)
    q("s_cselect_b32 s%d, 0x%x, 0" % (sY, H_BYTES))
    q("s_add_u32 s%d, s%d, s%d" % (sX, sX, sY))
    q("s_cmp_eq_u32 s%d, 2" % sWAVE)
    q("s_cselect_b32 s12, s%d, s%d" % (pW1, pW2))
    q("s_cselect_b32 s13, s%d, s%d" % (pW1 + 1, pW2 + 1))
    q("s_mov_b32 s14, 0x%x" % (448 * 1792 * 2))
    q("s_cmp_lt_u32 s%d, 2" % sWAVE)
    q("s_cselect_b32 s12, s%d, s12" % pWO)
    q("s_cselect_b32 s13, s%d, s13" % (pWO + 1))
    q("s_cselect_b32 s14, 0x%x, s14" % (448 * 4096 * 2))
    q("s_and_b32 s13, s13, 0xffff")
    q("v_lshlrev_b32 v%d, 7, v1" % (XT + 4))
    for i in range(5):
        q("buffer_load_dword v%d, v%d, s[12:15], s%d offen" % (XT + 5 + i, XT + 4, sX))
        q("s_add_u32 s%d, s%d, 8192" % (sX, sX))
    q("s_branch AT_KVCHK_RET")

    q.label("AT_SWITCH")
    q("s_cmp_eq_u32 s%d, 3" % sCNT)
    q("s_cbranch_scc1 AT_SW3")
    for j in range(4):
        q("v_mov_b32 v%d, v%d" % (ACT + 4 + j, ACT + j))
    q("s_cmp_eq_u32 s%d, 1" % sACT)
    q("s_cbranch_scc0 AT_SWITCH_RET")
    flag_off(q, sZ, FL_PAIR, sPAIR)
    q("buffer_load_dword v%d, v%d, s[8:11], s%d offen sc1" % (T0 + 1, ZER, sZ))
    q("s_branch AT_SWITCH_RET")
    q.label("AT_SW3")
    q("s_cmp_eq_u32 s%d, 2" % sACT)
    q("s_cbranch_scc1 AT_SW_Q")
    so, vo = prod_set("wo")
    JQ(so + vo)
    q("s_cmp_eq_u32 s%d, 1" % sACT)
    q("s_cbranch_scc0 AT_SWITCH_RET")
    q("s_waitcnt vmcnt(8)")
    poll(q, sZ, 1, T0 + 1, ZER, sX, sY, "AT_POLLP", first_loaded=True, acquire=True)
    op_base(q)
    for f in range(16):
        if f % 4 == 0 and f:
            q("s_add_u32 s%d, s%d, 4096" % (sX, sX))
        q("buffer_load_dwordx4 %s, v%d, s[8:11], s%d offen offset:%d sc1" % (vr(MRG + 4 * f), L16, sX, (f % 4) * 1024))
    q("s_add_u32 s%d, s%d, 4096" % (sX, sX))
    q("buffer_load_dwordx4 %s, v%d, s[8:11], s%d offen sc1" % (vr(XT), L16, sX))
    q("s_branch AT_SWITCH_RET")
    q.label("AT_SW_Q")
    so, vo = prod_set("wq")
    JQ(so + vo)
    JQ(h_loads(sT2, range(8)))
    q("s_branch AT_SWITCH_RET")

    q.label("AT_RARE")
    q("s_nop 7")
    for qt in range(2):
        D, Fc = TMP + qt, TMP + 2 + qt
        rowmax(q, qt, D)
        q("v_max_f32 v%d, 0, v%d" % (D, D))
        q("v_sub_f32 v%d, 0, v%d" % (Fc, D))
        q("v_exp_f32 v%d, v%d" % (Fc, Fc))
        for r in range(4):
            q("v_sub_f32 v%d, v%d, v%d" % (NEGM + 4 * qt + r, NEGM + 4 * qt + r, D))
        q("v_mul_f32 v%d, v%d, v%d" % (LS + qt, LS + qt, Fc))
        for kt in range(2):
            for r in range(4):
                s = Sreg(kt, qt) + r
                q("v_sub_f32 v%d, v%d, v%d" % (s, s, D))
    for dt in range(16):
        for qt in range(2):
            for r in range(4):
                q("v_accvgpr_read_b32 v%d, a%d" % (TMP + 4 + r, Oreg(dt, qt) + r))
            for r in range(4):
                q("v_mul_f32 v%d, v%d, v%d" % (TMP + 4 + r, TMP + 4 + r, TMP + 2 + qt))
            for r in range(4):
                q("v_accvgpr_write_b32 a%d, v%d" % (Oreg(dt, qt) + r, TMP + 4 + r))
    JQ(ex + ad)
    q("s_branch AT_RARE_RET")


def Gaps_slice(G, mf, a, b):
    out = []
    for k in range(a, b):
        out.append(mf[k])
        out.extend(G.ordered(k))
    return "\n".join(out)
```

```python
from fused_common import *

XB = [32, 96]
WB = [64, 128]
XN, FLG, XOFF, MOFF, HOFF, VALID, MV, ZV = 160, 176, 177, 178, 179, 212, 180, 213
sKB, sWHICH = 27, 26


def entry(p, st):
    p("s_cmp_ge_u32 s2, 256")
    p("s_cbranch_scc1 K_END")
    st(0)
    p("s_load_dwordx4 s[48:51], s[0:1], 0")
    p("s_load_dwordx2 s[%d:%d], s[0:1], 16" % (pWQ, pWQ + 1))
    p("s_load_dwordx4 s[40:43], s[0:1], 24")
    p("s_load_dwordx2 s[%d:%d], s[0:1], 40" % (pWO, pWO + 1))
    p("s_load_dwordx4 s[%d:%d], s[0:1], 56" % (pW1, pW1 + 3))
    p("s_load_dwordx4 s[36:39], s[0:1], 72")
    p("s_load_dwordx2 s[%d:%d], s[0:1], 88" % (pOUT, pOUT + 1))
    p("s_load_dwordx2 s[16:17], s[0:1], 96")
    p("s_load_dwordx2 s[%d:%d], s[0:1], 104" % (pWS, pWS + 1))
    p("v_and_b32 v1, 63, v0")
    p("v_lshrrev_b32 v30, 6, v0")
    p("v_readfirstlane_b32 s%d, v30" % sWAVE)
    p("s_and_b32 s3, s2, 7")
    p("s_lshr_b32 s%d, s2, 3" % sROLE)
    p("s_and_b32 s%d, s%d, 1" % (sHEAD, sROLE))
    p("s_lshl_b32 s3, s3, 1")
    p("s_add_u32 s%d, s%d, s3" % (sHEAD, sHEAD))
    p("s_lshr_b32 s%d, s%d, 1" % (sROLE, sROLE))
    p("s_lshr_b32 s%d, s%d, 1" % (sKB, sROLE))
    p("s_mul_i32 s%d, s%d, 5" % (sKB, sKB))
    p("s_and_b32 s%d, s%d, 7" % (sKB, sKB))
    p("s_and_b32 s%d, s%d, 1" % (sWHICH, sROLE))


def gen(p, st, hooks, touch=False, slow=False):
    p("v_lshrrev_b32 v31, 5, v1")
    p("v_and_b32 v29, 31, v1")
    p("v_lshlrev_b32 v28, 3, v30")
    p("v_add_u32 v28, v28, v31")
    for j in range(4):
        p("v_add_u32 v24, %d, v28" % (2 * j))
        p("v_and_b32 v25, 3, v24")
        p("v_bfe_u32 v26, v24, 3, 1")
        p("v_lshl_add_u32 v25, v26, 2, v25")
        p("v_lshlrev_b32 v25, 1, v25")
        p("v_xor_b32 v25, v29, v25")
        p("v_lshlrev_b32 v25, 4, v25")
        p("v_lshl_add_u32 v%d, v24, 13, v25" % (2 + j))
    p("v_lshrrev_b32 v28, 3, v1")
    p("v_lshl_add_u32 v28, v30, 5, v28")
    p("v_and_b32 v26, 7, v1")
    for j in range(4):
        p("v_add_u32 v24, %d, v28" % (8 * j))
        p("v_bfe_u32 v25, v24, 1, 3")
        p("v_xor_b32 v25, v26, v25")
        p("v_lshlrev_b32 v25, 4, v25")
        p("v_lshl_add_u32 v%d, v24, 11, v25" % (6 + j))
    p("v_lshrrev_b32 v24, 2, v29")
    p("v_and_b32 v25, 3, v1")
    p("v_lshlrev_b32 v26, 7, v24")
    p("v_lshl_add_u32 v%d, v25, 4, v26" % MOFF)
    p("s_lshl_b32 s3, s2, 3")
    p("v_lshl_add_u32 v27, v30, 1, v31")
    p("v_add_u32 v27, s3, v27")
    p("v_mul_u32_u24 v26, 896, v27")
    p("v_lshrrev_b32 v28, 1, v%d" % MOFF)
    p("v_add_u32 v%d, v26, v28" % XOFF)
    p("v_lshrrev_b32 v26, 4, v27")
    p("v_mul_u32_u24 v26, 14336, v26")
    p("v_lshl_add_u32 v26, v24, 10, v26")
    p("v_lshl_add_u32 v26, v25, 8, v26")
    p("v_and_b32 v27, 15, v27")
    p("v_lshl_add_u32 v%d, v27, 4, v26" % HOFF)
    p("v_cmp_gt_u32 vcc, 28, v29")
    p("v_mov_b32 v26, 0x7f000000")
    p("v_mov_b32 v%d, 0" % ZV)
    p("v_cndmask_b32 v%d, v26, v%d, vcc" % (XOFF, XOFF))
    p("v_cndmask_b32 v%d, v26, v%d, vcc" % (HOFF, HOFF))
    p("v_cndmask_b32 v%d, 0, 1.0, vcc" % VALID)
    p("s_waitcnt lgkmcnt(0)")
    srd(p, 12, 50, 51, 2048 * 1024 * 2)
    p("s_mov_b32 s%d, s48" % pX)
    p("s_mov_b32 s%d, s49" % (pX + 1))
    p("s_cmp_eq_u32 s%d, 0" % sWHICH)
    p("s_cselect_b32 s40, s40, s42")
    p("s_cselect_b32 s41, s41, s43")
    srd(p, 4, 40, 41, 1024 * 4096 * 2)
    srd(p, 8, pWS, pWS + 1, WS_BYTES)
    srd(p, 44, pX, pX + 1, H_BYTES)
    for k, off in enumerate((0, 32, 448, 480)):
        p("buffer_load_dwordx2 %s, v%d, s[44:47], 0 offen offset:%d" % (vr(MV + 2 * k, 2), XOFF, off))
    p("s_sub_u32 s25, s%d, 12" % sROLE)
    p("s_lshl_b32 s25, s25, 4")
    p("s_add_u32 s25, s25, s%d" % sHEAD)
    p("s_cmp_lt_u32 s25, 42")
    p("s_cbranch_scc0 KV_NOMOD1")
    srd(p, 44, 36, 37, 896)
    p("v_lshrrev_b32 v24, 3, v0")
    p("v_mul_u32_u24 v25, 28, v24")
    p("buffer_load_dwordx4 v[96:99], v25, s[44:47], 0 offen")
    p("buffer_load_dwordx3 v[100:102], v25, s[44:47], 0 offen offset:16")
    srd(p, 44, 38, 39, 448 * 2688 * 2)
    p("v_mul_u32_u24 v25, %d, v24" % (14 * 5376))
    p("v_and_b32 v24, 7, v0")
    p("v_lshl_add_u32 v25, v24, 4, v25")
    p("s_lshl_b32 s3, s25, 7")
    for i in range(14):
        p("buffer_load_dwordx4 %s, v25, s[44:47], s3 offen" % vr(32 + 4 * i))
        p("s_add_u32 s3, s3, 5376")
    p.label("KV_NOMOD1")
    p("s_lshl_b32 s30, s%d, 12" % sWAVE)
    p("s_add_u32 s31, s30, 0x10000")
    p("s_lshl_b32 s28, s%d, 9" % sHEAD)
    p("s_lshl_b32 s29, s%d, 19" % sKB)

    def dma_w(slot, j):
        return ["s_add_u32 m0, s30, %d" % (slot * 16384 + j * 1024),
                "buffer_load_dwordx4 v%d, s[4:7], s28 offen lds" % (2 + j)]

    def dma_x(e, j):
        return ["s_add_u32 m0, s36, %d" % (e * 16384 + j * 1024),
                "buffer_load_dwordx4 v%d, s[12:15], s%d offen lds" % (6 + j, 35 if e else 29)]

    p("s_mov_b32 s36, s31")
    p("s_add_u32 s35, s29, 0x40000")
    for j in range(4):
        p("\n".join(dma_x(0, j)))
    for g in range(4):
        for j in range(4):
            p("\n".join(dma_w(g, j)))
        p("s_add_u32 s28, s28, 0x40000")
        if g % 2 == 0:
            for j in range(4):
                p("\n".join(dma_x(1, j)))
        else:
            p("s_add_u32 s36, s36, 0x8000")
            p("s_add_u32 s29, s29, 128")
            p("s_add_u32 s35, s35, 128")
            for j in range(4):
                p("\n".join(dma_x(0, j)))
    if touch:
        srd(p, 44, pWQ, pWQ + 1, 448 * 4096 * 2)
        p("v_min_u32 v214, 27, v1")
        p("v_lshlrev_b32 v214, 7, v214")
        p("s_lshl_b32 s3, s2, 2")
        p("s_add_u32 s3, s3, s%d" % sWAVE)
        p("s_mul_i32 s3, s3, 3584")
        p("buffer_load_dword v220, v214, s[44:47], s3 offen")
    p("s_mov_b32 s34, 0x10000")
    p("s_mov_b32 s32, 0")
    p("s_mov_b32 s33, 8")
    p("v_lshrrev_b32 v28, 1, v30")
    p("v_and_b32 v27, 15, v1")
    p("v_lshl_add_u32 v28, v28, 7, v27")
    p("v_lshlrev_b32 v28, 7, v28")
    p("v_add_u32 v28, 0x10000, v28")
    p("v_bfe_u32 v24, v1, 1, 3")
    p("v_lshrrev_b32 v26, 4, v1")
    for ks in range(2):
        p("v_add_u32 v25, %d, v26" % (4 * ks))
        p("v_xor_b32 v25, v25, v24")
        p("v_lshl_add_u32 v%d, v25, 4, v28" % (10 + ks))
    p("v_bfe_u32 v28, v1, 2, 2")
    p("v_lshl_add_u32 v24, v26, 3, v28")
    p("v_lshlrev_b32 v24, 9, v24")
    p("v_and_b32 v25, 1, v30")
    p("v_lshl_add_u32 v24, v25, 8, v24")
    p("v_and_b32 v25, 3, v1")
    p("v_lshl_add_u32 v24, v25, 3, v24")
    p("v_bfe_u32 v25, v1, 2, 3")
    p("v_lshl_add_u32 v24, v25, 5, v24")
    for nt in range(8):
        p("v_xor_b32 v%d, %d, v24" % (16 + nt, nt * 32))
    for i in range(4):
        p("v_mov_b32 v%d, 0" % (216 + i))
    for i in range(16):
        p("v_mfma_f32_32x32x16_bf16 a[%d:%d], v[216:219], v[216:219], 0" % (16 * i, 16 * i + 15))
    srd(p, 44, 16, 17, 256)
    p("s_getreg_b32 s3, hwreg(HW_REG_XCC_ID, 0, 4)")
    p("s_mul_i32 s37, s3, s3")
    p("s_lshl_b32 s37, s37, 10")
    p("s_add_u32 s37, s37, s3")
    p("s_add_u32 s37, s37, 0x1000000")
    p("s_lshl_b32 s%d, s37, 4" % sFAST)
    p("s_lshl_b32 s39, s%d, 2" % sHEAD)
    p("s_add_u32 s39, s39, 64")
    p("s_cmp_lg_u32 s%d, 0" % sWAVE)
    p("s_cbranch_scc1 KV_NOREG")
    p("v_mov_b32 v214, s37")
    p("s_mov_b64 exec, 1")
    p("buffer_atomic_add v214, v%d, s[44:47], s39 offen sc1" % ZV)
    p("s_mov_b64 exec, -1")
    p.label("KV_NOREG")
    p("s_waitcnt vmcnt(%d)" % (37 if touch else 36))
    unpack(p, XN, MV, 8)
    p("v_add_f32 v24, v%d, v%d" % (XN, XN + 1))
    for i in range(2, 16):
        p("v_add_f32 v24, v24, v%d" % (XN + i))
    xsum_row32(p, 24, 25)
    p("v_mul_f32 v24, %s, v24" % f32bits(1.0 / 448))
    p("v_mov_b32 v26, 0")
    for i in range(16):
        p("v_sub_f32 v%d, v%d, v24" % (XN + i, XN + i))
        p("v_fmac_f32 v26, v%d, v%d" % (XN + i, XN + i))
    p("v_mul_f32 v26, v26, v%d" % VALID)
    xsum_row32(p, 26, 25)
    p("v_mov_b32 v27, %s" % f32bits(1e-5))
    p("v_fmac_f32 v27, %s, v26" % f32bits(1.0 / 448))
    p("v_rsq_f32 v27, v27")
    for i in range(16):
        p("v_mul_f32 v%d, v%d, v27" % (XN + i, XN + i))
    p("s_cmp_lt_u32 s25, 42")
    p("s_cbranch_scc0 KV_NOMOD2")
    unpack(p, 104, 96, 7)
    for i in range(14):
        p("v_mul_f32 v%d, %s, v%d" % (128 + i, f32bits(-math.log2(math.e)), 104 + i))
    for i in range(14):
        p("v_exp_f32 v%d, v%d" % (128 + i, 128 + i))
    for i in range(14):
        p("v_add_f32 v%d, 1.0, v%d" % (128 + i, 128 + i))
    for i in range(14):
        p("v_rcp_f32 v%d, v%d" % (128 + i, 128 + i))
    for i in range(14):
        p("v_mul_f32 v%d, v%d, v%d" % (104 + i, 104 + i, 128 + i))
    for i in range(14):
        p("v_cvt_pk_bf16_f32 v%d, v%d, v%d" % (128 + i, 104 + i, ZV))
        p("v_cvt_pk_bf16_f32 v%d, v%d, v%d" % (144 + i, ZV, 104 + i))
    for d in range(8):
        p("v_mov_b32 v%d, 0" % (120 + d))
    for i in range(14):
        for d in range(4):
            p("v_dot2c_f32_bf16 v%d, v%d, v%d" % (120 + 2 * d, 128 + i, 32 + 4 * i + d))
            p("v_dot2c_f32_bf16 v%d, v%d, v%d" % (121 + 2 * d, 144 + i, 32 + 4 * i + d))
    p("v_lshlrev_b32 v24, 5, v0")
    p("v_add_u32 v24, 0x24000, v24")
    p("s_nop 1")
    p("ds_write_b128 v24, v[120:123]")
    p("ds_write_b128 v24, v[124:127] offset:16")
    p("s_waitcnt lgkmcnt(0)")
    p("s_barrier")
    p("s_cmp_lg_u32 s%d, 0" % sWAVE)
    p("s_cbranch_scc1 KV_NOMOD2")
    p("v_lshlrev_b32 v25, 2, v1")
    p("v_add_u32 v24, 0x24000, v25")
    for i in range(32):
        p("ds_read_b32 v%d, v24 offset:%d" % (32 + i, 256 * i))
    p("s_waitcnt lgkmcnt(0)")
    for i in range(1, 32):
        p("v_add_f32 v32, v32, v%d" % (32 + i))
    round_bf16(p, 32)
    p("s_lshl_b32 s3, s25, 8")
    p("buffer_store_dword v32, v25, s[8:11], s3 offen offset:%d sc1" % WS_MOD)
    p("s_cmp_lg_u32 s25, 0")
    p("s_cbranch_scc1 KV_NOMOD2")
    p("v_lshlrev_b32 v25, 4, v1")
    p("s_mov_b32 s3, 0x%x" % WS_FLAG)
    for i in range(NFLAG_KB):
        p("buffer_store_dwordx4 v[216:219], v25, s[8:11], s3 offen sc1")
        p("s_add_u32 s3, s3, 1024")
    p.label("KV_NOMOD2")

    def reads(buf, xks, wslot):
        out = []
        for i in range(8):
            out.append("ds_read_b128 v[%d:%d], v14 offset:%d" % (XB[buf] + 4 * i, XB[buf] + 4 * i + 3, i * 2048))
            for h in range(2):
                out.append("ds_read_b64_tr_b16 v[%d:%d], v%d offset:%d" % (
                    WB[buf] + 4 * i + 2 * h, WB[buf] + 4 * i + 2 * h + 1, 16 + i, wslot * 16384 + h * 2048))
        return out

    st(1)
    p("s_waitcnt vmcnt(%d)" % (25 if touch else 24))
    p("s_barrier")
    p("v_add_u32 v14, s32, v10")
    p("\n".join(reads(0, 0, 0)))
    p("s_cmp_eq_u32 s%d, 0" % sWHICH)
    p("s_cbranch_scc0 KV_LOOP_V")

    def mfmas(buf, isk):
        out = []
        for i in range(8):
            for j in range(8):
                n = (i * 8 + j) if isk else (j * 8 + i)
                acc = ar(n * 4)
                x = vr(XB[buf] + 4 * i)
                w = vr(WB[buf] + 4 * j)
                out.append("%s %s, %s, %s, %s" % ((MF, acc, w, x, acc) if isk else (MF, acc, x, w, acc)))
        return out

    def loop(isk, name):
        p(".p2align 6")
        p.label(name)
        for t in range(4):
            p("s_waitcnt vmcnt(16) lgkmcnt(0)")
            p("s_barrier")
            G = Gaps(64)
            if t & 1:
                G.at(0, "s_add_u32 s32, s32, 0x8000", "s_cmp_eq_u32 s32, 0x18000", "s_cselect_b32 s32, 0, s32")
                G.at(3, "s_add_u32 s34, s34, 0x8000", "s_cmp_eq_u32 s34, 0x18000", "s_cselect_b32 s34, 0, s34")
                G.at(5, "s_add_u32 s36, s31, s34", "s_add_u32 s29, s29, 128", "s_add_u32 s35, s35, 128")
            G.at(1, "v_add_u32 v14, s32, v%d" % (10 + ((t + 1) & 1)))
            G.put(range(2, 50, 2), reads((t + 1) & 1, (t + 1) & 1, (t + 1) % 4))
            e = 0 if t & 1 else 1
            d = [dma_w(t, j) for j in range(4)] + [dma_x(e, j) for j in range(4)]
            for k in range(8):
                G.at(8 + 6 * k, d[k][0])
                G.at(9 + 6 * k, d[k][1])
            G.at(61, "s_add_u32 s28, s28, 0x40000")
            if t == 3:
                G.at(62, "s_sub_u32 s33, s33, 1")
            p(G.weave(mfmas(t & 1, isk), "kv" if isk and t == 1 else None))
        p("s_branch KV_STUB")

    loop(True, "KV_LOOP_K")
    loop(False, "KV_LOOP_V")
    p.label("KV_STUB")
    p("s_cmp_eq_u32 s33, 7")
    p("s_cbranch_scc0 KV_ST6")
    st("k7")
    p("s_cmp_lt_u32 s25, 42")
    p("s_cbranch_scc0 KV_STRET")
    p("s_mov_b32 s3, 0")
    signal(p, 3, 214, 215, "KV_SIGMOD", srd_=44)
    p("s_branch KV_STRET")
    p.label("KV_ST6")
    p("s_cmp_eq_u32 s33, 5")
    p("s_cbranch_scc0 KV_ST5")
    st("k6")
    p("buffer_load_dword v%d, v%d, s[44:47], 0 offen sc1" % (FLG, ZV))
    p("buffer_load_dword v215, v%d, s[44:47], s39 offen sc1" % ZV)
    p("s_branch KV_STRET")
    p.label("KV_ST5")
    p("s_cmp_eq_u32 s33, 4")
    p("s_cbranch_scc0 KV_ST4")
    st("k5")
    p("v_readfirstlane_b32 s3, v215")
    p("s_cmp_eq_u32 s3, s%d" % sFAST)
    p("s_cselect_b32 s%d, %d, 0" % (sFAST, 0 if slow else 1))
    p("s_mov_b32 s3, 0")
    poll(p, 3, 42, FLG, ZV, 37, 38, "KV_POLLMOD", srd_=44, first_loaded=True)
    for v, idx in ((0, 1), (16, 0)):
        for k, off in enumerate((0, 64, 896, 960)):
            p("buffer_load_dwordx4 %s, v%d, s[8:11], 0 offen offset:%d sc1" % (vr(MV + v + 4 * k), MOFF, WS_MOD + idx * 1792 + off))
    p("s_branch KV_STRET")
    p.label("KV_ST4")
    p("s_cmp_eq_u32 s33, 3")
    p("s_cbranch_scc0 KV_ST3")
    st("k4")
    for i in range(16):
        p("v_add_f32 v%d, 1.0, v%d" % (MV + i, MV + i))
        round_bf16(p, MV + i)
        p("v_fma_f32 v%d, v%d, v%d, v%d" % (XN + i, XN + i, MV + i, MV + 16 + i))
        p("v_mul_f32 v%d, %s, v%d" % (XN + i, f32bits(QSCALE), XN + i))
    for d in range(8):
        p("v_cvt_pk_bf16_f32 v%d, v%d, v%d" % (MV + d, XN + 2 * d, XN + 2 * d + 1))
    p("s_mov_b32 s3, 0x%x" % WS_H)
    p("buffer_store_dwordx4 %s, v%d, s[8:11], s3 offen sc1" % (vr(MV), HOFF))
    p("s_mov_b32 s3, 0x%x" % (WS_H + 7168))
    p("buffer_store_dwordx4 %s, v%d, s[8:11], s3 offen sc1" % (vr(MV + 4), HOFF))
    p("s_branch KV_STRET")
    p.label("KV_ST3")
    p("s_cmp_eq_u32 s33, 2")
    p("s_cbranch_scc0 KV_ST2")
    st("k3")
    p("s_lshr_b32 s37, s2, 4")
    flag_off(p, 3, FL_H, 37)
    signal(p, 3, 214, 215, "KV_SIGH")
    p("s_branch KV_STRET")
    p.label("KV_ST2")
    p.label("KV_ST1")
    p("s_cmp_eq_u32 s33, 0")
    p("s_cbranch_scc1 KV_DONE")
    p("s_cmp_eq_u32 s33, 1")
    p("s_cbranch_scc0 KV_STRET")
    st("k1")
    p("s_mov_b32 s4, s%d" % pWQ)
    p("s_and_b32 s5, s%d, 0xffff" % (pWQ + 1))
    p("s_mov_b32 s6, 0x%x" % (448 * 4096 * 2))
    p("s_lshl_b32 s28, s%d, 9" % sHEAD)
    p("s_add_u32 s30, s30, 98304")
    p("s_mov_b32 s14, 0")
    p("s_mov_b32 s31, 0x28000")
    p("s_mov_b32 s36, 0x28000")
    p("v_lshlrev_b32 v28, 3, v30")
    p("v_add_u32 v28, v28, v31")
    for j in range(4):
        p("v_add_u32 v24, %d, v28" % (2 * j))
        p("v_and_b32 v25, 7, v24")
        p("v_lshlrev_b32 v25, 1, v25")
        p("v_xor_b32 v25, v29, v25")
        p("v_lshlrev_b32 v25, 4, v25")
        p("v_lshl_add_u32 v%d, v24, 13, v25" % (2 + j))
    hooks["st1"]()
    st("k1b")
    p.label("KV_STRET")
    p("s_cmp_eq_u32 s%d, 0" % sWHICH)
    p("s_cbranch_scc1 KV_LOOP_K")
    p("s_branch KV_LOOP_V")
    p.label("KV_DONE")
    st(2)


def epi_setup(p):
    p("s_lshl_b32 s23, s%d, 6" % sHEAD)
    p("s_lshr_b32 s16, s%d, 1" % sROLE)
    p("s_mul_i32 s16, s16, 5")
    p("s_and_b32 s16, s16, 7")
    p("s_lshl_b32 s16, s16, 3")
    p("s_add_u32 s23, s23, s16")
    p("s_lshr_b32 s16, s%d, 1" % sWAVE)
    p("s_lshl_b32 s16, s16, 2")
    p("s_add_u32 s23, s23, s16")
    p("s_lshl_b32 s23, s23, 15")
    p("s_add_u32 s23, s23, 0x%x" % WS_KV)
    p("s_and_b32 s16, s%d, 1" % sWAVE)
    p("s_lshl_b32 s16, s16, 12")
    p("s_add_u32 s23, s23, s16")
    p("s_add_u32 s17, s23, s16")
    p("s_add_u32 s17, s17, 16384")
    p("s_bitcmp0_b32 s%d, 0" % sROLE)
    p("s_cselect_b32 s23, s23, s17")
    p("s_mov_b32 s16, 32768")
    p("s_cselect_b32 s46, 1024, s16")
    p("s_mov_b32 s16, %d" % (1024 - 3 * 32768))
    p("s_cselect_b32 s47, %d, s16" % (8192 - 3 * 1024))
    p("s_cselect_b32 s17, %d, s16" % (32768 - 8192 - 3 * 1024))


def epi_conv(n, dst, T):
    o = ["v_accvgpr_read_b32 v%d, a%d" % (T + r, n * 8 + r) for r in range(8)]
    o += ["v_cvt_pk_bf16_f32 v%d, v%d, v%d" % (dst + r, T + 2 * r, T + 2 * r + 1) for r in range(4)]
    return o


def epi_store(n, src, L16):
    o, u = n >> 2, n & 3
    return ["buffer_store_dwordx4 %s, v%d, s[8:11], s23 offen" % (vr(src), L16),
            "s_add_u32 s23, s23, s%d" % (46 if u < 3 else (47 if (o & 1) == 0 else 17))]
```

```python
from fused_common import *
import phase_attn as A

L16, ZER = A.L16, A.ZER
sRR, sRW = A.sRR, A.sRW


R_, E_, G_, FO, XO, MO, FO2, XO2 = 232, 233, 234, 235, 236, 237, 238, 239
XR, GA, SC, SH, X, L = 176, 184, 200, 216, 240, 48


def pre(p):
    flag_off(p, 30, FL_P, A.sT)
    flag_off(p, 31, FL_P, sHEAD)
    p("v_and_b32 v%d, 7, v1" % R_)
    p("v_lshrrev_b32 v%d, 5, v1" % E_)
    p("v_bfe_u32 v%d, v1, 3, 2" % G_)
    p("s_lshl_b32 s28, s%d, 4" % sHEAD)
    p("s_add_u32 s28, s28, s%d" % sROLE)
    p("s_lshr_b32 s3, s28, 1")
    p("s_mul_i32 s3, s3, 14336")
    p("s_and_b32 s27, s28, 1")
    p("s_lshl_b32 s27, s27, 7")
    p("s_add_u32 s3, s3, s27")
    p("s_lshl_b32 s27, s%d, 11" % sWAVE)
    p("s_add_u32 s3, s3, s27")
    p("v_lshlrev_b32 v%d, 10, v%d" % (FO, E_))
    p("v_lshl_add_u32 v%d, v%d, 8, v%d" % (FO, G_, FO))
    p("v_lshl_add_u32 v%d, v%d, 4, v%d" % (FO, R_, FO))
    p("v_add_u32 v%d, s3, v%d" % (FO, FO))
    p("v_lshlrev_b32 v%d, 7, v%d" % (MO, E_))
    p("v_lshl_add_u32 v%d, v%d, 4, v%d" % (MO, G_, MO))
    p("s_lshl_b32 s3, s%d, 8" % sWAVE)
    p("v_add_u32 v%d, s3, v%d" % (MO, MO))
    p("s_lshl_b32 s3, s28, 3")
    p("v_add_u32 v%d, s3, v%d" % (XO, R_))
    p("v_mul_u32_u24 v%d, 896, v%d" % (XO, XO))
    p("v_lshrrev_b32 v%d, 1, v%d" % (XO2, MO))
    p("v_add_u32 v%d, v%d, v%d" % (XO, XO, XO2))
    p("s_cmp_eq_u32 s%d, 3" % sWAVE)
    p("s_cselect_b32 s28, 0x70000000, 0")
    p("s_cselect_b32 s29, 0, 1.0")
    p("v_add_u32 v%d, s28, v%d" % (FO2, FO))
    p("v_add_u32 v%d, 8192, v%d" % (FO2, FO2))
    p("v_add_u32 v%d, s28, v%d" % (XO2, XO))
    srd(p, 12, pX, pX + 1, H_BYTES)
    for k, (vo, off) in enumerate(((XO, 0), (XO, 32), (XO2, 512), (XO2, 544))):
        p("buffer_load_dwordx2 %s, v%d, s[12:15], 0 offen offset:%d" % (vr(XR + 2 * k, 2), vo, off))
    for base, idx in ((GA, 2), (SC, 4), (SH, 3)):
        p("s_mov_b32 s3, %d" % (WS_MOD + idx * 1792))
        for k, off in enumerate((0, 64, 1024, 1088)):
            p("buffer_load_dwordx4 %s, v%d, s[8:11], s3 offen offset:%d sc1" % (vr(base + 4 * k), MO, off))


def gen(p, st):
    J = lambda l: p("\n".join(l))
    p("s_waitcnt vmcnt(14)")
    for i in range(16):
        p("v_mov_b32 v%d, 0" % (X + i))
        p("v_add_f32 v%d, 1.0, v%d" % (SC + i, SC + i))
        round_bf16(p, SC + i)
    p("s_waitcnt vmcnt(0)")
    p("s_barrier")
    signal(p, 30, 26, 27, "T_SIGP")
    st(8)
    poll(p, 31, 16, 26, ZER, 32, 33, "T_POLLP")
    st(9)
    p("s_mov_b32 s3, 0x%x" % WS_PART)
    for h in range(16):
        p("buffer_load_dwordx4 %s, v%d, s[8:11], s3 offen sc1" % (vr(L + 8 * h), FO))
        p("buffer_load_dwordx4 %s, v%d, s[8:11], s3 offen sc1" % (vr(L + 8 * h + 4), FO2))
        p("s_add_u32 s3, s3, 0x%x" % H_BYTES)
    for j in range(4):
        J(A.dma(j))
    p("s_mov_b32 s34, 0x3f80")
    p("s_mov_b32 s35, 0x3f800000")
    for h in range(16):
        if h % 2 == 0:
            p("s_waitcnt vmcnt(%d)" % (4 + 28 - 2 * h))
        for d in range(8):
            p("v_dot2c_f32_bf16 v%d, s34, v%d" % (X + 2 * d, L + 8 * h + d))
            p("v_dot2c_f32_bf16 v%d, s35, v%d" % (X + 2 * d + 1, L + 8 * h + d))
    st(10)
    unpack(p, L, XR, 8)
    p("s_nop 2")
    for i in range(16):
        round_bf16(p, X + i)
        p("v_mul_f32 v%d, v%d, v%d" % (X + i, X + i, GA + i))
        round_bf16(p, X + i)
        p("v_add_f32 v%d, v%d, v%d" % (X + i, X + i, L + i))
    for d in range(8):
        p("v_cvt_pk_bf16_f32 v%d, v%d, v%d" % (XR + d, X + 2 * d, X + 2 * d + 1))
    p("s_mov_b32 s3, 0x%x" % WS_X1)
    p("buffer_store_dwordx4 %s, v%d, s[8:11], s3 offen" % (vr(XR), FO))
    p("buffer_store_dwordx4 %s, v%d, s[8:11], s3 offen" % (vr(XR + 4), FO2))
    unpack(p, X, XR, 8)
    p("s_sub_u32 s3, s%d, s%d" % (sRW, A.sW1K))
    p("s_add_u32 s3, s3, 16384")
    p("v_lshl_add_u32 v25, v%d, 4, s3" % R_)
    p("s_lshl_b32 s3, s%d, 2" % sWAVE)
    p("v_add_u32 v26, s3, v25")
    p("v_add_f32 v36, v%d, v%d" % (X, X + 1))
    for i in range(2, 16):
        p("v_add_f32 v36, v36, v%d" % (X + i))
    xsum_345(p, 36, 37)
    p("ds_write_b32 v26, v36")
    p("s_waitcnt lgkmcnt(0)")
    p("s_barrier")
    p("ds_read_b128 v[40:43], v25")
    p("s_waitcnt lgkmcnt(0)")
    p("v_add_f32 v40, v40, v41")
    p("v_add_f32 v42, v42, v43")
    p("v_add_f32 v40, v40, v42")
    p("v_mul_f32 v40, %s, v40" % f32bits(1.0 / 448))
    p("v_mov_b32 v36, 0")
    p("v_mov_b32 v38, 0")
    for i in range(16):
        p("v_sub_f32 v%d, v%d, v40" % (X + i, X + i))
        p("v_fmac_f32 v%d, v%d, v%d" % (36 if i < 8 else 38, X + i, X + i))
    p("v_fmac_f32 v36, s29, v38")
    xsum_345(p, 36, 37)
    p("ds_write_b32 v26, v36 offset:128")
    p("s_waitcnt lgkmcnt(0)")
    p("s_barrier")
    p("ds_read_b128 v[40:43], v25 offset:128")
    p("s_waitcnt lgkmcnt(0)")
    p("v_add_f32 v40, v40, v41")
    p("v_add_f32 v42, v42, v43")
    p("v_add_f32 v40, v40, v42")
    p("v_mov_b32 v41, %s" % f32bits(1e-5))
    p("v_fmac_f32 v41, %s, v40" % f32bits(1.0 / 448))
    p("v_rsq_f32 v41, v41")
    for i in range(16):
        p("v_mul_f32 v%d, v%d, v41" % (X + i, X + i))
        p("v_fma_f32 v%d, v%d, v%d, v%d" % (X + i, X + i, SC + i, SH + i))
    for d in range(8):
        p("v_cvt_pk_bf16_f32 v%d, v%d, v%d" % (L + d, X + 2 * d, X + 2 * d + 1))
    p("s_mov_b32 s3, 0x%x" % WS_H2)
    p("buffer_store_dwordx4 %s, v%d, s[8:11], s3 offen" % (vr(L), FO))
    p("buffer_store_dwordx4 %s, v%d, s[8:11], s3 offen" % (vr(L + 4), FO2))
    flag_off(p, 30, FL_H2, sHEAD)
    B1, CUR = 16, 24
    p("v_lshrrev_b32 v36, 2, v1")
    p("v_lshlrev_b32 v37, 8, v36")
    p("v_and_b32 v38, 3, v1")
    p("v_lshl_add_u32 v37, v38, 3, v37")
    p("v_and_b32 v38, 7, v36")
    p("v_lshl_add_u32 v37, v38, 5, v37")
    p("s_waitcnt vmcnt(0)")
    p("s_barrier")
    signal(p, 30, 36, 38, "T_SIGH2", release=True)
    p("s_cmp_ge_u32 s%d, 14" % sROLE)
    p("s_cbranch_scc1 K_FIN")
    for x in range(8):
        p("v_xor_b32 v%d, %d, v37" % (B1 + x, 32 * x))
    st(11)

    H, ACC = 48, 160

    def cur1():
        return ["v_add_u32 v%d, s%d, v%d" % (CUR + x, sRR, B1 + x) for x in range(8)]

    def reads1(c):
        o = []
        for k in range(2):
            ks = 2 * c + k
            for ft in range(8):
                for i in range(2):
                    o.append("ds_read_b64_tr_b16 %s, v%d offset:%d" % (
                        ar((c & 1) * 64 + (k * 8 + ft) * 4 + 2 * i, 2), CUR + ft, (ks & 3) * 8192 + i * 4096))
        return o

    J(cur1() + reads1(0))
    p("s_lshl_b32 s22, s%d, 3" % sHEAD)
    p("s_lshl_b32 s3, s%d, 1" % sWAVE)
    p("s_add_u32 s22, s22, s3")
    p("s_mul_i32 s26, s22, 14336")
    p("s_add_u32 s26, s26, 0x%x" % WS_H2)
    p("s_add_u32 s27, s26, 14336")
    poll(p, 30, 16, 36, ZER, 32, 33, "T_POLLH2", acquire=True)
    for ks in range(14):
        for qt in range(2):
            if ks % 4 == 0 and ks:
                p("s_add_u32 s%d, s%d, 4096" % (26 + qt, 26 + qt))
            p("buffer_load_dwordx4 %s, v%d, s[8:11], s%d offen offset:%d sc1" % (vr(H + (ks * 2 + qt) * 4), L16, 26 + qt, (ks % 4) * 1024))
    st(12)
    for c in range(7):
        mf = []
        for k in range(2):
            ks = 2 * c + k
            for ft in range(8):
                for qt in range(2):
                    acc = vr(ACC + (qt * 8 + ft) * 4)
                    mf.append("%s %s, %s, %s, %s" % (MF, acc, ar((c & 1) * 64 + (k * 8 + ft) * 4), vr(H + (ks * 2 + qt) * 4), acc if ks else "0"))
        G = Gaps(32)
        p("s_waitcnt vmcnt(%d) lgkmcnt(%d)" % (24 - 4 * c, 0 if c == 0 else 8))
        if c < 6:
            if c & 1:
                J(A.RING_ADV)
                cs = cur1()
                G.at(0, cs[0], cs[1])
                for x in range(2, 8):
                    G.at(x - 1, cs[x])
                A.spread_reads(G, reads1(c + 1), list(range(1, 32)))
            else:
                A.spread_reads(G, reads1(c + 1), list(range(32)))
        G.at(12, "s_waitcnt lgkmcnt(%d)" % (8 if c < 6 else 0))
        p(G.weave(mf))
    p("s_barrier")
    p("v_lshrrev_b32 v36, 3, v1")
    p("v_bfe_u32 v37, v36, 1, 2")
    p("v_lshlrev_b32 v37, 1, v37")
    p("v_and_b32 v38, 7, v1")
    p("v_xor_b32 v37, v37, v38")
    p("v_lshlrev_b32 v37, 4, v37")
    p("v_mul_u32_u24 v36, 896, v36")
    p("v_add_u32 v3, v36, v37")
    srd(p, 4, pW2, pW2 + 1, 448 * 1792 * 2)
    p("s_lshr_b32 s28, s%d, 1" % sROLE)
    p("s_mul_i32 s24, s%d, 40960" % sWAVE)
    p("s_mul_i32 s21, s%d, %d" % (sWAVE, 14 * 32 * 896))
    p("s_lshl_b32 s3, s28, 7")
    p("s_add_u32 s21, s21, s3")

    def w2(k):
        o = []
        for j in range(4):
            o.append("s_add_u32 m0, s24, %d" % ((k % 10) * 4096 + j * 1024))
            o.append("s_add_u32 s29, s21, %d" % ((k * 32 + j * 8) * 896))
            o.append("buffer_load_dwordx4 v3, s[4:7], s29 offen lds")
        return o

    p("s_mul_i32 s26, s22, 57344")
    p("s_lshl_b32 s3, s%d, 12" % sROLE)
    p("s_add_u32 s26, s26, s3")
    p("s_add_u32 s26, s26, 0x%x" % WS_ACT)
    p("s_add_u32 s27, s26, 57344")
    p("s_mov_b32 s31, %s" % f32bits(-math.log2(math.e)))
    J(w2(0) + w2(1))
    for qt in range(2):
        for u in range(4):
            Aa = ACC + (qt * 8 + 2 * u) * 4
            T = 48 + ((qt * 4 + u) % 2) * 16
            for k in range(8):
                p("v_mul_f32 v%d, s31, v%d" % (T + k, Aa + k))
            for k in range(8):
                p("v_exp_f32 v%d, v%d" % (T + k, T + k))
            for k in range(8):
                p("v_add_f32 v%d, 1.0, v%d" % (T + k, T + k))
            for k in range(8):
                p("v_rcp_f32 v%d, v%d" % (T + k, T + k))
            for k in range(8):
                p("v_mul_f32 v%d, v%d, v%d" % (T + k, T + k, Aa + k))
            for d in range(4):
                p("v_cvt_pk_bf16_f32 v%d, v%d, v%d" % (T + 8 + d, T + 2 * d, T + 2 * d + 1))
            p("buffer_store_dwordx4 %s, v%d, s[8:11], s%d offen offset:%d" % (vr(T + 8), L16, 26 + qt, u * 1024))
            J(w2(2 + qt * 4 + u))
    flag_off(p, 30, FL_A, sHEAD)
    p("v_lshrrev_b32 v36, 2, v1")
    p("v_lshlrev_b32 v37, 7, v36")
    p("v_and_b32 v38, 3, v1")
    p("v_lshl_add_u32 v37, v38, 3, v37")
    p("v_bfe_u32 v38, v36, 1, 2")
    p("v_lshl_add_u32 v37, v38, 5, v37")
    for x in range(4):
        p("v_xor_b32 v%d, %d, v37" % (4 + x, 32 * x))
        p("v_add_u32 v%d, s24, v%d" % (4 + x, 4 + x))
    p("v_add_u32 v8, s24, v%d" % L16)
    p("s_waitcnt vmcnt(4)")
    p("s_barrier")
    signal(p, 30, 36, 38, "T_SIGA", release=True)
    st(13)

    WF, ACC = 16, 64
    p("s_lshl_b32 s22, s%d, 3" % sHEAD)
    p("s_and_b32 s3, s%d, 1" % sROLE)
    p("s_lshl_b32 s3, s3, 2")
    p("s_add_u32 s22, s22, s3")
    p("s_mul_i32 s25, s22, 57344")
    p("s_mul_i32 s3, s%d, 14336" % sWAVE)
    p("s_add_u32 s25, s25, s3")
    p("s_add_u32 s25, s25, 0x%x" % WS_ACT)
    p("s_add_u32 s22, s22, s%d" % sWAVE)
    p("s_mul_i32 s26, s22, 14336")
    p("s_lshl_b32 s3, s28, 11")
    p("s_add_u32 s26, s26, s3")
    p("s_add_u32 s26, s26, 0x%x" % WS_X1)
    p("buffer_load_dwordx4 v[128:131], v%d, s[8:11], s26 offen sc1" % L16)
    p("buffer_load_dwordx4 v[132:135], v%d, s[8:11], s26 offen offset:1024 sc1" % L16)
    p("v_lshrrev_b32 v11, 4, v1")
    p("v_lshlrev_b32 v11, 4, v11")
    p("s_lshl_b32 s3, s28, 8")
    p("s_add_u32 s26, s3, %d" % (WS_MOD + 5 * 448 * 4))
    for mt in range(4):
        p("buffer_load_dwordx4 %s, v11, s[8:11], s26 offen offset:%d sc1" % (vr(136 + 4 * mt), 64 * mt))

    def reads2(k):
        o = []
        for mt in range(4):
            for i in range(2):
                o.append("ds_read_b64_tr_b16 %s, v%d offset:%d" % (vr(160 + (k % 5) * 16 + mt * 4 + 2 * i, 2), 4 + mt, (k % 10) * 4096 + i * 2048))
        return o

    p("s_waitcnt vmcnt(6)")
    for k in range(4):
        J(reads2(k))
    p("s_waitcnt lgkmcnt(0)")
    for k in range(10, 14):
        J(w2(k))
    poll(p, 30, 14, 36, ZER, 32, 33, "T_POLLA", acquire=True)
    st(14)
    for k in range(14):
        for qt in range(4):
            off = qt * 57344 + k * 1024
            p("s_add_u32 s26, s25, %d" % (off & ~0xfff))
            p("buffer_load_dwordx4 %s, v%d, s[8:11], s26 offen offset:%d sc1" % (ar((k * 4 + qt) * 4), L16, off & 0xfff))
    for k in range(14):
        mf = []
        for mt in range(4):
            for qt in range(4):
                acc = vr(ACC + (qt * 4 + mt) * 4)
                mf.append("%s %s, %s, %s, %s" % (MF, acc, vr(160 + (k % 5) * 16 + mt * 4), ar((k * 4 + qt) * 4), acc if k else "0"))
        G = Gaps(16)
        p("s_waitcnt vmcnt(%d) lgkmcnt(%d)" % (52 - 4 * k, min(15, 8 * min(3, 13 - k))))
        if k + 4 < 14:
            G.put(range(0, 16, 2), reads2(k + 4))
        p(G.weave(mf))
    for t in range(16):
        p("ds_write_b128 v8, %s offset:%d" % (vr(ACC + 4 * t), 1024 * t))
    srd(p, 12, pOUT, pOUT + 1, H_BYTES)
    p("s_lshl_b32 s3, s%d, 12" % sWAVE)
    p("v_add_u32 v9, s3, v%d" % L16)
    p("v_add_u32 v10, 0x14000, v9")
    p("v_and_b32 v12, 15, v1")
    p("s_lshl_b32 s3, s22, 4")
    p("v_add_u32 v12, s3, v12")
    p("v_mul_u32_u24 v12, 896, v12")
    p("v_lshrrev_b32 v11, 1, v11")
    p("v_add_u32 v12, v12, v11")
    p("s_lshl_b32 s27, s28, 7")
    p("s_waitcnt lgkmcnt(0)")
    p("s_barrier")
    for w in range(4):
        for mt in range(4):
            p("ds_read_b128 %s, v%d offset:%d" % (vr(ACC + (w * 4 + mt) * 4), 9 + (w >> 1), (w & 1) * 40960 + mt * 1024))
    unpack(p, 160, 128, 8)
    p("s_waitcnt lgkmcnt(0)")
    for i in range(16):
        a = ACC + i
        p("v_add_f32 v%d, v%d, v%d" % (a, a, a + 16))
        p("v_add_f32 v%d, v%d, v%d" % (a + 32, a + 32, a + 48))
        p("v_add_f32 v%d, v%d, v%d" % (a, a, a + 32))
        round_bf16(p, a)
        p("v_mul_f32 v%d, v%d, v%d" % (a, a, 136 + i))
        round_bf16(p, a)
        p("v_add_f32 v%d, v%d, v%d" % (a, a, 160 + i))
    for mt in range(4):
        for d in range(2):
            p("v_cvt_pk_bf16_f32 v%d, v%d, v%d" % (16 + 2 * mt + d, ACC + 4 * mt + 2 * d, ACC + 4 * mt + 2 * d + 1))
        p("buffer_store_dwordx2 %s, v12, s[12:15], s27 offen offset:%d" % (vr(16 + 2 * mt, 2), 32 * mt))
    st(15)
```

```python
import sys
from asmlib import *
from fused_common import *
import phase_kv, phase_attn, phase_tail

NAME = "adaLN_cond__compressed_kv_cla__dense_activation_silu__prompt"
HEAD = open("cdna_kernels/%s.s.ref" % NAME).read().split("; Override launch")[0]

def opt(name, default):
    for a in sys.argv:
        if a.startswith(name + "="):
            return type(default)(a[len(name) + 1:])
    return default

def gen_all(stamp, thresh):
    p = Prog()
    stubs = Prog()
    st = Stamper(p, stamp, 0, sel=opt('sel', '').split(',') if opt('sel', '') else None)
    phase_kv.entry(p, st)
    phase_kv.gen(p, st, phase_attn.kv_hooks(p), touch=opt('touch', 1), slow=opt('slow', 0))
    phase_attn.gen(p, st, stubs, thresh, phase_tail.pre, SPLIT=opt('split', 40), wb=opt('wb', 0))
    phase_tail.gen(p, st)
    p.label("K_FIN")
    st.dump(sWAVE)
    p.label("K_END")
    p("s_endpgm")
    p.ins.extend(stubs.ins)
    return p

if __name__ == "__main__":
    p = gen_all("dbg" if "dbg" in sys.argv else "stamp" in sys.argv, opt("thresh", 2.0 ** 30))
    kn = NAME + "_kernel"
    c, d = kernel_text(kn, p)
    if "list" in sys.argv:
        launch = "; @launch kernel=%s grid=(256,1,1) block=(256,1,1) lds=163840\n" % kn
    else:
        launch = "; @launch grid=(256,1,1) block=(256,1,1) lds=163840\n"
    if opt("kvsc1", 0):
        c = c.replace("s[8:11], s23 offen\n", "s[8:11], s23 offen sc1\n")
    if opt("tailsc1", 0):
        import re
        a = c.index("T_POLLP:")
        b = c.index("K_FIN:")
        mid = re.sub(r"(buffer_store_dwordx4 [^\n]*)", r"\1 sc1", c[a:b])
        c = c[:a] + mid + c[b:]
    open(sys.argv[1], "w").write(HEAD + launch + '.amdgcn_target "amdgcn-amd-amdhsa--gfx950"\n' + c + d)
```

```python
from asmlib import *
from layout import *

MF = "v_mfma_f32_16x16x32_bf16"
WS_BYTES = 268435456


def srd(p, d, lo, hi, size):
    p("s_mov_b32 s%d, s%d" % (d, lo))
    p("s_and_b32 s%d, s%d, 0xffff" % (d + 1, hi))
    p("s_mov_b32 s%d, 0x%x" % (d + 2, size))
    p("s_mov_b32 s%d, 0x20000" % (d + 3))


def vr(b, n=4, k="v"):
    return "%s[%d:%d]" % (k, b, b + n - 1)


def ar(b, n=4):
    return vr(b, n, "a")


class Stamper:
    def __init__(self, p, on, base=0, sel=None):
        self.p, self.on, self.base = p, on, base
        self.sel = sel or [str(i) for i in range(16)]

    def __call__(self, name, q=None):
        name = str(name)
        if self.on and name in self.sel:
            i = self.sel.index(name)
            save = self.p
            if q is not None:
                self.p = q
            self._emit(i)
            self.p = save

    def _emit(self, i):
        if True:
            self.p('s_memtime s[98:99]')
            self.p('s_memrealtime s[100:101]')
            self.p('s_waitcnt lgkmcnt(0)')
            self.p('s_mov_b32 s%d, s98' % (64 + i))
            self.p('s_mov_b32 s%d, s100' % (80 + i))

    def dump(self, wave_sgpr, nw=4):
        if not self.on:
            return
        p = self.p
        if self.on == "dbg":
            p("s_cmp_lg_u32 s2, 100")
            p("s_cbranch_scc1 K_END")
            p("s_cmp_lg_u32 s%d, 0" % wave_sgpr)
            p("s_cbranch_scc1 K_END")
            p("s_load_dwordx2 s[96:97], s[0:1], 96")
            p("s_waitcnt lgkmcnt(0)")
            srd(p, 4, 96, 97, 256)
            p("v_mov_b32 v3, 0")
            for i in range(1, 16):
                p("s_sub_u32 s3, s%d, s80" % (80 + i))
                p("v_mov_b32 v4, s3")
                p("buffer_store_dword v4, v3, s[4:7], 0 offen offset:%d" % (4 * i))
            return
        p("s_load_dwordx2 s[96:97], s[0:1], 104")
        p("s_waitcnt lgkmcnt(0)")
        p("s_add_u32 s96, s96, 0x%x" % (WS_STAMP + self.base * 0x20000))
        p("s_addc_u32 s97, s97, 0")
        srd(p, 4, 96, 97, 1024 * 128)
        p("s_mul_i32 s3, s2, %d" % nw)
        p("s_add_u32 s3, s3, s%d" % wave_sgpr)
        p("s_lshl_b32 s3, s3, 7")
        p("v_mov_b32 v3, 0")
        for i in range(32):
            p("v_mov_b32 v4, s%d" % (64 + i))
            p("buffer_store_dword v4, v3, s[4:7], s3 offen offset:%d" % (4 * i))


def xsum_345(p, v, t):
    p("v_add_f32_dpp v%d, v%d, v%d row_ror:8 row_mask:0xf bank_mask:0xf" % (v, v, v))
    p("v_mov_b32 v%d, v%d" % (t, v))
    p("v_permlane16_swap_b32 v%d, v%d" % (v, t))
    p("v_add_f32 v%d, v%d, v%d" % (v, v, t))
    p("v_mov_b32 v%d, v%d" % (t, v))
    p("v_permlane32_swap_b32 v%d, v%d" % (v, t))
    p("v_add_f32 v%d, v%d, v%d" % (v, v, t))


def xop_45(p, v, t, op):
    p("v_mov_b32 v%d, v%d" % (t, v))
    p("v_permlane16_swap_b32 v%d, v%d" % (v, t))
    p("%s v%d, v%d, v%d" % (op, v, v, t))
    p("v_mov_b32 v%d, v%d" % (t, v))
    p("v_permlane32_swap_b32 v%d, v%d" % (v, t))
    p("%s v%d, v%d, v%d" % (op, v, v, t))


def f32bits(x):
    import struct
    return "0x%08x" % struct.unpack("<I", struct.pack("<f", x))[0]


def round_bf16(p, v):
    p("v_cvt_pk_bf16_f32 v%d, v%d, v%d" % (v, v, v))
    p("v_and_b32 v%d, 0xffff0000, v%d" % (v, v))


class Sched:
    def __init__(self, n, cap=2):
        self.n, self.cap = n, cap
        self.g = [[] for _ in range(n)]
        self.used = [0] * n
        self.pre = []

    @staticmethod
    def cost(s):
        return 2 if s.startswith(("v_exp", "v_rcp", "v_rsq", "v_log")) else 1

    def at(self, gap, s):
        self.g[gap].append(s)
        self.used[gap] += self.cost(s)

    def stream(self, items, start=0, end=None):
        end = self.n if end is None else end
        g = start
        for s in items:
            c = self.cost(s)
            while g < end - 1 and self.used[g] + c > max(self.cap, c if self.used[g] == 0 else 0):
                g += 1
            self.at(g, s)
        return g

    def even(self, items, start, end):
        n = len(items)
        for k, s in enumerate(items):
            self.at(start + (k * (end - start)) // n, s)

    def weave(self, mfmas):
        assert len(mfmas) == self.n
        out = list(self.pre)
        for m, f in zip(mfmas, self.g):
            out.append(m)
            out.extend(f)
        return "\n".join(out)

    def flat(self):
        out = list(self.pre)
        for f in self.g:
            out.extend(f)
        return "\n".join(out)


def iclass(s):
    op = s.split()[0]
    if op.startswith("ds_"):
        return "d"
    if op.startswith(("buffer_", "global_")):
        return "m"
    if op.startswith(("v_exp", "v_rcp", "v_rsq", "v_log")):
        return "e"
    if op.startswith("v_"):
        return "v"
    return "s"


class Gaps:
    def __init__(self, n):
        self.n = n
        self.g = [[] for _ in range(n)]

    def at(self, gap, *ins):
        self.g[gap].extend(ins)

    def put(self, gaps, items):
        assert len(gaps) >= len(items), (len(gaps), len(items))
        for g, s in zip(gaps, items):
            self.at(g, s)

    def ordered(self, k):
        f = self.g[k]
        lead = [x for x in f if iclass(x) == "s"][:1]
        rest = list(f)
        for x in lead:
            rest.remove(x)
        return lead + [x for x in rest if iclass(x) == "d"] + [x for x in rest if iclass(x) == "m"] + \
            [x for x in rest if iclass(x) not in "dm"]

    def pen(self, k):
        o = [iclass(x) for x in self.ordered(k)]
        if o and o[0] == "s":
            o = o[1:]
        c = sum(2 if x in "em" else 1 for x in o) + max(0, o.count("d") - 1)
        return 4 * max(0, c - 2)

    def penalty(self):
        return sum(self.pen(k) for k in range(self.n))

    def fill(self, items, start, end, nos=()):
        g = start
        last = None
        items = list(items)
        while items and g < end:
            x = items[0]
            c = iclass(x)
            ok = True
            if c == "s":
                ok = last is None and g not in nos and not any(iclass(y) == "s" for y in self.g[g])
            elif c in "dm":
                ok = last in (None, "s")
            if ok:
                before = self.pen(g)
                self.g[g].append(x)
                if self.pen(g) > before:
                    self.g[g].pop()
                    ok = False
            if ok:
                items.pop(0)
                last = c
            else:
                g += 1
                last = None
        return items

    def weave(self, mfmas, name=None):
        assert len(mfmas) == self.n
        out = []
        for k, m in enumerate(mfmas):
            out.append(m)
            out.extend(self.ordered(k))
        if name:
            import sys
            print("   sched %s: est penalty %d cycles" % (name, self.penalty()), file=sys.stderr)
        return "\n".join(out)
```

```python
import math
from common import *

QSCALE = math.log2(math.e) / 16.0
sWAVE, sHEAD, sROLE = 18, 19, 20
pX, pWQ, pWO, pW1, pW2, pOUT, pWS = 50, 52, 54, 56, 58, 60, 62
SPIN = 0x40000
sFAST = 96


def flag_off(p, dst, base, idx_s):
    p("s_lshl_b32 s%d, s%d, 6" % (dst, idx_s))
    p("s_add_u32 s%d, s%d, 0x%x" % (dst, dst, WS_FLAG + base * 64))


def signal(p, off_s, vone, vzero, name, srd_=8, release=False):
    p("s_cmp_lg_u32 s%d, 0" % sWAVE)
    p("s_cbranch_scc1 %s" % name)
    if release:
        p("s_cmp_eq_u32 s%d, 1" % sFAST)
        p("s_cbranch_scc1 %s_F" % name)
        p("buffer_wbl2 sc1")
        p("s_waitcnt vmcnt(0)")
        p.label(name + "_F")
    p("v_mov_b32 v%d, 1" % vone)
    p("v_mov_b32 v%d, 0" % vzero)
    p("s_mov_b64 exec, 1")
    p("buffer_atomic_add v%d, v%d, s[%d:%d], s%d offen sc1" % (vone, vzero, srd_, srd_ + 3, off_s))
    p("s_mov_b64 exec, -1")
    p.label(name)


def poll(p, off_s, want, vt, vzero, s1, s2, name, srd_=8, first_loaded=False, acquire=False):
    p("s_mov_b32 s%d, 0" % s2)
    if first_loaded:
        p("s_branch %s_CHK" % name)
    p.label(name)
    p("buffer_load_dword v%d, v%d, s[%d:%d], s%d offen sc1" % (vt, vzero, srd_, srd_ + 3, off_s))
    p("s_waitcnt vmcnt(0)")
    p.label(name + "_CHK")
    p("v_readfirstlane_b32 s%d, v%d" % (s1, vt))
    p("s_cmp_ge_u32 s%d, %d" % (s1, want))
    p("s_cbranch_scc1 %s_OK" % name)
    p("s_add_u32 s%d, s%d, 1" % (s2, s2))
    p("s_cmp_ge_u32 s%d, 0x%x" % (s2, SPIN))
    p("s_cbranch_scc1 %s_OK" % name)
    p("s_sleep 2")
    p("s_branch %s" % name)
    p.label(name + "_OK")
    if acquire:
        p("s_cmp_eq_u32 s%d, 1" % sFAST)
        p("s_cbranch_scc1 %s_F" % name)
        p("buffer_inv sc1")
        p("s_waitcnt vmcnt(0)")
        p.label(name + "_F")


def xsum_row32(p, v, t):
    for k in (1, 2, 4, 8):
        p("v_add_f32_dpp v%d, v%d, v%d row_ror:%d row_mask:0xf bank_mask:0xf" % (v, v, v, k))
    p("v_mov_b32 v%d, v%d" % (t, v))
    p("v_permlane16_swap_b32 v%d, v%d" % (v, t))
    p("v_add_f32 v%d, v%d, v%d" % (v, v, t))


def unpack(p, dst, src, n):
    for i in range(n):
        p("v_lshlrev_b32 v%d, 16, v%d" % (dst + 2 * i, src + i))
        p("v_and_b32 v%d, 0xffff0000, v%d" % (dst + 2 * i + 1, src + i))


NCODE = 5


def code_touch(p, srd_, vt, vd, stmp):
    lab = p.uid("CT")
    p("s_getpc_b64 s[%d:%d]" % (srd_, srd_ + 1))
    p.label(lab)
    p("s_sub_u32 s%d, s%d, %s-K_START" % (srd_, srd_, lab))
    p("s_subb_u32 s%d, s%d, 0" % (srd_ + 1, srd_ + 1))
    p("s_and_b32 s%d, s%d, 0xffff" % (srd_ + 1, srd_ + 1))
    p("s_mov_b32 s%d, K_LAST-K_START" % (srd_ + 2))
    p("s_mov_b32 s%d, 0x20000" % (srd_ + 3))
    p("s_lshr_b32 s%d, s2, 3" % stmp)
    p("s_lshl_b32 s%d, s%d, 2" % (stmp, stmp))
    p("s_add_u32 s%d, s%d, s%d" % (stmp, stmp, sWAVE))
    p("s_mul_i32 s%d, s%d, %d" % (stmp, stmp, NCODE * 128))
    p("v_min_u32 v%d, %d, v1" % (vt, NCODE - 1))
    p("v_lshlrev_b32 v%d, 7, v%d" % (vt, vt))
    p("buffer_load_dword v%d, v%d, s[%d:%d], s%d offen" % (vd, vt, srd_, srd_ + 3, stmp))


def signalw(p, off_s, idx_s, vone, voff, name, local=False):
    p("s_cmp_lg_u32 s%d, 0" % sWAVE)
    p("s_cbranch_scc1 %s" % name)
    p("v_mov_b32 v%d, 1" % vone)
    p("v_lshlrev_b32 v%d, 2, s%d" % (voff, idx_s))
    p("s_mov_b64 exec, 1")
    if local:
        p("s_cmp_eq_u32 s%d, 1" % sFAST)
        p("s_cbranch_scc0 %s_S" % name)
        p("buffer_store_dword v%d, v%d, s[8:11], s%d offen" % (vone, voff, off_s))
        p("s_branch %s_D" % name)
        p.label(name + "_S")
        p("buffer_wbl2 sc1")
        p("s_waitcnt vmcnt(0)")
    p("buffer_store_dword v%d, v%d, s[8:11], s%d offen sc1" % (vone, voff, off_s))
    p.label(name + "_D")
    p("s_mov_b64 exec, -1")
    p.label(name)


def pollw(p, off_s, n, vt, vaddr, s1, s2, name, acquire=False, depth=1, gap=1):
    mask = (1 << n) - 1
    ld = lambda k: "buffer_load_dword v%d, v%d, s[8:11], s%d offen sc1" % (vt + k, vaddr, off_s)
    p("v_and_b32 v%d, 15, v1" % vaddr)
    p("v_lshlrev_b32 v%d, 2, v%d" % (vaddr, vaddr))
    p("s_mov_b32 s%d, 0" % s2)
    for k in range(depth - 1):
        p(ld(k))
        p("s_sleep %d" % gap)
    p.label(name)
    for k in range(depth):
        p(ld((k + depth - 1) % depth))
        p("s_waitcnt vmcnt(%d)" % (depth - 1))
        p("v_cmp_ne_u32 vcc, 0, v%d" % (vt + k))
        p("s_and_b32 s%d, vcc_lo, 0x%x" % (s1, mask))
        p("s_cmp_eq_u32 s%d, 0x%x" % (s1, mask))
        p("s_cbranch_scc1 %s_OK" % name)
        p("s_sleep %d" % gap)
    p("s_add_u32 s%d, s%d, 1" % (s2, s2))
    p("s_cmp_lt_u32 s%d, 0x%x" % (s2, SPIN))
    p("s_cbranch_scc1 %s" % name)
    p.label(name + "_OK")
    if acquire:
        p("s_cmp_eq_u32 s%d, 1" % sFAST)
        p("s_cbranch_scc1 %s_F" % name)
        p("buffer_inv sc1")
        p("s_waitcnt vmcnt(0)")
        p.label(name + "_F")
```

```python
WS_MOD = 0
WS_FLAG = 0x4000
FL_H, FL_KV, FL_P, FL_H2, FL_A, FL_PAIR, FL_K1, FL_CX = 0, 16, 32, 48, 64, 80, 176, 208
NFLAG_KB = 14
WS_H = 0x100000
H_BYTES = 2048 * 448 * 2
WS_X1 = 0x400000
WS_H2 = 0x800000
WS_ACT = 0xC00000
WS_KV = 0x2000000
KV_BYTES = 16 * 64 * 32768
WS_PART = 0x5000000
PART_BYTES = 8 * 2048 * 448 * 2
WS_OP = 0x8000000
WS_STAMP = 0xC000000
WS_CX = 0x9000000
```

```python
from fused_common import *
import phase_kv

OP_STRIDE = 0x12000
L16, BKV, BWQ, BWO, ACT, RKV, NEGBIG = 2, 3, 4, 5, 6, 14, 15
WQB, WOB, CUR = 16, 24, 28
THR0, THR, LS, BS, T0 = 36, 37, 38, 40, 42
ZER = 44
NEGM, PF, S, PP, XT, Q, MRG, TMP = 48, 56, 64, 80, 96, 112, 176, 240
FA, FB = 128, 192
RING = 5 * 32768
sPO, sPS, sRW, sRR = 21, 22, 24, 25
sT, sB0, sNB, sACT = 26, 27, 28, 29
sT2, sNB2 = 30, 31
sCNT, sB, sD0, sSIG, sPAIR = 32, 33, 34, 35, 36
sX, sY, sZ = 37, 38, 39
sTHRESH, sW1K = 48, 49
sO0, sO1 = 16, 17
sCHK = 16


def Sreg(kt, qt):
    return S + (kt * 2 + qt) * 4


def Hreg(ks, qt):
    return MRG + (ks * 2 + qt) * 4 if ks < 8 else S + ((ks - 8) * 2 + qt) * 4


def Oreg(dt, qt):
    return (dt * 2 + qt) * 4


def prod_set(kind):
    lo, size, base, js, ps = {"wq": (pWQ, 448 * 4096 * 2, BWQ, 65536, 0x80000),
                              "wo": (pWO, 448 * 4096 * 2, BWO, 28672, 128),
                              "w1": (pW1, 448 * 1792 * 2, BWQ, 57344, 128 * 3584),
                              "kv": (pWS, WS_BYTES, BKV, 4096, 32768)}[kind]
    o = ["s_mov_b32 s4, s%d" % lo, "s_and_b32 s5, s%d, 0xffff" % (lo + 1), "s_mov_b32 s6, 0x%x" % size,
         "s_mov_b32 s%d, 0x%x" % (sPS, ps)]
    if kind == "wq":
        o += ["s_lshl_b32 s%d, s%d, 9" % (sPO, sHEAD)]
    elif kind == "wo":
        o += ["s_mul_i32 s%d, s%d, 229376" % (sPO, sHEAD), "s_and_b32 s3, s%d, 1" % sHEAD, "s_lshl_b32 s3, s3, 9",
              "s_add_u32 s%d, s%d, s3" % (sPO, sPO)]
    elif kind == "w1":
        o += ["s_lshl_b32 s%d, s%d, 8" % (sPO, sROLE), "s_cmp_lt_u32 s%d, 14" % sROLE, "s_cselect_b32 s6, s6, 0"]
    else:
        o += ["s_lshl_b32 s%d, s%d, 6" % (sPO, sHEAD), "s_add_u32 s%d, s%d, s%d" % (sPO, sPO, sB0),
              "s_lshl_b32 s%d, s%d, 15" % (sPO, sPO), "s_add_u32 s%d, s%d, 0x%x" % (sPO, sPO, WS_KV - 16384)]
    v = ["v_mov_b32 v%d, v%d" % (ACT, base)]
    for j in range(1, 8):
        v += ["v_add_u32 v%d, 0x%x, v%d" % (ACT + j, j * js, base)]
    return o, v


def dma(j, konly=False):
    return ["s_add_u32 m0, s%d, %d" % (sRW, j * 4096),
            "buffer_load_dwordx4 v%d, s[4:7], s%d offen sc1 lds" % (ACT + (j | 4 if konly else j), sPO)]


PROD_ADV = ["s_add_u32 s%d, s%d, s%d" % (sPO, sPO, sPS), "s_add_u32 s%d, s%d, 0x8000" % (sRW, sRW),
            "s_cmp_ge_u32 s%d, 0x%x" % (sRW, RING), "s_cselect_b32 s%d, s%d, s%d" % (sRW, sW1K, sRW)]
RING_ADV = ["s_add_u32 s%d, s%d, 0x8000" % (sRR, sRR), "s_cmp_ge_u32 s%d, 0x%x" % (sRR, RING),
            "s_cselect_b32 s%d, 0, s%d" % (sRR, sRR)]


def cur_set(kind):
    if kind == "kv":
        return ["v_add_u32 v%d, s%d, v%d" % (RKV, sRR, L16)]
    n, base = (8, WQB) if kind == "wq" else (4, WOB)
    return ["v_add_u32 v%d, s%d, v%d" % (CUR + x, sRR, base + x) for x in range(n)]


def reads(kind, half):
    F = FA if half == 0 else FB
    o = []
    if kind == "kv":
        for f in range(16):
            o.append("ds_read_b128 %s, v%d offset:%d" % (ar(F + 4 * f), RKV, (16384 if half == 0 else 0) + 1024 * f))
    elif kind == "wq":
        for dt in range(16):
            for i in range(2):
                o.append("ds_read_b64_tr_b16 %s, v%d offset:%d" % (
                    ar(F + 4 * dt + 2 * i, 2), CUR + (dt & 7), half * 16384 + i * 8192 + (dt >> 3) * 256))
    else:
        for mt in range(2):
            for u in range(8):
                for i in range(2):
                    o.append("ds_read_b64_tr_b16 %s, v%d offset:%d" % (
                        ar(F + 4 * (mt * 8 + u) + 2 * i, 2), CUR + 2 * half + mt, u * 4096 + i * 2048))
    return o


DG = [2, 6, 10, 14, 18, 22, 26, 30]


def place_dma(G, base=0, konly=False):
    for j in range(8):
        d = dma(j, konly)
        G.at(base + DG[j] - 1, d[0])
        G.at(base + DG[j], d[1])


def spread_reads(G, rd, gaps):
    n, m = len(rd), len(gaps)
    for k, r in enumerate(rd):
        G.at(gaps[(k * m) // n], r)


def h_loads(tile_s, ks_list, L16=L16):
    o = ["s_lshl_b32 s%d, s%d, 3" % (sX, tile_s), "s_lshl_b32 s%d, s%d, 1" % (sY, sWAVE),
         "s_add_u32 s%d, s%d, s%d" % (sX, sX, sY), "s_mul_i32 s%d, s%d, 14336" % (sX, sX),
         "s_add_u32 s%d, s%d, 0x%x" % (sX, sX, WS_H)]
    for ks in ks_list:
        for qt in range(2):
            off = qt * 14336 + ks * 1024
            o.append("s_add_u32 s%d, s%d, %d" % (sY, sX, off & ~0xfff))
            o.append("buffer_load_dwordx4 %s, v%d, s[8:11], s%d offen offset:%d sc1" % (vr(Hreg(ks, qt)), L16, sY, off & 0xfff))
    return o


def tr_h1(G, kind, base, dma_too=False, busy=()):
    cs = cur_set(kind)
    G.at(base, cs[0], cs[1])
    for x in range(2, len(cs)):
        G.at(base + x - 1, cs[x])
    gaps = [g for g in range(base + 1, base + 32) if not (dma_too and (g - base) in DG) and g not in busy]
    spread_reads(G, reads(kind, 0), gaps)


def kv_hooks(p):
    def st1():
        p("s_add_u32 s21, s%d, 4" % sROLE)
        p("s_add_u32 s22, s%d, 10" % sROLE)
        p("s_cmp_lt_u32 s%d, 6" % sROLE)
        p("s_cselect_b32 s21, s22, s21")
        p("s_sub_u32 s22, s%d, 6" % sROLE)
        p("s_cmp_lt_u32 s%d, 12" % sROLE)
        p("s_cselect_b32 s21, s21, s22")
        p("s_sub_u32 s22, 15, s21")
        flag_off(p, 23, FL_H, 21)
        flag_off(p, 24, FL_H, 22)
        p("buffer_load_dword v12, v%d, s[8:11], s23 offen sc1" % phase_kv.ZV)
        p("buffer_load_dword v13, v%d, s[8:11], s24 offen sc1" % phase_kv.ZV)
    return {"st1": st1}


def PK(n):
    return 64 + 4 * n if n < 12 else (48 + 4 * (n - 12) if n < 16 else Q + 4 * (n - 16))


def gen(p, st, stubs, thresh, tail_pre, SPLIT=40, wb=0):
    J = lambda l: p("\n".join(l))
    assert SPLIT == 40
    p("v_lshlrev_b32 v%d, 4, v1" % L16)
    poll(p, 23, 16, 12, phase_kv.ZV, 37, 38, "AT_POLLH", first_loaded=True)
    poll(p, 24, 16, 13, phase_kv.ZV, 37, 38, "AT_POLLH2", first_loaded=True)
    J(h_loads(21, range(8)))
    p("s_cmp_lt_u32 s%d, 6" % sROLE)
    p("s_cbranch_scc1 AT_ROLE_A")
    p("s_cmp_lt_u32 s%d, 12" % sROLE)
    p("s_cbranch_scc1 AT_ROLE_B")
    p("s_sub_u32 s%d, s%d, 6" % (sT, sROLE))
    p("s_mov_b32 s%d, 0" % sB0)
    p("s_lshl_b32 s%d, s%d, 2" % (sNB, sT))
    p("s_add_u32 s%d, s%d, 4" % (sNB, sNB))
    p("s_mov_b32 s%d, 0" % sACT)
    p("s_mov_b32 s%d, 0" % sX)
    p("s_branch AT_ROLE_DONE")
    p.label("AT_ROLE_A")
    p("s_add_u32 s%d, s%d, 10" % (sT, sROLE))
    p("s_mov_b32 s%d, 0" % sB0)
    p("s_mov_b32 s%d, %d" % (sNB, SPLIT))
    p("s_mov_b32 s%d, 1" % sACT)
    p("s_mov_b32 s%d, s%d" % (sX, sROLE))
    p("s_branch AT_ROLE_DONE")
    p.label("AT_ROLE_B")
    p("s_add_u32 s%d, s%d, 4" % (sT, sROLE))
    p("s_mov_b32 s%d, %d" % (sB0, SPLIT))
    p("s_lshl_b32 s%d, s%d, 2" % (sNB, sT))
    p("s_sub_u32 s%d, s%d, %d" % (sNB, sNB, SPLIT - 4))
    p("s_mov_b32 s%d, 2" % sACT)
    p("s_sub_u32 s%d, s%d, 6" % (sX, sROLE))
    p.label("AT_ROLE_DONE")
    p("s_sub_u32 s%d, 15, s%d" % (sT2, sT))
    p("s_lshl_b32 s%d, s%d, 2" % (sNB2, sT2))
    p("s_add_u32 s%d, s%d, 4" % (sNB2, sNB2))
    p("s_mul_i32 s%d, s%d, 6" % (sPAIR, sHEAD))
    p("s_add_u32 s%d, s%d, s%d" % (sPAIR, sPAIR, sX))
    p("s_mov_b32 s%d, %s" % (sTHRESH, f32bits(thresh)))
    p("s_lshl_b32 s%d, s%d, 10" % (sW1K, sWAVE))
    flag_off(p, sSIG, FL_KV, sHEAD)
    W, HI, G_, C = TMP, TMP + 1, TMP + 2, TMP + 4
    a, b, c = TMP + 5, TMP + 6, TMP + 7
    p("v_lshrrev_b32 v%d, 6, v0" % W)
    p("v_lshrrev_b32 v%d, 5, v1" % HI)
    p("v_lshl_add_u32 v%d, v%d, 1, v%d" % (a, W, HI))
    p("v_lshlrev_b32 v%d, 1, v%d" % (b, a))
    p("v_and_b32 v%d, 31, v1" % c)
    p("v_xor_b32 v%d, v%d, v%d" % (b, b, c))
    p("v_lshlrev_b32 v%d, 4, v%d" % (b, b))
    p("v_lshl_add_u32 v%d, v%d, 13, v%d" % (BWQ, a, b))
    so, vo = prod_set("wq")
    J(so + vo)
    p("s_add_u32 s%d, s%d, 0x100000" % (sPO, sPO))
    p("s_mov_b32 s%d, s%d" % (sRW, sW1K))
    p("s_mov_b32 s%d, 98304" % sRR)
    for j in range(8):
        J(dma(j))
    J(PROD_ADV)
    phase_kv.epi_setup(p)
    p("v_lshrrev_b32 v%d, 4, v1" % G_)
    p("v_and_b32 v%d, 3, v1" % C)
    p("v_lshl_add_u32 v%d, v%d, 10, v%d" % (BKV, W, L16))
    p("v_lshrrev_b32 v%d, 3, v1" % a)
    p("v_lshl_add_u32 v%d, v%d, 3, v%d" % (a, W, a))
    p("v_bfe_u32 v%d, v%d, 1, 2" % (b, a))
    p("v_lshlrev_b32 v%d, 1, v%d" % (b, b))
    p("v_and_b32 v%d, 7, v1" % c)
    p("v_xor_b32 v%d, v%d, v%d" % (b, b, c))
    p("v_lshlrev_b32 v%d, 4, v%d" % (b, b))
    p("v_mul_u32_u24 v%d, 896, v%d" % (a, a))
    p("v_add_u32 v%d, v%d, v%d" % (BWO, a, b))
    p("v_lshrrev_b32 v%d, 2, v1" % a)
    p("v_lshlrev_b32 v%d, 9, v%d" % (b, a))
    p("v_lshl_add_u32 v%d, v%d, 3, v%d" % (b, C, b))
    p("v_and_b32 v%d, 7, v%d" % (c, a))
    p("v_lshl_add_u32 v%d, v%d, 5, v%d" % (b, c, b))
    for x in range(8):
        p("v_xor_b32 v%d, %d, v%d" % (WQB + x, x * 32, b))
    p("v_lshlrev_b32 v%d, 7, v%d" % (b, a))
    p("v_lshl_add_u32 v%d, v%d, 3, v%d" % (b, C, b))
    p("v_bfe_u32 v%d, v%d, 1, 2" % (c, a))
    p("v_lshl_add_u32 v%d, v%d, 5, v%d" % (b, c, b))
    for x in range(4):
        p("v_xor_b32 v%d, %d, v%d" % (WOB + x, x * 32, b))
    p("s_waitcnt lgkmcnt(0)")
    p("v_and_b32 v%d, 15, v1" % a)
    p("v_lshlrev_b32 v%d, 2, v%d" % (b, G_))
    p("v_sub_u32 v%d, v%d, v%d" % (a, a, b))
    p("v_lshl_add_u32 v%d, v%d, 5, v%d" % (THR0, W, a))
    p("v_mov_b32 v%d, %s" % (NEGBIG, f32bits(-1e30)))
    for i in range(4):
        p("v_mov_b32 v%d, 0" % (ZER + i))
    J(cur_set("wq"))
    p("s_lshl_b32 s44, s%d, 1" % sHEAD)
    p("s_lshr_b32 s43, s%d, 1" % sROLE)
    p("s_add_u32 s45, s44, s43")
    p("s_lshr_b32 s43, s%d, 2" % sROLE)
    p("s_cmp_eq_u32 s%d, 2" % sACT)
    p("s_addc_u32 s44, s44, 0")
    flag_off(p, 44, FL_K1, 44)
    flag_off(p, 45, FL_K1, 45)
    p("s_add_u32 s%d, s%d, 2" % (sCHK, sB0))
    hl = h_loads(sT, range(8, 14))
    J(hl[:5])
    for n in range(32):
        J(phase_kv.epi_conv(n, PK(n), TMP + (n & 1) * 8))
        if n % 4 == 3 and n < 28:
            J(phase_kv.epi_store(n // 4, PK(n // 4), L16))
    p("s_cmp_eq_u32 s43, 0")
    p("s_cbranch_scc0 AT_NOPRIO")
    for n in range(7, 32):
        J(phase_kv.epi_store(n, PK(n), L16))
    p("s_mov_b32 s23, 0xf0000000")
    p("s_mov_b32 s46, 0")
    p("s_mov_b32 s47, 0")
    p("s_mov_b32 s17, 0")
    p("s_waitcnt vmcnt(40)")
    p("s_branch AT_PRIODONE")
    p.label("AT_NOPRIO")
    p("s_waitcnt vmcnt(15)")
    p.label("AT_PRIODONE")
    st(3)
    p("s_barrier")
    J(reads("wq", 0))

    def qproj(first):
        p("s_waitcnt lgkmcnt(0)")
        VM = {1: 21, 2: 32, 3: 19, 4: 21, 5: 26, 6: 16} if first else {2: 16, 3: 16, 4: 16, 5: 16, 6: 16}
        for t in range(7):
            mf = []
            for half in range(2):
                ks = 2 * t + half
                F = FA if half == 0 else FB
                for dt in range(16):
                    for qt in range(2):
                        acc = ar(Oreg(dt, qt))
                        mf.append("%s %s, %s, %s, %s" % (MF, acc, ar(F + 4 * dt), vr(Hreg(ks, qt)), "0" if ks == 0 else acc))
            G = Gaps(64)
            place_dma(G, 0, konly=(t == 4))
            spread_reads(G, reads("wq", 1), [g for g in range(32) if g not in DG])
            G.at(12, "s_waitcnt lgkmcnt(8)")
            G.put([24, 27, 28], RING_ADV)
            G.at(31, "s_waitcnt %slgkmcnt(8)" % ("vmcnt(%d) " % VM[t] if t in VM else ""))
            split = (first and t in (1, 2, 3, 6)) or (not first and t == 2)
            if split:
                p(Gaps_slice(G, mf, 0, 32))
                p("s_barrier")
                if not first:
                    signal(p, sSIG, T0, T0 + 1, "AT_SIGP", release=True)
                elif t == 1:
                    p("s_cmp_eq_u32 s43, 0")
                    p("s_cbranch_scc0 AT_SIGK1B")
                    signal(p, 45, T0, T0 + 1, "AT_SIGK1", release=True)
                    signal(p, sSIG, T0, T0 + 1, "AT_SIGK1B")
                elif t == 2:
                    p("buffer_load_dword v%d, v%d, s[8:11], s44 offen sc1" % (T0, ZER))
                elif t == 3:
                    st("f0")
                    poll(p, 44, 2, T0, ZER, 40, 41, "AT_POLLK1", first_loaded=True, acquire=True)
                    st("f1")
                else:
                    p("s_cmp_eq_u32 s43, 0")
                    p("s_cbranch_scc1 AT_SIGKV")
                    signal(p, sSIG, T0, T0 + 1, "AT_SIGKV", release=True)
            else:
                G.at(32, "s_barrier")
            G.put([35, 36, 39, 40], PROD_ADV)
            busy = []
            if first and t <= 4:
                for k, g in enumerate((42, 47, 52, 57, 62)):
                    n = 7 + 5 * t + k
                    e = phase_kv.epi_store(n, PK(n), L16)
                    G.at(g, e[0])
                    G.at(g + 1, e[1])
                    busy.append(g)
            if first and t in (1, 2):
                for k, g in enumerate((34, 38, 45, 50, 55, 60)):
                    i = 5 + 2 * (6 * (t - 1) + k)
                    G.at(g, hl[i], hl[i + 1])
                    busy.append(g)
            if t < 6:
                tr_h1(G, "wq", 32, busy=busy)
                G.at(61, "s_waitcnt lgkmcnt(8)")
            else:
                G.at(32, cur_set("kv")[0])
                G.put(range(33, 62, 2), reads("kv", 0)[:15])
                G.at(62, reads("kv", 0)[15])
            G.at(44, "s_waitcnt lgkmcnt(%d)" % (8 if t < 6 else 4))
            if t == 3:
                so, vo = prod_set("kv")
                G.put([45, 46, 49, 50, 51, 54, 55, 56], so)
                G.put([45, 46, 49, 50, 51, 54, 55, 56], vo)
            if split:
                p(Gaps_slice(G, mf, 32, 64))
            else:
                p(G.weave(mf, "qproj%d_%d" % (first, t)))
            if first:
                st("q%d" % t)

    def convert(kind):
        n = 0
        for u in range(8):
            for qt in range(2):
                T = TMP + (n % 2) * 8
                n += 1
                for k in range(8):
                    p("v_accvgpr_read_b32 v%d, a%d" % (T + k, Oreg(2 * u + (k >> 2), qt) + (k & 3)))
                sel = "op_sel:[0,%d] op_sel_hi:[1,%d]" % (qt, qt)
                if kind != "q":
                    for k in range(0, 8, 2):
                        p("v_pk_mul_f32 %s, %s, %s %s" % (vr(T + k, 2), vr(T + k, 2), vr(BS, 2), sel))
                if kind == "merge":
                    for d in range(4):
                        m = MRG + (qt * 8 + u) * 4 + d
                        p("v_lshlrev_b32 v%d, 16, v%d" % (T0, m))
                        p("v_and_b32 v%d, 0xffff0000, v%d" % (T0 + 1, m))
                        p("v_pk_fma_f32 %s, %s, %s, %s op_sel:[0,%d,0] op_sel_hi:[1,%d,1]" % (
                            vr(T + 2 * d, 2), vr(T0, 2), vr(LS, 2), vr(T + 2 * d, 2), qt, qt))
                f = qt * 8 + u
                for d in range(4):
                    p("v_cvt_pk_bf16_f32 v%d, v%d, v%d" % (Q + f * 4 + d, T + 2 * d, T + 2 * d + 1))
                if kind != "q":
                    p("s_add_u32 s%d, s%d, %d" % (sY, sX, f * 1024))
                    p("buffer_store_dwordx4 %s, v%d, s[8:11], s%d offen" % (vr(Q + 4 * f), L16, sY))

    qproj(True)
    p("s_branch AT_QDONE")
    p.label("AT_JOB")
    qproj(False)
    p.label("AT_QDONE")
    st(4)
    convert("q")
    p.label("AT_START")
    p("s_mov_b32 s%d, s%d" % (sB, sB0))
    p("s_lshl_b32 s%d, s%d, 2" % (sD0, sT))
    p("s_mov_b32 s%d, s%d" % (sCNT, sNB))
    p("v_mov_b32 v%d, v%d" % (THR, THR0))

    def qk_mf(first):
        mf = []
        for kt in range(2):
            for u in range(8):
                for qt in range(2):
                    d = vr(Sreg(kt, qt))
                    cc = d if u else ("0" if first else vr(NEGM + 4 * qt))
                    mf.append("%s %s, %s, %s, %s" % (MF, d, ar(FA + 4 * (kt * 8 + u)), vr(Q + (qt * 8 + u) * 4), cc))
        return mf

    pv_mf = []
    for dt in range(16):
        for qt in range(2):
            acc = ar(Oreg(dt, qt))
            pv_mf.append("%s %s, %s, %s, %s" % (MF, acc, ar(FB + 4 * dt), vr(PF + 4 * qt), acc))

    def mask_code(kt):
        o = []
        for qt in range(2):
            for r in range(4):
                o.append("v_cmp_gt_i32 s[%d:%d], %d, v%d" % (40 + 2 * r, 41 + 2 * r, 16 * (kt - qt) + r, THR))
            for r in range(4):
                s = Sreg(kt, qt) + r
                o.append("v_cndmask_b32 v%d, v%d, v%d, s[%d:%d]" % (s, s, NEGBIG, 40 + 2 * r, 41 + 2 * r))
        if kt == 1:
            o.append("v_subrev_u32 v%d, 32, v%d" % (THR, THR))
        return o

    ex = ["v_exp_f32 v%d, v%d" % (PP + i, S + i) for i in range(16)]
    ad = []
    for i in range(16):
        qt = (i >> 2) & 1
        if i in (1, 5):
            ad.append("v_add_f32 v%d, v%d, v%d" % (BS + qt, PP + i - 1, PP + i))
        elif i not in (0, 4):
            ad.append("v_add_f32 v%d, v%d, v%d" % (BS + qt, BS + qt, PP + i))
    cvt_p = []
    for kt in range(2):
        for qt in range(2):
            for d in range(2):
                s = PP + (kt * 2 + qt) * 4 + 2 * d
                cvt_p.append("v_cvt_pk_bf16_f32 v%d, v%d, v%d" % (PF + 4 * qt + 2 * kt + d, s, s + 1))
    ladd = ["v_add_f32 v%d, v%d, v%d" % (LS + qt, LS + qt, BS + qt) for qt in range(2)]

    def rowmax(q, qt, dst):
        s0, s1 = Sreg(0, qt), Sreg(1, qt)
        q("v_max3_f32 v%d, v%d, v%d, v%d" % (dst, s0, s0 + 1, s0 + 2))
        q("v_max3_f32 v%d, v%d, v%d, v%d" % (dst, dst, s0 + 3, s1))
        q("v_max3_f32 v%d, v%d, v%d, v%d" % (dst, dst, s1 + 1, s1 + 2))
        q("v_max_f32 v%d, v%d, v%d" % (dst, dst, s1 + 3))
        xop_45(q, dst, TMP + 15, "v_max_f32")

    G = Gaps(32)
    place_dma(G)
    G.put([24, 27, 28], RING_ADV)
    G.at(31, *cur_set("kv"))
    p("s_waitcnt lgkmcnt(0)")
    p(G.weave(qk_mf(True)))
    J(PROD_ADV)
    p("s_waitcnt vmcnt(16)")
    p("s_barrier")
    J(reads("kv", 0))
    for i in range(8):
        p("v_mfma_f32_32x32x16_bf16 a[%d:%d], %s, %s, 0" % (16 * i, 16 * i + 15, vr(ZER), vr(ZER)))
    p("s_cmp_lt_u32 s%d, s%d" % (sB, sD0))
    p("s_cbranch_scc1 AT_S0_NOMASK")
    J(mask_code(0) + mask_code(1))
    p.label("AT_S0_NOMASK")
    for qt in range(2):
        rowmax(p, qt, TMP + qt)
        for r in range(4):
            p("v_sub_f32 v%d, 0, v%d" % (NEGM + 4 * qt + r, TMP + qt))
        for kt in range(2):
            for r in range(4):
                s = Sreg(kt, qt) + r
                p("v_sub_f32 v%d, v%d, v%d" % (s, s, TMP + qt))
        p("v_mov_b32 v%d, 0" % (LS + qt))
    J(ex + ad)
    p("s_add_u32 s%d, s%d, 1" % (sB, sB))
    p("s_sub_u32 s%d, s%d, 1" % (sCNT, sCNT))
    p("s_waitcnt lgkmcnt(0)")

    st("a0")
    RG0 = [0, 1, 3, 4, 5, 7, 8, 9, 11, 12, 13, 15, 16, 17, 19, 20]
    p(".p2align 6")
    p.label("AT_LOOP")
    G = Gaps(64)
    place_dma(G)
    G.put(RG0, reads("kv", 1))
    G.put(RG0, cvt_p + ladd)
    G.at(19, "s_cmp_ge_u32 s%d, s%d" % (sB, sD0))
    G.at(20, "s_cbranch_scc1 AT_MASK0\nAT_MASK0_RET:")
    G.put([21, 23, 24, 25, 27, 28, 29, 31], ex[:8])
    G.put([23, 27, 28], RING_ADV)
    G.at(31, "s_waitcnt vmcnt(16) lgkmcnt(0)")
    G.at(32, "s_barrier", cur_set("kv")[0], ad[0])
    RG1 = [33, 34, 35, 37, 39, 41, 43, 45, 47, 49, 51, 52, 53, 54, 55, 56]
    G.put(RG1, reads("kv", 0))
    G.at(34, "s_cmp_ge_u32 s%d, s%d" % (sB, sD0))
    G.at(35, "s_cbranch_scc1 AT_MASK1\nAT_MASK1_RET:")
    G.put(range(36, 52, 2), ex[8:])
    G.put([33, 34, 35, 37, 39, 41, 43, 45, 47, 49, 51, 52, 53], ad[1:])
    G.at(54, "v_max_f32 v%d, v%d, v%d" % (T0, BS, BS + 1))
    G.at(55, "v_cmp_lt_f32 vcc, s%d, v%d" % (sTHRESH, T0))
    G.put([36, 37, 38, 39], PROD_ADV)
    G.at(41, "s_sub_u32 s%d, s%d, 3" % (sX, sCNT))
    G.at(42, "s_cmp_lt_u32 s%d, 2" % sX)
    G.at(43, "s_cbranch_scc1 AT_SWITCH\nAT_SWITCH_RET:")
    G.at(45, "s_sub_u32 s%d, s%d, s%d" % (sX, sB, sCHK))
    G.at(46, "s_cmp_lt_u32 s%d, 2" % sX)
    G.at(47, "s_cbranch_scc1 AT_KVCHK\nAT_KVCHK_RET:")
    G.at(58, "s_add_u32 s%d, s%d, 1" % (sB, sB))
    G.at(59, "s_sub_u32 s%d, s%d, 1" % (sCNT, sCNT))
    G.at(60, "s_cmp_lg_u32 s%d, 0" % sCNT)
    G.at(61, "s_waitcnt lgkmcnt(0)")
    p(G.weave(qk_mf(False) + pv_mf, "attn"))
    p("s_cbranch_vccnz AT_RARE")
    p.label("AT_RARE_RET")
    p("s_cbranch_scc1 AT_LOOP")

    st("a1")
    rd = reads("kv", 1)
    for j in range(8):
        d = dma(j)
        J([d[0], rd[2 * j], d[1], rd[2 * j + 1], cvt_p[j]])
    J(ladd + PROD_ADV + RING_ADV)
    p("s_waitcnt vmcnt(16) lgkmcnt(0)")
    p("s_barrier")
    p("s_cmp_eq_u32 s%d, 2" % sACT)
    p("s_cbranch_scc1 AT_LAST_Q")
    G = Gaps(32)
    tr_h1(G, "wo", 0)
    a3, b3, c3 = TMP, TMP + 1, TMP + 2
    w3 = ["v_lshrrev_b32 v%d, 3, v0" % a3,
          "s_and_b32 s3, s%d, 1" % sHEAD,
          "v_bfe_u32 v%d, v%d, 1, 2" % (b3, a3),
          "v_lshlrev_b32 v%d, 1, v%d" % (b3, b3),
          "v_and_b32 v%d, 7, v1" % c3,
          "v_xor_b32 v%d, v%d, v%d" % (b3, b3, c3),
          "v_mul_u32_u24 v%d, 896, v%d" % (a3, a3),
          "v_and_b32 v%d, 3, v%d" % (c3, b3),
          "v_lshl_add_u32 v%d, v%d, 4, v%d" % (a3, c3, a3),
          "v_lshrrev_b32 v%d, 2, v%d" % (b3, b3),
          "v_xor_b32 v%d, s3, v%d" % (b3, b3),
          "s_lshl_b32 s3, s3, 6",
          "v_mul_u32_u24 v%d, 229376, v%d" % (b3, b3),
          "s_and_b32 s%d, s%d, 14" % (sPO, sHEAD),
          "v_add_u32 v%d, v%d, v%d" % (ACT, a3, b3),
          "s_mul_i32 s%d, s%d, 229376" % (sPO, sPO)]
    w3 += ["v_add_u32 v%d, 0x%x, v%d" % (ACT + 1, 28672, ACT), "s_add_u32 s%d, s%d, s3" % (sPO, sPO),
           "v_add_u32 v%d, 0x%x, v%d" % (ACT + 2, 2 * 28672, ACT), "s_add_u32 s%d, s%d, 384" % (sPO, sPO)]
    w3 += ["v_add_u32 v%d, 0x%x, v%d" % (ACT + j, j * 28672, ACT) for j in range(3, 8)]
    left = G.fill(w3, 3, 32)
    p(G.weave(pv_mf))
    J(left)
    p("s_branch AT_LAST_DONE")
    p.label("AT_LAST_Q")
    G = Gaps(32)
    tr_h1(G, "wq", 0)
    p(G.weave(pv_mf))
    p.label("AT_LAST_DONE")
    st(5)
    for qt in range(2):
        xop_45(p, LS + qt, TMP + 15, "v_add_f32")

    def op_base(q):
        q("s_mul_i32 s%d, s%d, 0x%x" % (sX, sPAIR, OP_STRIDE))
        q("s_mul_i32 s%d, s%d, 17408" % (sY, sWAVE))
        q("s_add_u32 s%d, s%d, s%d" % (sX, sX, sY))
        q("s_add_u32 s%d, s%d, 0x%x" % (sX, sX, WS_OP))

    op_base(p)
    p("s_lshl_b32 s%d, s2, 2" % sY)
    p("s_add_u32 s%d, s%d, s%d" % (sY, sY, sWAVE))
    p("s_lshl_b32 s%d, s%d, 14" % (sY, sY))
    p("s_add_u32 s%d, s%d, 0x%x" % (sY, sY, WS_CX))
    p("s_cmp_eq_u32 s%d, 2" % sACT)
    p("s_cselect_b32 s%d, s%d, s%d" % (sX, sX, sY))
    p("s_waitcnt vmcnt(8)")
    p("s_cmp_eq_u32 s%d, 1" % sACT)
    p("s_cbranch_scc1 AT_MERGE")
    for qt in range(2):
        p("v_rcp_f32 v%d, v%d" % (BS + qt, LS + qt))
    convert("plain")
    p("s_cmp_eq_u32 s%d, 2" % sACT)
    p("s_cbranch_scc0 AT_OPROJ")
    p("s_add_u32 s%d, s%d, 16384" % (sX, sX))
    p("v_mov_b32 v%d, v%d" % (TMP, NEGM))
    p("v_mov_b32 v%d, v%d" % (TMP + 1, LS))
    p("v_mov_b32 v%d, v%d" % (TMP + 2, NEGM + 4))
    p("v_mov_b32 v%d, v%d" % (TMP + 3, LS + 1))
    p("buffer_store_dwordx4 %s, v%d, s[8:11], s%d offen" % (vr(TMP), L16, sX))
    p("s_mov_b32 s%d, s%d" % (sT, sT2))
    p("s_mov_b32 s%d, s%d" % (sNB, sNB2))
    p("s_mov_b32 s%d, 0" % sB0)
    p("s_mov_b32 s%d, 0" % sACT)
    flag_off(p, sSIG, FL_PAIR, sPAIR)
    p("s_mov_b32 s%d, 0x1000" % sCHK)
    J(h_loads(sT, range(8, 14)))
    p("s_waitcnt vmcnt(29)")
    p("s_branch AT_JOB")
    p.label("AT_MERGE")
    for qt in range(2):
        nB, lB = XT + 2 * qt, XT + 2 * qt + 1
        nA = NEGM + 4 * qt
        p("v_min_f32 v%d, v%d, v%d" % (T0, nA, nB))
        p("v_sub_f32 v%d, v%d, v%d" % (T0 + 1, T0, nA))
        p("v_sub_f32 v%d, v%d, v%d" % (T0, T0, nB))
        p("v_exp_f32 v%d, v%d" % (T0 + 1, T0 + 1))
        p("v_exp_f32 v%d, v%d" % (T0, T0))
        p("v_mul_f32 v%d, v%d, v%d" % (lB, lB, T0))
        p("v_fma_f32 v%d, v%d, v%d, v%d" % (T0, LS + qt, T0 + 1, lB))
        p("v_rcp_f32 v%d, v%d" % (T0, T0))
        p("v_mul_f32 v%d, v%d, v%d" % (BS + qt, T0 + 1, T0))
        p("v_mul_f32 v%d, v%d, v%d" % (LS + qt, lB, T0))
    convert("merge")

    p.label("AT_OPROJ")
    st(6)
    PC = 48
    calc, tloads = tail_pre()
    vml = ["conv"] * 16

    def vm(tag):
        return len(vml) - 1 - max(i for i, t in enumerate(vml) if t == tag)

    def ACCO(i):
        return 96 if i in (6, 7) else 16 * (i if i < 6 else i - 8)

    def op_mf(i):
        F = FA if i % 2 == 0 else FB
        Bq = Q if i < 7 else PC
        mf = []
        for mt in range(2):
            for u in range(8):
                for qt in range(2):
                    acc = ar(ACCO(i) + (qt * 2 + mt) * 4)
                    mf.append("%s %s, %s, %s, %s" % (MF, acc, ar(F + 4 * (mt * 8 + u)), vr(Bq + (qt * 8 + u) * 4),
                                                     "0" if (u == 0 and i < 7) else acc))
        return mf

    def op_out(i):
        o = []
        for qt in range(2):
            o += ["v_accvgpr_read_b32 v%d, a%d" % (TMP + k, ACCO(i) + qt * 8 + k) for k in range(8)]
            T = TMP + 8 + 4 * qt
            o += ["v_cvt_pk_bf16_f32 v%d, v%d, v%d" % (T + d, TMP + 2 * d, TMP + 2 * d + 1) for d in range(4)]
            if i == 7:
                o += ["s_add_u32 s%d, s%d, %d" % (sY, sO1, qt * 14336)]
            else:
                o += ["s_add_u32 s%d, s%d, %d" % (sY, sO0, qt * 14336 + (i - 8) * 1024)]
            o += ["buffer_store_dwordx4 %s, v%d, s[8:11], s%d offen sc1" % (vr(T), L16, sY)]
        return o

    a, b, c = TMP, TMP + 1, TMP + 2
    setup0 = ["s_xor_b32 s%d, s%d, 1" % (sPO, sHEAD), "v_mov_b32 v%d, v%d" % (ACT, BWO),
              "s_mul_i32 s%d, s%d, 229376" % (sPO, sPO), "v_add_u32 v%d, 0x%x, v%d" % (ACT + 1, 28672, BWO),
              "s_and_b32 s3, s%d, 1" % sHEAD, "v_add_u32 v%d, 0x%x, v%d" % (ACT + 2, 2 * 28672, BWO),
              "s_lshl_b32 s3, s3, 9", "v_add_u32 v%d, 0x%x, v%d" % (ACT + 3, 3 * 28672, BWO),
              "s_add_u32 s%d, s%d, s3" % (sPO, sPO)]
    setup0 += ["v_add_u32 v%d, 0x%x, v%d" % (ACT + j, j * 28672, BWO) for j in range(4, 8)]
    setup1 = ["s_lshl_b32 s%d, s%d, 3" % (sO0, sT), "v_lshrrev_b32 v%d, 4, v0" % a,
              "s_lshl_b32 s3, s%d, 1" % sWAVE, "v_and_b32 v%d, 7, v%d" % (b, a),
              "s_add_u32 s%d, s%d, s3" % (sO0, sO0), "v_lshlrev_b32 v%d, 1, v%d" % (b, b),
              "s_mul_i32 s%d, s%d, 14336" % (sO0, sO0), "v_and_b32 v%d, 15, v1" % c,
              "s_lshr_b32 s3, s%d, 1" % sHEAD, "v_xor_b32 v%d, v%d, v%d" % (b, b, c),
              "s_mul_i32 s3, s3, 0x%x" % H_BYTES, "v_lshlrev_b32 v%d, 4, v%d" % (b, b),
              "s_add_u32 s%d, s%d, s3" % (sO0, sO0), "v_mul_u32_u24 v%d, 3584, v%d" % (a, a),
              "s_add_u32 s%d, s%d, 0x%x" % (sO0, sO0, WS_PART), "v_add_u32 v%d, v%d, v%d" % (BWQ, a, b),
              "s_and_b32 s3, s%d, 1" % sHEAD, "s_lshl_b32 s3, s3, 10", "s_add_u32 s%d, s%d, s3" % (sO1, sO0),
              "s_add_u32 s%d, s%d, 6144" % (sO1, sO1), "s_lshl_b32 s3, s3, 3", "s_add_u32 s%d, s%d, s3" % (sO0, sO0)]
    flag_off(p, sSIG, FL_CX, sHEAD)
    p("s_xor_b32 s%d, s%d, 64" % (sZ, sSIG))
    p("s_lshl_b32 s3, s%d, 2" % sROLE)
    p("s_add_u32 s%d, s%d, s3" % (sZ, sZ))
    p("s_xor_b32 s%d, s%d, 0x80000" % (sX, sX))
    p("s_waitcnt lgkmcnt(0)")
    NOS = (27, 28, 39, 40)
    for t in range(7):
        G = Gaps(64)
        place_dma(G, 0)
        busy0 = list(DG)
        out0 = op_out(2 * t - 1) if 2 * t - 1 >= 7 else []
        out1 = op_out(2 * t) if 2 * t >= 8 else []
        if out0:
            busy0 += [20, 31]
        spread_reads(G, reads("wo", 1), [g for g in range(32) if g not in busy0])
        G.at(12, "s_waitcnt lgkmcnt(8)")
        G.put([24, 27, 28], RING_ADV)
        if out0:
            G.put([3, 4, 5, 7, 8, 9, 11, 12, 13, 15, 16, 17], out0[:12])
            G.at(20, out0[12], out0[13])
            G.put([16, 17, 19, 19, 21, 21, 23, 24, 25, 27, 28, 29], out0[14:26])
            G.at(31, out0[26], out0[27])
            vml.extend(["g%d" % t] * 5 + ["st"] + ["g%d" % t] * 3 + ["st"])
        else:
            vml.extend(["g%d" % t] * 8)
        if t == 1:
            assert not G.fill(calc2, 0, 31, NOS)
        if t == 2:
            assert not G.fill(setup1, 0, 31, NOS)
        need = {1: "smp", 3: "pc", 5: "g3", 6: "tl"}.get(t)
        w = "s_waitcnt %slgkmcnt(8)" % ("vmcnt(%d) " % vm(need) if need else "")
        mfs = op_mf(2 * t) + op_mf(2 * t + 1)
        if t == 0:
            p(Gaps_slice(G, mfs, 0, 12))
            p("s_waitcnt vmcnt(3)")
            p("s_barrier")
            signalw(p, sSIG, sROLE, T0, T0 + 1, "AT_SIGCX", local=True)
            p(Gaps_slice(G, mfs, 12, 32))
        else:
            p(Gaps_slice(G, mfs, 0, 32))
        p(w)
        p("s_barrier")
        if t == 1:
            poll(p, sZ, 1, T0, ZER, 40, 41, "AT_POLLCX", first_loaded=True, acquire=True)
        G.put([35, 36, 39, 40], PROD_ADV)
        busy = []
        side = []
        if t == 3:
            side = tloads
        elif t in (1, 2):
            for u in range(4 * (t - 1), 4 * t):
                for qt in range(2):
                    f = qt * 8 + u
                    side.append(["s_add_u32 s%d, s%d, %d" % (sY, sX, f * 1024),
                                 "buffer_load_dwordx4 %s, v%d, s[8:11], s%d offen sc1" % (vr(PC + 4 * f), L16, sY)])
        sg = [34, 37, 41, 45, 48, 50, 51, 54, 56, 57, 59, 60, 61, 62, 63, 38] if len(side) > 8 else [37, 41, 45, 48, 51, 54, 57, 60]
        for op, g in zip(side, sg):
            G.at(g, *op)
            busy.append(g)
            vml.append("pc" if t < 3 else "tl")
        if t == 0:
            G.at(63, "buffer_load_dword v%d, v%d, s[8:11], s%d offen sc1" % (T0, ZER, sZ))
            busy.append(63)
            vml.append("smp")
        if out1:
            busy += [50, 63]
        if t < 6:
            tr_h1(G, "wo", 32, busy=busy)
        if out1:
            G.put(range(37, 49), out1[:12])
            G.at(50, out1[12], out1[13])
            G.put(range(51, 63), out1[14:26])
            G.at(63, out1[26], out1[27])
            vml.extend(["st", "st"])
        G.at(44, "s_waitcnt lgkmcnt(%d)" % (8 if t < 6 else 0))
        if t < 6:
            G.at(58, "s_waitcnt lgkmcnt(8)")
        if t == 0:
            rest = G.fill(setup0 + calc, 41, 64, NOS)
            calc2 = rest
        if t == 3:
            so, vo = prod_set("w1")
            G.put([42, 43, 46, 47, 49, 52, 53], so)
            G.put([42, 43, 46, 47, 49, 52, 53, 55], vo)
        import sys
        print("   sched oproj%d: est penalty %d" % (t, G.penalty()), file=sys.stderr)
        p(Gaps_slice(G, op_mf(2 * t) + op_mf(2 * t + 1), 32, 64))
        st("o%d" % t)
    J(op_out(13))
    st(7)

    q = stubs
    JQ = lambda l: q("\n".join(l))
    for kt in range(2):
        q.label("AT_MASK%d" % kt)
        JQ(mask_code(kt))
        q("s_branch AT_MASK%d_RET" % kt)
    q.label("AT_KVCHK")
    q("s_cmp_eq_u32 s%d, 0" % sX)
    q("s_cbranch_scc0 AT_KVCHK2")
    q("buffer_load_dword v%d, v%d, s[8:11], s%d offen sc1" % (XT + 10, ZER, sSIG))
    q("s_branch AT_KVCHK_RET")
    q.label("AT_KVCHK2")
    st("c0", q)
    q("s_waitcnt vmcnt(8)")
    poll(q, sSIG, 16, XT + 10, ZER, sX, sY, "AT_POLLKV", first_loaded=True, acquire=True)
    st("c1", q)
    q("s_sub_u32 s%d, s%d, 12" % (sX, sROLE))
    q("s_cmp_lt_u32 s%d, 3" % sX)
    q("s_cbranch_scc0 AT_KVCHK_RET")
    if wb:
        q("s_add_u32 s%d, s%d, s%d" % (sY, sX, sWAVE))
        q("s_cmp_eq_u32 s%d, 0" % sY)
        q("s_cbranch_scc0 AT_NOWB")
        q("buffer_wbl2 sc1")
        q.label("AT_NOWB")
    q("s_lshl_b32 s%d, s%d, 4" % (sX, sX))
    q("s_add_u32 s%d, s%d, s%d" % (sX, sX, sHEAD))
    q("s_mul_i32 s%d, s%d, 38272" % (sX, sX))
    q("s_cmp_eq_u32 s%d, 1" % sWAVE)
    q("s_cselect_b32 s%d, 0x%x, 0" % (sY, H_BYTES))
    q("s_add_u32 s%d, s%d, s%d" % (sX, sX, sY))
    q("s_cmp_eq_u32 s%d, 2" % sWAVE)
    q("s_cselect_b32 s12, s%d, s%d" % (pW1, pW2))
    q("s_cselect_b32 s13, s%d, s%d" % (pW1 + 1, pW2 + 1))
    q("s_mov_b32 s14, 0x%x" % (448 * 1792 * 2))
    q("s_cmp_lt_u32 s%d, 2" % sWAVE)
    q("s_cselect_b32 s12, s%d, s12" % pWO)
    q("s_cselect_b32 s13, s%d, s13" % (pWO + 1))
    q("s_cselect_b32 s14, 0x%x, s14" % (448 * 4096 * 2))
    q("s_and_b32 s13, s13, 0xffff")
    q("v_lshlrev_b32 v%d, 7, v1" % (XT + 4))
    for i in range(5):
        q("buffer_load_dword v%d, v%d, s[12:15], s%d offen" % (XT + 5 + i, XT + 4, sX))
        q("s_add_u32 s%d, s%d, 8192" % (sX, sX))
    q("s_branch AT_KVCHK_RET")

    q.label("AT_SWITCH")
    q("s_cmp_eq_u32 s%d, 3" % sCNT)
    q("s_cbranch_scc1 AT_SW3")
    for j in range(4):
        q("v_mov_b32 v%d, v%d" % (ACT + 4 + j, ACT + j))
    q("s_cmp_eq_u32 s%d, 1" % sACT)
    q("s_cbranch_scc0 AT_SWITCH_RET")
    flag_off(q, sZ, FL_PAIR, sPAIR)
    q("buffer_load_dword v%d, v%d, s[8:11], s%d offen sc1" % (T0 + 1, ZER, sZ))
    q("s_branch AT_SWITCH_RET")
    q.label("AT_SW3")
    st("w0", q)
    q("s_cmp_eq_u32 s%d, 2" % sACT)
    q("s_cbranch_scc1 AT_SW_Q")
    so, vo = prod_set("wo")
    JQ(so + vo)
    q("s_cmp_eq_u32 s%d, 1" % sACT)
    q("s_cbranch_scc0 AT_SWITCH_RET")
    q("s_waitcnt vmcnt(8)")
    poll(q, sZ, 1, T0 + 1, ZER, sX, sY, "AT_POLLP", first_loaded=True, acquire=True)
    st("w1", q)
    op_base(q)
    for f in range(16):
        if f % 4 == 0 and f:
            q("s_add_u32 s%d, s%d, 4096" % (sX, sX))
        q("buffer_load_dwordx4 %s, v%d, s[8:11], s%d offen offset:%d sc1" % (vr(MRG + 4 * f), L16, sX, (f % 4) * 1024))
    q("s_add_u32 s%d, s%d, 4096" % (sX, sX))
    q("buffer_load_dwordx4 %s, v%d, s[8:11], s%d offen sc1" % (vr(XT), L16, sX))
    q("s_branch AT_SWITCH_RET")
    q.label("AT_SW_Q")
    so, vo = prod_set("wq")
    JQ(so + vo)
    JQ(h_loads(sT2, range(8)))
    q("s_branch AT_SWITCH_RET")

    q.label("AT_RARE")
    q("s_nop 7")
    for qt in range(2):
        D, Fc = TMP + qt, TMP + 2 + qt
        rowmax(q, qt, D)
        q("v_max_f32 v%d, 0, v%d" % (D, D))
        q("v_sub_f32 v%d, 0, v%d" % (Fc, D))
        q("v_exp_f32 v%d, v%d" % (Fc, Fc))
        for r in range(4):
            q("v_sub_f32 v%d, v%d, v%d" % (NEGM + 4 * qt + r, NEGM + 4 * qt + r, D))
        q("v_mul_f32 v%d, v%d, v%d" % (LS + qt, LS + qt, Fc))
        for kt in range(2):
            for r in range(4):
                s = Sreg(kt, qt) + r
                q("v_sub_f32 v%d, v%d, v%d" % (s, s, D))
    for dt in range(16):
        for qt in range(2):
            for r in range(4):
                q("v_accvgpr_read_b32 v%d, a%d" % (TMP + 4 + r, Oreg(dt, qt) + r))
            for r in range(4):
                q("v_mul_f32 v%d, v%d, v%d" % (TMP + 4 + r, TMP + 4 + r, TMP + 2 + qt))
            for r in range(4):
                q("v_accvgpr_write_b32 a%d, v%d" % (Oreg(dt, qt) + r, TMP + 4 + r))
    JQ(ex + ad)
    q("s_branch AT_RARE_RET")


def Gaps_slice(G, mf, a, b):
    out = []
    for k in range(a, b):
        out.append(mf[k])
        out.extend(G.ordered(k))
    return "\n".join(out)
```

```python
from fused_common import *

XB = [32, 96]
WB = [64, 128]
XN, FLG, XOFF, MOFF, HOFF, VALID, MV, ZV = 160, 176, 177, 178, 179, 212, 180, 213
sKB, sWHICH = 27, 26


def entry(p, st, ct=1):
    p.label("K_START")
    p("s_cmp_ge_u32 s2, 256")
    p("s_cbranch_scc1 K_END")
    st(0)
    p("s_load_dwordx4 s[48:51], s[0:1], 0")
    p("s_load_dwordx2 s[%d:%d], s[0:1], 16" % (pWQ, pWQ + 1))
    p("s_load_dwordx4 s[40:43], s[0:1], 24")
    p("s_load_dwordx2 s[%d:%d], s[0:1], 40" % (pWO, pWO + 1))
    p("s_load_dwordx4 s[%d:%d], s[0:1], 56" % (pW1, pW1 + 3))
    p("s_load_dwordx4 s[36:39], s[0:1], 72")
    p("s_load_dwordx2 s[%d:%d], s[0:1], 88" % (pOUT, pOUT + 1))
    p("s_load_dwordx2 s[16:17], s[0:1], 96")
    p("s_load_dwordx2 s[%d:%d], s[0:1], 104" % (pWS, pWS + 1))
    p("v_and_b32 v1, 63, v0")
    p("v_lshrrev_b32 v30, 6, v0")
    p("v_readfirstlane_b32 s%d, v30" % sWAVE)
    p("s_and_b32 s3, s2, 7")
    p("s_lshr_b32 s%d, s2, 3" % sROLE)
    p("s_and_b32 s%d, s%d, 1" % (sHEAD, sROLE))
    p("s_lshl_b32 s3, s3, 1")
    p("s_add_u32 s%d, s%d, s3" % (sHEAD, sHEAD))
    p("s_lshr_b32 s%d, s%d, 1" % (sROLE, sROLE))
    p("s_lshr_b32 s%d, s%d, 1" % (sKB, sROLE))
    p("s_mul_i32 s%d, s%d, 5" % (sKB, sKB))
    p("s_and_b32 s%d, s%d, 7" % (sKB, sKB))
    p("s_and_b32 s%d, s%d, 1" % (sWHICH, sROLE))
    if ct:
        code_touch(p, 44, 214, 221, 3)


def gen(p, st, hooks, touch=False, slow=False, ct=1):
    p("v_lshrrev_b32 v31, 5, v1")
    p("v_and_b32 v29, 31, v1")
    p("v_lshlrev_b32 v28, 3, v30")
    p("v_add_u32 v28, v28, v31")
    for j in range(4):
        p("v_add_u32 v24, %d, v28" % (2 * j))
        p("v_and_b32 v25, 3, v24")
        p("v_bfe_u32 v26, v24, 3, 1")
        p("v_lshl_add_u32 v25, v26, 2, v25")
        p("v_lshlrev_b32 v25, 1, v25")
        p("v_xor_b32 v25, v29, v25")
        p("v_lshlrev_b32 v25, 4, v25")
        p("v_lshl_add_u32 v%d, v24, 13, v25" % (2 + j))
    p("v_lshrrev_b32 v28, 3, v1")
    p("v_lshl_add_u32 v28, v30, 5, v28")
    p("v_and_b32 v26, 7, v1")
    for j in range(4):
        p("v_add_u32 v24, %d, v28" % (8 * j))
        p("v_bfe_u32 v25, v24, 1, 3")
        p("v_xor_b32 v25, v26, v25")
        p("v_lshlrev_b32 v25, 4, v25")
        p("v_lshl_add_u32 v%d, v24, 11, v25" % (6 + j))
    p("v_lshrrev_b32 v24, 2, v29")
    p("v_and_b32 v25, 3, v1")
    p("v_lshlrev_b32 v26, 7, v24")
    p("v_lshl_add_u32 v%d, v25, 4, v26" % MOFF)
    p("s_lshl_b32 s3, s2, 3")
    p("v_lshl_add_u32 v27, v30, 1, v31")
    p("v_add_u32 v27, s3, v27")
    p("v_mul_u32_u24 v26, 896, v27")
    p("v_lshrrev_b32 v28, 1, v%d" % MOFF)
    p("v_add_u32 v%d, v26, v28" % XOFF)
    p("v_lshrrev_b32 v26, 4, v27")
    p("v_mul_u32_u24 v26, 14336, v26")
    p("v_lshl_add_u32 v26, v24, 10, v26")
    p("v_lshl_add_u32 v26, v25, 8, v26")
    p("v_and_b32 v27, 15, v27")
    p("v_lshl_add_u32 v%d, v27, 4, v26" % HOFF)
    p("v_cmp_gt_u32 vcc, 28, v29")
    p("v_mov_b32 v26, 0x7f000000")
    p("v_mov_b32 v%d, 0" % ZV)
    p("v_cndmask_b32 v%d, v26, v%d, vcc" % (XOFF, XOFF))
    p("v_cndmask_b32 v%d, v26, v%d, vcc" % (HOFF, HOFF))
    p("v_cndmask_b32 v%d, 0, 1.0, vcc" % VALID)
    p("s_waitcnt lgkmcnt(0)")
    srd(p, 12, 50, 51, 2048 * 1024 * 2)
    p("s_mov_b32 s%d, s48" % pX)
    p("s_mov_b32 s%d, s49" % (pX + 1))
    p("s_cmp_eq_u32 s%d, 0" % sWHICH)
    p("s_cselect_b32 s40, s40, s42")
    p("s_cselect_b32 s41, s41, s43")
    srd(p, 4, 40, 41, 1024 * 4096 * 2)
    srd(p, 8, pWS, pWS + 1, WS_BYTES)
    srd(p, 44, pX, pX + 1, H_BYTES)
    for k, off in enumerate((0, 32, 448, 480)):
        p("buffer_load_dwordx2 %s, v%d, s[44:47], 0 offen offset:%d" % (vr(MV + 2 * k, 2), XOFF, off))
    p("s_sub_u32 s25, s%d, 12" % sROLE)
    p("s_lshl_b32 s25, s25, 4")
    p("s_add_u32 s25, s25, s%d" % sHEAD)
    p("s_cmp_lt_u32 s25, 42")
    p("s_cbranch_scc0 KV_NOMOD1")
    srd(p, 44, 36, 37, 896)
    p("v_lshrrev_b32 v24, 3, v0")
    p("v_mul_u32_u24 v25, 28, v24")
    p("buffer_load_dwordx4 v[96:99], v25, s[44:47], 0 offen")
    p("buffer_load_dwordx3 v[100:102], v25, s[44:47], 0 offen offset:16")
    srd(p, 44, 38, 39, 448 * 2688 * 2)
    p("v_mul_u32_u24 v25, %d, v24" % (14 * 5376))
    p("v_and_b32 v24, 7, v0")
    p("v_lshl_add_u32 v25, v24, 4, v25")
    p("s_lshl_b32 s3, s25, 7")
    for i in range(14):
        p("buffer_load_dwordx4 %s, v25, s[44:47], s3 offen" % vr(32 + 4 * i))
        p("s_add_u32 s3, s3, 5376")
    p.label("KV_NOMOD1")
    p("s_lshl_b32 s30, s%d, 12" % sWAVE)
    p("s_add_u32 s31, s30, 0x10000")
    p("s_lshl_b32 s28, s%d, 9" % sHEAD)
    p("s_lshl_b32 s29, s%d, 19" % sKB)

    def dma_w(slot, j):
        return ["s_add_u32 m0, s30, %d" % (slot * 16384 + j * 1024),
                "buffer_load_dwordx4 v%d, s[4:7], s28 offen lds" % (2 + j)]

    def dma_x(e, j):
        return ["s_add_u32 m0, s36, %d" % (e * 16384 + j * 1024),
                "buffer_load_dwordx4 v%d, s[12:15], s%d offen lds" % (6 + j, 35 if e else 29)]

    p("s_mov_b32 s36, s31")
    p("s_add_u32 s35, s29, 0x40000")
    for j in range(4):
        p("\n".join(dma_x(0, j)))
    for g in range(4):
        for j in range(4):
            p("\n".join(dma_w(g, j)))
        p("s_add_u32 s28, s28, 0x40000")
        if g % 2 == 0:
            for j in range(4):
                p("\n".join(dma_x(1, j)))
        else:
            p("s_add_u32 s36, s36, 0x8000")
            p("s_add_u32 s29, s29, 128")
            p("s_add_u32 s35, s35, 128")
            for j in range(4):
                p("\n".join(dma_x(0, j)))
    if touch:
        srd(p, 44, pWQ, pWQ + 1, 448 * 4096 * 2)
        p("v_min_u32 v214, 27, v1")
        p("v_lshlrev_b32 v214, 7, v214")
        p("s_lshl_b32 s3, s2, 2")
        p("s_add_u32 s3, s3, s%d" % sWAVE)
        p("s_mul_i32 s3, s3, 3584")
        p("buffer_load_dword v220, v214, s[44:47], s3 offen")
    p("s_mov_b32 s34, 0x10000")
    p("s_mov_b32 s32, 0")
    p("s_mov_b32 s33, 8")
    p("v_lshrrev_b32 v28, 1, v30")
    p("v_and_b32 v27, 15, v1")
    p("v_lshl_add_u32 v28, v28, 7, v27")
    p("v_lshlrev_b32 v28, 7, v28")
    p("v_add_u32 v28, 0x10000, v28")
    p("v_bfe_u32 v24, v1, 1, 3")
    p("v_lshrrev_b32 v26, 4, v1")
    for ks in range(2):
        p("v_add_u32 v25, %d, v26" % (4 * ks))
        p("v_xor_b32 v25, v25, v24")
        p("v_lshl_add_u32 v%d, v25, 4, v28" % (10 + ks))
    p("v_bfe_u32 v28, v1, 2, 2")
    p("v_lshl_add_u32 v24, v26, 3, v28")
    p("v_lshlrev_b32 v24, 9, v24")
    p("v_and_b32 v25, 1, v30")
    p("v_lshl_add_u32 v24, v25, 8, v24")
    p("v_and_b32 v25, 3, v1")
    p("v_lshl_add_u32 v24, v25, 3, v24")
    p("v_bfe_u32 v25, v1, 2, 3")
    p("v_lshl_add_u32 v24, v25, 5, v24")
    for nt in range(8):
        p("v_xor_b32 v%d, %d, v24" % (16 + nt, nt * 32))
    for i in range(4):
        p("v_mov_b32 v%d, 0" % (216 + i))
    for i in range(16):
        p("v_mfma_f32_32x32x16_bf16 a[%d:%d], v[216:219], v[216:219], 0" % (16 * i, 16 * i + 15))
    srd(p, 44, 16, 17, 256)
    p("s_getreg_b32 s3, hwreg(HW_REG_XCC_ID, 0, 4)")
    p("s_mul_i32 s37, s3, s3")
    p("s_lshl_b32 s37, s37, 10")
    p("s_add_u32 s37, s37, s3")
    p("s_add_u32 s37, s37, 0x1000000")
    p("s_lshl_b32 s%d, s37, 5" % sFAST)
    p("s_lshr_b32 s39, s%d, 1" % sHEAD)
    p("s_lshl_b32 s39, s39, 2")
    p("s_add_u32 s39, s39, 64")
    p("s_cmp_lg_u32 s%d, 0" % sWAVE)
    p("s_cbranch_scc1 KV_NOREG")
    p("v_mov_b32 v214, s37")
    p("s_mov_b64 exec, 1")
    p("buffer_atomic_add v214, v%d, s[44:47], s39 offen sc1" % ZV)
    p("s_mov_b64 exec, -1")
    p.label("KV_NOREG")
    p("s_waitcnt vmcnt(%d)" % (37 if touch else 36))
    unpack(p, XN, MV, 8)
    p("v_add_f32 v24, v%d, v%d" % (XN, XN + 1))
    for i in range(2, 16):
        p("v_add_f32 v24, v24, v%d" % (XN + i))
    xsum_row32(p, 24, 25)
    p("v_mul_f32 v24, %s, v24" % f32bits(1.0 / 448))
    p("v_mov_b32 v26, 0")
    for i in range(16):
        p("v_sub_f32 v%d, v%d, v24" % (XN + i, XN + i))
        p("v_fmac_f32 v26, v%d, v%d" % (XN + i, XN + i))
    p("v_mul_f32 v26, v26, v%d" % VALID)
    xsum_row32(p, 26, 25)
    p("v_mov_b32 v27, %s" % f32bits(1e-5))
    p("v_fmac_f32 v27, %s, v26" % f32bits(1.0 / 448))
    p("v_rsq_f32 v27, v27")
    for i in range(16):
        p("v_mul_f32 v%d, v%d, v27" % (XN + i, XN + i))
    p("s_cmp_lt_u32 s25, 42")
    p("s_cbranch_scc0 KV_NOMOD2")
    unpack(p, 104, 96, 7)
    for i in range(14):
        p("v_mul_f32 v%d, %s, v%d" % (128 + i, f32bits(-math.log2(math.e)), 104 + i))
    for i in range(14):
        p("v_exp_f32 v%d, v%d" % (128 + i, 128 + i))
    for i in range(14):
        p("v_add_f32 v%d, 1.0, v%d" % (128 + i, 128 + i))
    for i in range(14):
        p("v_rcp_f32 v%d, v%d" % (128 + i, 128 + i))
    for i in range(14):
        p("v_mul_f32 v%d, v%d, v%d" % (104 + i, 104 + i, 128 + i))
    for i in range(14):
        p("v_cvt_pk_bf16_f32 v%d, v%d, v%d" % (128 + i, 104 + i, ZV))
        p("v_cvt_pk_bf16_f32 v%d, v%d, v%d" % (144 + i, ZV, 104 + i))
    for d in range(8):
        p("v_mov_b32 v%d, 0" % (120 + d))
    for i in range(14):
        for d in range(4):
            p("v_dot2c_f32_bf16 v%d, v%d, v%d" % (120 + 2 * d, 128 + i, 32 + 4 * i + d))
            p("v_dot2c_f32_bf16 v%d, v%d, v%d" % (121 + 2 * d, 144 + i, 32 + 4 * i + d))
    p("v_lshlrev_b32 v24, 5, v0")
    p("v_add_u32 v24, 0x24000, v24")
    p("s_nop 1")
    p("ds_write_b128 v24, v[120:123]")
    p("ds_write_b128 v24, v[124:127] offset:16")
    p("s_waitcnt lgkmcnt(0)")
    p("s_barrier")
    p("s_cmp_lg_u32 s%d, 0" % sWAVE)
    p("s_cbranch_scc1 KV_NOMOD2")
    p("v_lshlrev_b32 v25, 2, v1")
    p("v_add_u32 v24, 0x24000, v25")
    for i in range(32):
        p("ds_read_b32 v%d, v24 offset:%d" % (32 + i, 256 * i))
    p("s_waitcnt lgkmcnt(0)")
    for i in range(1, 32):
        p("v_add_f32 v32, v32, v%d" % (32 + i))
    round_bf16(p, 32)
    p("s_lshl_b32 s3, s25, 8")
    p("buffer_store_dword v32, v25, s[8:11], s3 offen offset:%d sc1" % WS_MOD)
    p("s_cmp_lg_u32 s25, 0")
    p("s_cbranch_scc1 KV_NOMOD2")
    p("v_lshlrev_b32 v25, 4, v1")
    p("s_mov_b32 s3, 0x%x" % WS_FLAG)
    for i in range(NFLAG_KB):
        p("buffer_store_dwordx4 v[216:219], v25, s[8:11], s3 offen sc1")
        p("s_add_u32 s3, s3, 1024")
    p.label("KV_NOMOD2")

    def reads(buf, xks, wslot):
        out = []
        for i in range(8):
            out.append("ds_read_b128 v[%d:%d], v14 offset:%d" % (XB[buf] + 4 * i, XB[buf] + 4 * i + 3, i * 2048))
            for h in range(2):
                out.append("ds_read_b64_tr_b16 v[%d:%d], v%d offset:%d" % (
                    WB[buf] + 4 * i + 2 * h, WB[buf] + 4 * i + 2 * h + 1, 16 + i, wslot * 16384 + h * 2048))
        return out

    st(1)
    p("s_waitcnt vmcnt(%d)" % (25 if touch else 24))
    p("s_barrier")
    p("v_add_u32 v14, s32, v10")
    p("\n".join(reads(0, 0, 0)))
    p("s_cmp_eq_u32 s%d, 0" % sWHICH)
    p("s_cbranch_scc0 KV_LOOP_V")

    def mfmas(buf, isk):
        out = []
        for i in range(8):
            for j in range(8):
                n = (i * 8 + j) if isk else (j * 8 + i)
                acc = ar(n * 4)
                x = vr(XB[buf] + 4 * i)
                w = vr(WB[buf] + 4 * j)
                out.append("%s %s, %s, %s, %s" % ((MF, acc, w, x, acc) if isk else (MF, acc, x, w, acc)))
        return out

    def loop(isk, name):
        p(".p2align 6")
        p.label(name)
        for t in range(4):
            p("s_waitcnt vmcnt(16) lgkmcnt(0)")
            p("s_barrier")
            G = Gaps(64)
            if t & 1:
                G.at(0, "s_add_u32 s32, s32, 0x8000", "s_cmp_eq_u32 s32, 0x18000", "s_cselect_b32 s32, 0, s32")
                G.at(3, "s_add_u32 s34, s34, 0x8000", "s_cmp_eq_u32 s34, 0x18000", "s_cselect_b32 s34, 0, s34")
                G.at(5, "s_add_u32 s36, s31, s34", "s_add_u32 s29, s29, 128", "s_add_u32 s35, s35, 128")
            G.at(1, "v_add_u32 v14, s32, v%d" % (10 + ((t + 1) & 1)))
            G.put(range(2, 50, 2), reads((t + 1) & 1, (t + 1) & 1, (t + 1) % 4))
            e = 0 if t & 1 else 1
            d = [dma_w(t, j) for j in range(4)] + [dma_x(e, j) for j in range(4)]
            for k in range(8):
                G.at(8 + 6 * k, d[k][0])
                G.at(9 + 6 * k, d[k][1])
            G.at(61, "s_add_u32 s28, s28, 0x40000")
            if t == 3:
                G.at(62, "s_sub_u32 s33, s33, 1")
            p(G.weave(mfmas(t & 1, isk), "kv" if isk and t == 1 else None))
        p("s_branch KV_STUB")

    loop(True, "KV_LOOP_K")
    loop(False, "KV_LOOP_V")
    p.label("KV_STUB")
    p("s_cmp_eq_u32 s33, 7")
    p("s_cbranch_scc0 KV_ST6")
    st("k7")
    p("s_cmp_lt_u32 s25, 42")
    p("s_cbranch_scc0 KV_STRET")
    p("s_mov_b32 s3, 0")
    signal(p, 3, 214, 215, "KV_SIGMOD", srd_=44)
    p("s_branch KV_STRET")
    p.label("KV_ST6")
    p("s_cmp_eq_u32 s33, 5")
    p("s_cbranch_scc0 KV_ST5")
    st("k6")
    p("buffer_load_dword v%d, v%d, s[44:47], 0 offen sc1" % (FLG, ZV))
    p("buffer_load_dword v215, v%d, s[44:47], s39 offen sc1" % ZV)
    p("s_branch KV_STRET")
    p.label("KV_ST5")
    p("s_cmp_eq_u32 s33, 4")
    p("s_cbranch_scc0 KV_ST4")
    st("k5")
    poll(p, 39, 0x20000000, 215, ZV, 37, 38, "KV_POLLX", srd_=44, first_loaded=True)
    p("s_cmp_eq_u32 s37, s%d" % sFAST)
    p("s_cselect_b32 s%d, %d, 0" % (sFAST, 0 if slow else 1))
    p("s_mov_b32 s3, 0")
    poll(p, 3, 42, FLG, ZV, 37, 38, "KV_POLLMOD", srd_=44, first_loaded=True)
    for v, idx in ((0, 1), (16, 0)):
        for k, off in enumerate((0, 64, 896, 960)):
            p("buffer_load_dwordx4 %s, v%d, s[8:11], 0 offen offset:%d sc1" % (vr(MV + v + 4 * k), MOFF, WS_MOD + idx * 1792 + off))
    p("s_branch KV_STRET")
    p.label("KV_ST4")
    p("s_cmp_eq_u32 s33, 3")
    p("s_cbranch_scc0 KV_ST3")
    st("k4")
    for i in range(16):
        p("v_add_f32 v%d, 1.0, v%d" % (MV + i, MV + i))
        round_bf16(p, MV + i)
        p("v_fma_f32 v%d, v%d, v%d, v%d" % (XN + i, XN + i, MV + i, MV + 16 + i))
        p("v_mul_f32 v%d, %s, v%d" % (XN + i, f32bits(QSCALE), XN + i))
    for d in range(8):
        p("v_cvt_pk_bf16_f32 v%d, v%d, v%d" % (MV + d, XN + 2 * d, XN + 2 * d + 1))
    p("s_mov_b32 s3, 0x%x" % WS_H)
    p("buffer_store_dwordx4 %s, v%d, s[8:11], s3 offen sc1" % (vr(MV), HOFF))
    p("s_mov_b32 s3, 0x%x" % (WS_H + 7168))
    p("buffer_store_dwordx4 %s, v%d, s[8:11], s3 offen sc1" % (vr(MV + 4), HOFF))
    p("s_branch KV_STRET")
    p.label("KV_ST3")
    p("s_cmp_eq_u32 s33, 2")
    p("s_cbranch_scc0 KV_ST2")
    st("k3")
    p("s_lshr_b32 s37, s2, 4")
    flag_off(p, 3, FL_H, 37)
    signal(p, 3, 214, 215, "KV_SIGH")
    p("s_branch KV_STRET")
    p.label("KV_ST2")
    p.label("KV_ST1")
    p("s_cmp_eq_u32 s33, 0")
    p("s_cbranch_scc1 KV_DONE")
    p("s_cmp_eq_u32 s33, 1")
    p("s_cbranch_scc0 KV_STRET")
    st("k1")
    p("s_mov_b32 s4, s%d" % pWQ)
    p("s_and_b32 s5, s%d, 0xffff" % (pWQ + 1))
    p("s_mov_b32 s6, 0x%x" % (448 * 4096 * 2))
    p("s_lshl_b32 s28, s%d, 9" % sHEAD)
    p("s_add_u32 s30, s30, 98304")
    p("s_mov_b32 s14, 0")
    p("s_mov_b32 s31, 0x28000")
    p("s_mov_b32 s36, 0x28000")
    p("v_lshlrev_b32 v28, 3, v30")
    p("v_add_u32 v28, v28, v31")
    for j in range(4):
        p("v_add_u32 v24, %d, v28" % (2 * j))
        p("v_and_b32 v25, 7, v24")
        p("v_lshlrev_b32 v25, 1, v25")
        p("v_xor_b32 v25, v29, v25")
        p("v_lshlrev_b32 v25, 4, v25")
        p("v_lshl_add_u32 v%d, v24, 13, v25" % (2 + j))
    hooks["st1"]()
    if ct > 1:
        code_touch(p, 40, 214, 221, 3)
    st("k1b")
    p.label("KV_STRET")
    p("s_cmp_eq_u32 s%d, 0" % sWHICH)
    p("s_cbranch_scc1 KV_LOOP_K")
    p("s_branch KV_LOOP_V")
    p.label("KV_DONE")
    st(2)


def epi_setup(p):
    p("s_lshl_b32 s23, s%d, 6" % sHEAD)
    p("s_lshr_b32 s16, s%d, 1" % sROLE)
    p("s_mul_i32 s16, s16, 5")
    p("s_and_b32 s16, s16, 7")
    p("s_lshl_b32 s16, s16, 3")
    p("s_add_u32 s23, s23, s16")
    p("s_lshr_b32 s16, s%d, 1" % sWAVE)
    p("s_lshl_b32 s16, s16, 2")
    p("s_add_u32 s23, s23, s16")
    p("s_lshl_b32 s23, s23, 15")
    p("s_add_u32 s23, s23, 0x%x" % WS_KV)
    p("s_and_b32 s16, s%d, 1" % sWAVE)
    p("s_lshl_b32 s16, s16, 12")
    p("s_add_u32 s23, s23, s16")
    p("s_add_u32 s17, s23, s16")
    p("s_add_u32 s17, s17, 16384")
    p("s_bitcmp0_b32 s%d, 0" % sROLE)
    p("s_cselect_b32 s23, s23, s17")
    p("s_mov_b32 s16, 32768")
    p("s_cselect_b32 s46, 1024, s16")
    p("s_mov_b32 s16, %d" % (1024 - 3 * 32768))
    p("s_cselect_b32 s47, %d, s16" % (8192 - 3 * 1024))
    p("s_cselect_b32 s17, %d, s16" % (32768 - 8192 - 3 * 1024))


def epi_conv(n, dst, T):
    o = ["v_accvgpr_read_b32 v%d, a%d" % (T + r, n * 8 + r) for r in range(8)]
    o += ["v_cvt_pk_bf16_f32 v%d, v%d, v%d" % (dst + r, T + 2 * r, T + 2 * r + 1) for r in range(4)]
    return o


def epi_store(n, src, L16):
    o, u = n >> 2, n & 3
    return ["buffer_store_dwordx4 %s, v%d, s[8:11], s23 offen" % (vr(src), L16),
            "s_add_u32 s23, s23, s%d" % (46 if u < 3 else (47 if (o & 1) == 0 else 17))]
```

```python
from fused_common import *
import phase_attn as A

L16, ZER = A.L16, A.ZER
sRR, sRW = A.sRR, A.sRW


R_, E_, G_, FO, XO, MO, FO2, XO2 = 16, 17, 18, 19, 20, 21, 22, 23
XR, GA, SC, SH, X, L = 176, 184, 200, 216, 240, 48


def pre():
    p = Prog()
    flag_off(p, 30, FL_P, A.sT)
    flag_off(p, 31, FL_P, sHEAD)
    p("v_and_b32 v%d, 7, v1" % R_)
    p("s_lshl_b32 s28, s%d, 4" % sHEAD)
    p("v_lshrrev_b32 v%d, 5, v1" % E_)
    p("s_add_u32 s28, s28, s%d" % sROLE)
    p("v_bfe_u32 v%d, v1, 3, 2" % G_)
    p("s_lshr_b32 s3, s28, 1")
    p("v_lshlrev_b32 v%d, 10, v%d" % (FO, E_))
    p("s_mul_i32 s3, s3, 14336")
    p("v_lshl_add_u32 v%d, v%d, 8, v%d" % (FO, G_, FO))
    p("s_and_b32 s27, s28, 1")
    p("v_lshl_add_u32 v%d, v%d, 4, v%d" % (FO, R_, FO))
    p("s_lshl_b32 s27, s27, 7")
    p("v_lshlrev_b32 v%d, 7, v%d" % (MO, E_))
    p("s_add_u32 s3, s3, s27")
    p("v_lshl_add_u32 v%d, v%d, 4, v%d" % (MO, G_, MO))
    p("s_lshl_b32 s27, s%d, 11" % sWAVE)
    p("s_add_u32 s3, s3, s27")
    p("v_add_u32 v%d, s3, v%d" % (FO, FO))
    p("s_lshl_b32 s3, s%d, 8" % sWAVE)
    p("v_add_u32 v%d, s3, v%d" % (MO, MO))
    p("s_lshl_b32 s3, s28, 3")
    p("v_add_u32 v%d, s3, v%d" % (XO, R_))
    p("s_add_u32 s28, s%d, 1" % sWAVE)
    p("v_mul_u32_u24 v%d, 896, v%d" % (XO, XO))
    p("s_lshr_b32 s28, s28, 2")
    p("v_lshrrev_b32 v%d, 1, v%d" % (XO2, MO))
    p("s_sub_u32 s29, s28, 1")
    p("v_add_u32 v%d, v%d, v%d" % (XO, XO, XO2))
    p("s_and_b32 s29, s29, 0x3f800000")
    p("s_mul_i32 s28, s28, 0x70000000")
    p("v_add_u32 v%d, s28, v%d" % (FO2, FO))
    p("s_mov_b32 s12, s%d" % pX)
    p("v_add_u32 v%d, 8192, v%d" % (FO2, FO2))
    p("s_and_b32 s13, s%d, 0xffff" % (pX + 1))
    p("v_add_u32 v%d, s28, v%d" % (XO2, XO))
    p("s_mov_b32 s14, 0x%x" % H_BYTES)
    calc = [x.text for x in p.ins]
    loads = []
    for k, (vo, off) in enumerate(((XO, 0), (XO, 32), (XO2, 512), (XO2, 544))):
        loads.append(["buffer_load_dwordx2 %s, v%d, s[12:15], 0 offen offset:%d" % (vr(XR + 2 * k, 2), vo, off)])
    for base, idx in ((GA, 2), (SC, 4), (SH, 3)):
        for k, off in enumerate((0, 64, 1024, 1088)):
            loads.append(["s_mov_b32 s3, %d" % (WS_MOD + idx * 1792),
                          "buffer_load_dwordx4 %s, v%d, s[8:11], s3 offen offset:%d sc1" % (vr(base + 4 * k), MO, off)])
    return calc, loads


RS = [40, 41, 42, 43, 44]
WS_ = [45, 46, 47, 16, 17]
W2P = {0: (4, 0), 1: (4, 1), 2: (4, 0), 3: (4, 1), 4: (3, 1), 5: (0, 0), 6: (0, 1), 7: (1, 0), 8: (1, 1),
       9: (2, 0), 10: (2, 1), 11: (3, 0), 12: (4, 0), 13: (4, 1)}
V2, B2, C2 = 3, 4, 8


def w2(k):
    sl, hf = W2P[k]
    o = []
    for j in range(4):
        o.append(["s_add_u32 m0, s%d, %d" % (WS_[sl], hf * 16384 + j * 1024),
                  "s_add_u32 s36, s35, %d" % ((k * 32 + j * 8) * 896),
                  "buffer_load_dwordx4 v%d, s[12:15], s36 offen lds" % V2])
    return o


def cur2(sl):
    return ["v_add_u32 v%d, s%d, v%d" % (C2 + x, WS_[sl], B2 + x) for x in range(4)]


def wreg(k):
    return ("a", 128 + 16 * k) if k < 4 else ("v", 160 + (k % 4) * 16)


def reads2(k):
    kind, b = wreg(k)
    o = []
    for mt in range(4):
        for i in range(2):
            o.append("ds_read_b64_tr_b16 %s, v%d offset:%d" % (vr(b + mt * 4 + 2 * i, 2, kind), C2 + mt, W2P[k][1] * 16384 + i * 2048))
    return o


def gen(p, st, pd=3):
    J = lambda l: p("\n".join(l))
    JJ = lambda ll: [J(l) for l in ll]
    for i in range(16):
        p("v_mov_b32 v%d, 0" % (X + i))
        p("v_add_f32 v%d, 1.0, v%d" % (SC + i, SC + i))
        round_bf16(p, SC + i)
    p("s_mov_b32 s%d, s%d" % (RS[0], sRR))
    for i in range(1, 5):
        p("s_add_u32 s%d, s%d, 0x8000" % (RS[i], RS[i - 1]))
        p("s_cmp_ge_u32 s%d, 0x%x" % (RS[i], A.RING))
        p("s_cselect_b32 s%d, 0, s%d" % (RS[i], RS[i]))
    p("v_lshrrev_b32 v36, 3, v1")
    p("v_bfe_u32 v37, v36, 1, 2")
    p("v_lshlrev_b32 v37, 1, v37")
    p("v_and_b32 v38, 7, v1")
    p("v_xor_b32 v37, v37, v38")
    p("v_lshlrev_b32 v37, 4, v37")
    p("v_mul_u32_u24 v36, 896, v36")
    p("v_add_u32 v%d, v36, v37" % V2)
    srd(p, 12, pW2, pW2 + 1, 448 * 1792 * 2)
    p("s_cmp_lt_u32 s%d, 14" % sROLE)
    p("s_cselect_b32 s14, s14, 0")
    p("s_lshr_b32 s28, s%d, 1" % sROLE)
    p("s_mul_i32 s35, s%d, %d" % (sWAVE, 14 * 32 * 896))
    p("s_lshl_b32 s3, s28, 7")
    p("s_add_u32 s35, s35, s3")
    p("s_mov_b32 s26, 0x3f80")
    p("s_mov_b32 s27, 0x3f800000")
    p("s_waitcnt vmcnt(0)")
    p("s_barrier")
    signalw(p, 30, sHEAD, 26, 27, "T_SIGP")
    p("s_lshl_b32 s3, s%d, 12" % sWAVE)
    for i in range(5):
        p("s_add_u32 s%d, s%d, s3" % (WS_[i], RS[i]))
    st(8)
    pollw(p, 31, 16, 28, 27, 32, 33, "T_POLLP", depth=pd, gap=3)
    st(9)
    p("s_mov_b32 s3, 0x%x" % WS_PART)

    def pload(h):
        p("buffer_load_dwordx4 %s, v%d, s[8:11], s3 offen sc1" % (vr(L + 8 * h), FO))
        p("buffer_load_dwordx4 %s, v%d, s[8:11], s3 offen sc1" % (vr(L + 8 * h + 4), FO2))
        p("s_add_u32 s3, s3, 0x%x" % H_BYTES)

    for h in range(8):
        pload(h)
    extra = [A.dma(j) for j in range(4)] + w2(0) + w2(1)
    nx = 0
    for h in range(8):
        p("s_waitcnt vmcnt(%d)" % (14 - 2 * h + nx))
        for d in range(8):
            p("v_dot2c_f32_bf16 v%d, s26, v%d" % (X + 2 * d, L + 8 * h + d))
            p("v_dot2c_f32_bf16 v%d, s27, v%d" % (X + 2 * d + 1, L + 8 * h + d))
            if h >= 2 and d % 4 == 3:
                J(extra[nx])
                nx += 1
    st(10)
    unpack(p, L, XR, 8)
    p("s_nop 2")
    for i in range(16):
        round_bf16(p, X + i)
        p("v_mul_f32 v%d, v%d, v%d" % (X + i, X + i, GA + i))
        round_bf16(p, X + i)
        p("v_add_f32 v%d, v%d, v%d" % (X + i, X + i, L + i))
    for d in range(8):
        p("v_cvt_pk_bf16_f32 v%d, v%d, v%d" % (XR + d, X + 2 * d, X + 2 * d + 1))
    p("s_mov_b32 s3, 0x%x" % WS_X1)
    p("buffer_store_dwordx4 %s, v%d, s[8:11], s3 offen" % (vr(XR), FO))
    p("buffer_store_dwordx4 %s, v%d, s[8:11], s3 offen" % (vr(XR + 4), FO2))
    unpack(p, X, XR, 8)
    p("s_add_u32 s3, s%d, 16384" % RS[3])
    p("v_lshl_add_u32 v25, v%d, 4, s3" % R_)
    p("s_lshl_b32 s3, s%d, 2" % sWAVE)
    p("v_add_u32 v26, s3, v25")
    p("v_add_f32 v36, v%d, v%d" % (X, X + 1))
    for i in range(2, 16):
        p("v_add_f32 v36, v36, v%d" % (X + i))
    xsum_345(p, 36, 37)
    p("ds_write_b32 v26, v36")
    p("s_waitcnt lgkmcnt(0)")
    p("s_barrier")
    p("ds_read_b128 v[40:43], v25")
    p("s_waitcnt lgkmcnt(0)")
    p("v_add_f32 v40, v40, v41")
    p("v_add_f32 v42, v42, v43")
    p("v_add_f32 v40, v40, v42")
    p("v_mul_f32 v40, %s, v40" % f32bits(1.0 / 448))
    p("v_mov_b32 v36, 0")
    p("v_mov_b32 v38, 0")
    for i in range(16):
        p("v_sub_f32 v%d, v%d, v40" % (X + i, X + i))
        p("v_fmac_f32 v%d, v%d, v%d" % (36 if i < 8 else 38, X + i, X + i))
    p("v_fmac_f32 v36, s29, v38")
    xsum_345(p, 36, 37)
    p("ds_write_b32 v26, v36 offset:128")
    p("s_waitcnt lgkmcnt(0)")
    p("s_barrier")
    p("ds_read_b128 v[40:43], v25 offset:128")
    p("s_waitcnt lgkmcnt(0)")
    p("v_add_f32 v40, v40, v41")
    p("v_add_f32 v42, v42, v43")
    p("v_add_f32 v40, v40, v42")
    p("v_mov_b32 v41, %s" % f32bits(1e-5))
    p("v_fmac_f32 v41, %s, v40" % f32bits(1.0 / 448))
    p("v_rsq_f32 v41, v41")
    for i in range(16):
        p("v_mul_f32 v%d, v%d, v41" % (X + i, X + i))
        p("v_fma_f32 v%d, v%d, v%d, v%d" % (X + i, X + i, SC + i, SH + i))
    for d in range(8):
        p("v_cvt_pk_bf16_f32 v%d, v%d, v%d" % (L + d, X + 2 * d, X + 2 * d + 1))
    p("s_mov_b32 s3, 0x%x" % WS_H2)
    p("buffer_store_dwordx4 %s, v%d, s[8:11], s3 offen" % (vr(L), FO))
    p("buffer_store_dwordx4 %s, v%d, s[8:11], s3 offen" % (vr(L + 4), FO2))
    flag_off(p, 30, FL_H2, sHEAD)
    B1, CUR = 16, 24
    p("v_lshrrev_b32 v36, 2, v1")
    p("v_and_b32 v38, 3, v1")
    p("v_lshlrev_b32 v37, 8, v36")
    p("v_lshl_add_u32 v37, v38, 3, v37")
    p("v_and_b32 v39, 7, v36")
    p("v_lshl_add_u32 v37, v39, 5, v37")
    for x in range(8):
        p("v_xor_b32 v%d, %d, v37" % (B1 + x, 32 * x))
    p("v_lshlrev_b32 v37, 7, v36")
    p("v_lshl_add_u32 v37, v38, 3, v37")
    p("v_bfe_u32 v39, v36, 1, 2")
    p("v_lshl_add_u32 v37, v39, 5, v37")
    for x in range(4):
        p("v_xor_b32 v%d, %d, v37" % (B2 + x, 32 * x))
    p("s_waitcnt vmcnt(0)")
    p("s_barrier")
    signalw(p, 30, sROLE, 36, 38, "T_SIGH2", local=True)
    p("s_cmp_ge_u32 s%d, 14" % sROLE)
    p("s_cbranch_scc1 K_FIN")
    st(11)

    H, ACC = 48, 160

    def cur1(ch):
        return ["v_add_u32 v%d, s%d, v%d" % (CUR + x, RS[ch], B1 + x) for x in range(8)]

    def reads1(c):
        o = []
        for k in range(2):
            ks = 2 * c + k
            for ft in range(8):
                for i in range(2):
                    o.append("ds_read_b64_tr_b16 %s, v%d offset:%d" % (
                        ar((c & 1) * 64 + (k * 8 + ft) * 4 + 2 * i, 2), CUR + ft, (ks & 3) * 8192 + i * 4096))
        return o

    J(cur1(0) + cur2(4) + reads1(0) + reads2(0) + reads2(1))
    p("s_lshl_b32 s22, s%d, 3" % sHEAD)
    p("s_lshl_b32 s3, s%d, 1" % sWAVE)
    p("s_add_u32 s22, s22, s3")
    p("s_mul_i32 s26, s22, 14336")
    p("s_add_u32 s26, s26, 0x%x" % WS_H2)

    def hload(ks, qt):
        off = qt * 14336 + ks * 1024
        return ["s_add_u32 s27, s26, %d" % (off & ~0xfff),
                "buffer_load_dwordx4 %s, v%d, s[8:11], s27 offen offset:%d sc1" % (vr(H + (ks * 2 + qt) * 4), L16, off & 0xfff)]

    pollw(p, 30, 16, 36, 38, 32, 33, "T_POLLH2", acquire=True)
    for ks in range(6):
        for qt in range(2):
            J(hload(ks, qt))
    st(12)
    side = {0: [hload(ks, qt) for ks in range(6, 10) for qt in range(2)],
            1: [hload(ks, qt) for ks in range(10, 14) for qt in range(2)],
            2: w2(2) + w2(3), 3: w2(4) + w2(5), 4: w2(6) + w2(7), 5: w2(8), 6: w2(9) + w2(10)}
    issued = 12
    for c in range(7):
        mf = []
        for k in range(2):
            ks = 2 * c + k
            for ft in range(8):
                for qt in range(2):
                    acc = vr(ACC + (qt * 8 + ft) * 4)
                    mf.append("%s %s, %s, %s, %s" % (MF, acc, ar((c & 1) * 64 + (k * 8 + ft) * 4), vr(H + (ks * 2 + qt) * 4), acc if ks else "0"))
        G = Gaps(32)
        p("s_waitcnt vmcnt(%d) lgkmcnt(%d)" % (issued - 4 * (c + 1), 0 if c == 0 else 8))
        if c in (2, 4, 6):
            p("s_barrier")
        busy = []
        for k, op in enumerate(side[c]):
            g = A.DG[k]
            if len(op) == 3:
                G.at(g - 1, op[0])
            G.at(g, op[-2], op[-1])
            busy.append(g)
        issued += len(side[c])
        if c < 6:
            first = 0
            if c & 1:
                cs = cur1((c + 1) >> 1)
                G.at(0, cs[0], cs[1])
                for x, g in zip(range(2, 8), (1, 3, 4, 5, 7, 8)):
                    G.at(g, cs[x])
                first = 1
            A.spread_reads(G, reads1(c + 1), [g for g in range(first, 32) if g not in busy])
        else:
            G.at(16, "s_waitcnt vmcnt(%d)" % (20 + 4))
            G.put([17, 19, 20, 21, 23, 24, 25, 27, 28, 29, 31, 31, 29, 28, 27, 25], reads2(2) + reads2(3))
        G.at(12, "s_waitcnt lgkmcnt(%d)" % (8 if c < 6 else 0))
        p(G.weave(mf))
        if c == 0:
            st("m0")
    st("m1")
    p("s_mul_i32 s26, s22, 57344")
    p("s_lshl_b32 s3, s%d, 12" % sROLE)
    p("s_add_u32 s26, s26, s3")
    p("s_add_u32 s26, s26, 0x%x" % WS_ACT)
    p("s_add_u32 s27, s26, 57344")
    p("s_mov_b32 s31, %s" % f32bits(-math.log2(math.e)))
    p("s_waitcnt lgkmcnt(0)")
    p("s_barrier")
    rest = w2(11) + w2(12) + w2(13)
    for qt in range(2):
        for u in range(4):
            n = qt * 4 + u
            Aa = ACC + (qt * 8 + 2 * u) * 4
            T = 48 + (n % 2) * 16
            if n < 6:
                J(rest[2 * n])
            for k in range(8):
                p("v_mul_f32 v%d, s31, v%d" % (T + k, Aa + k))
            for k in range(8):
                p("v_exp_f32 v%d, v%d" % (T + k, T + k))
            if n < 6:
                J(rest[2 * n + 1])
            for k in range(8):
                p("v_add_f32 v%d, 1.0, v%d" % (T + k, T + k))
            for k in range(8):
                p("v_rcp_f32 v%d, v%d" % (T + k, T + k))
            for k in range(8):
                p("v_mul_f32 v%d, v%d, v%d" % (T + k, T + k, Aa + k))
            for d in range(4):
                p("v_cvt_pk_bf16_f32 v%d, v%d, v%d" % (T + 8 + d, T + 2 * d, T + 2 * d + 1))
            p("buffer_store_dwordx4 %s, v%d, s[8:11], s%d offen offset:%d" % (vr(T + 8), L16, 26 + qt, u * 1024))
    st("m2")
    flag_off(p, 30, FL_A, sHEAD)
    p("s_lshl_b32 s22, s%d, 3" % sHEAD)
    p("s_and_b32 s3, s%d, 1" % sROLE)
    p("s_lshl_b32 s3, s3, 2")
    p("s_add_u32 s22, s22, s3")
    p("s_mul_i32 s25, s22, 57344")
    p("s_mul_i32 s3, s%d, 14336" % sWAVE)
    p("s_add_u32 s25, s25, s3")
    p("s_add_u32 s25, s25, 0x%x" % WS_ACT)
    for q in range(4):
        p("s_add_u32 s3, s%d, %d" % (sWAVE, q))
        p("s_and_b32 s3, s3, 3")
        p("s_mul_i32 s%d, s3, 57344" % (4 + q))
        p("s_add_u32 s%d, s%d, s25" % (4 + q, 4 + q))
    p("s_add_u32 s22, s22, s%d" % sWAVE)
    p("s_mul_i32 s26, s22, 14336")
    p("s_lshl_b32 s3, s28, 11")
    p("s_add_u32 s26, s26, s3")
    p("s_add_u32 s26, s26, 0x%x" % WS_X1)
    p("buffer_load_dwordx4 v[128:131], v%d, s[8:11], s26 offen sc1" % L16)
    p("buffer_load_dwordx4 v[132:135], v%d, s[8:11], s26 offen offset:1024 sc1" % L16)
    p("v_lshrrev_b32 v13, 4, v1")
    p("v_lshlrev_b32 v13, 4, v13")
    p("s_lshl_b32 s3, s28, 8")
    p("s_add_u32 s26, s3, %d" % (WS_MOD + 5 * 448 * 4))
    for mt in range(4):
        p("buffer_load_dwordx4 %s, v13, s[8:11], s26 offen offset:%d sc1" % (vr(136 + 4 * mt), 64 * mt))
    p("s_waitcnt vmcnt(6)")
    p("s_barrier")
    signalw(p, 30, sROLE, 36, 38, "T_SIGA", local=True)
    st(13)

    ACC = 64
    NA = 8

    def aload(k, q):
        o = []
        if k % 4 == 0 and k:
            o.append("s_add_u32 s%d, s%d, 4096" % (4 + q, 4 + q))
        o.append("buffer_load_dwordx4 %s, v%d, s[8:11], s%d offen offset:%d sc1" % (ar(((k % NA) * 4 + q) * 4), L16, 4 + q, (k % 4) * 1024))
        return o

    srd(p, 12, pOUT, pOUT + 1, H_BYTES)
    p("v_and_b32 v12, 15, v1")
    p("s_lshl_b32 s3, s22, 4")
    p("v_add_u32 v12, s3, v12")
    p("v_mul_u32_u24 v12, 896, v12")
    p("v_lshrrev_b32 v13, 1, v13")
    p("v_add_u32 v12, v12, v13")
    p("s_lshl_b32 s27, s28, 7")
    pollw(p, 30, 14, 36, 38, 32, 33, "T_POLLA", acquire=True)
    st(14)
    PRE = 5
    for k in range(PRE):
        for q in range(4):
            J(aload(k, q))
    st("n1")
    for k in range(14):
        if k in (1, 7):
            st("n2" if k == 1 else "n3")
        kind, wb = wreg(k)
        mf = []
        for mt in range(4):
            for q in range(4):
                acc = vr(ACC + (q * 4 + mt) * 4)
                mf.append("%s %s, %s, %s, %s" % (MF, acc, vr(wb + mt * 4, 4, kind), ar(((k % NA) * 4 + q) * 4), acc if k else "0"))
        G = Gaps(16)
        nis = min(14, PRE + k)
        nrd = min(13, k + 1) - k
        p("s_waitcnt vmcnt(%d) lgkmcnt(%d)" % (4 * (nis - k - 1), 8 * nrd if k >= 4 else 15))
        kr = k + 2
        if 4 <= kr < 14:
            if kr == 4 or W2P[kr][0] != W2P[kr - 1][0]:
                cs = cur2(W2P[kr][0])
                G.at(0, cs[0], cs[1])
                G.at(1, cs[2], cs[3])
            G.put([2, 4, 5, 7, 8, 10, 11, 13], reads2(kr))
        if k + PRE < 14:
            for q, g in enumerate((3, 6, 9, 12)):
                G.at(g, *aload(k + PRE, q))
        p(G.weave(mf))
    st("n4")
    p("s_barrier")
    for q in range(1, 4):
        p("s_add_u32 s3, s%d, %d" % (sWAVE, q))
        p("s_and_b32 s3, s3, 3")
        p("s_mul_i32 s3, s3, 12288")
        p("v_add_u32 v%d, s3, v%d" % (8 + q, L16))
        for mt in range(4):
            p("ds_write_b128 v%d, %s offset:%d" % (8 + q, vr(ACC + (q * 4 + mt) * 4), (q - 1) * 4096 + mt * 1024))
    p("s_mul_i32 s3, s%d, 12288" % sWAVE)
    p("v_add_u32 v8, s3, v%d" % L16)
    unpack(p, 160, 128, 8)
    p("s_waitcnt lgkmcnt(0)")
    p("s_barrier")
    for t in range(12):
        p("ds_read_b128 %s, v8 offset:%d" % (vr(ACC + 16 + 4 * t), t * 1024))
    st("n5")
    for mt in range(4):
        if mt == 0:
            p("s_waitcnt lgkmcnt(0)")
        for r in range(4):
            a = ACC + 4 * mt + r
            p("v_add_f32 v%d, v%d, v%d" % (a, a, a + 16))
            p("v_add_f32 v%d, v%d, v%d" % (a + 32, a + 32, a + 48))
            p("v_add_f32 v%d, v%d, v%d" % (a, a, a + 32))
            round_bf16(p, a)
            p("v_mul_f32 v%d, v%d, v%d" % (a, a, 136 + 4 * mt + r))
            round_bf16(p, a)
            p("v_add_f32 v%d, v%d, v%d" % (a, a, 160 + 4 * mt + r))
        for d in range(2):
            p("v_cvt_pk_bf16_f32 v%d, v%d, v%d" % (16 + 2 * mt + d, ACC + 4 * mt + 2 * d, ACC + 4 * mt + 2 * d + 1))
        p("buffer_store_dwordx2 %s, v12, s[12:15], s27 offen offset:%d" % (vr(16 + 2 * mt, 2), 32 * mt))
    st(15)
```

```python
import sys
from asmlib import *
from fused_common import *
import phase_kv, phase_attn, phase_tail

NAME = "adaLN_cond__compressed_kv_cla__dense_activation_silu__prompt"
HEAD = open("cdna_kernels/%s.s.ref" % NAME).read().split("; Override launch")[0]

def opt(name, default):
    for a in sys.argv:
        if a.startswith(name + "="):
            return type(default)(a[len(name) + 1:])
    return default

def gen_all(stamp, thresh):
    p = Prog()
    stubs = Prog()
    st = Stamper(p, stamp, 0, sel=opt('sel', '').split(',') if opt('sel', '') else None)
    phase_kv.entry(p, st, opt('ct', 2))
    phase_kv.gen(p, st, phase_attn.kv_hooks(p), touch=opt('touch', 1), slow=opt('slow', 0), ct=opt('ct', 2))
    phase_attn.gen(p, st, stubs, thresh, phase_tail.pre, SPLIT=opt('split', 40), wb=opt('wb', 0), w1late=opt('w1late', 0))
    phase_tail.gen(p, st, pd=opt('pd', 3), w1late=opt('w1late', 0))
    p.label("K_FIN")
    st.dump(sWAVE)
    p.label("K_END")
    p("s_endpgm")
    p.ins.extend(stubs.ins)
    p.label('K_LAST')
    return p

if __name__ == "__main__":
    p = gen_all("dbg" if "dbg" in sys.argv else "stamp" in sys.argv, opt("thresh", 2.0 ** 30))
    kn = NAME + "_kernel"
    c, d = kernel_text(kn, p)
    if "list" in sys.argv:
        launch = "; @launch kernel=%s grid=(256,1,1) block=(256,1,1) lds=163840\n" % kn
    else:
        launch = "; @launch grid=(256,1,1) block=(256,1,1) lds=163840\n"
    if opt("kvsc1", 0):
        c = c.replace("s[8:11], s23 offen\n", "s[8:11], s23 offen sc1\n")
    if opt("cxsc1", 0):
        c = c.replace("v2, s[8:11], s38 offen\n", "v2, s[8:11], s38 offen sc1\n").replace("v2, s[8:11], s37 offen\n", "v2, s[8:11], s37 offen sc1\n")
    if opt("tailsc1", 0):
        import re
        a = c.index("\nT_POLLP:")
        b = c.index("K_FIN:")
        mid = re.sub(r"(buffer_store_dwordx4 [^\n]*)", r"\1 sc1", c[a:b])
        c = c[:a] + mid + c[b:]
    open(sys.argv[1], "w").write(HEAD + launch + '.amdgcn_target "amdgcn-amd-amdhsa--gfx950"\n' + c + d)
```

```python
from fused_common import *
import phase_kv

OP_STRIDE = 0x12000
L16, BKV, BWQ, BWO, ACT, RKV, NEGBIG = 2, 3, 4, 5, 6, 14, 15
WQB, WOB, CUR = 16, 24, 28
THR0, THR, LS, BS, T0 = 36, 37, 38, 40, 42
ZER = 44
NEGM, PF, S, PP, XT, Q, MRG, TMP = 48, 56, 64, 80, 96, 112, 176, 240
FA, FB = 128, 192
RING = 5 * 32768
sPO, sPS, sRW, sRR = 21, 22, 24, 25
sT, sB0, sNB, sACT = 26, 27, 28, 29
sT2, sNB2 = 30, 31
sCNT, sB, sD0, sSIG, sPAIR = 32, 33, 34, 35, 36
sX, sY, sZ = 37, 38, 39
sTHRESH, sW1K = 48, 49
sO0, sO1 = 16, 17
sCHK = 16


def Sreg(kt, qt):
    return S + (kt * 2 + qt) * 4


def Hreg(ks, qt):
    return MRG + (ks * 2 + qt) * 4 if ks < 8 else S + ((ks - 8) * 2 + qt) * 4


def Oreg(dt, qt):
    return (dt * 2 + qt) * 4


def prod_set(kind):
    lo, size, base, js, ps = {"wq": (pWQ, 448 * 4096 * 2, BWQ, 65536, 0x80000),
                              "wo": (pWO, 448 * 4096 * 2, BWO, 28672, 128),
                              "w1": (pW1, 448 * 1792 * 2, BWQ, 57344, 128 * 3584),
                              "kv": (pWS, WS_BYTES, BKV, 4096, 32768)}[kind]
    o = ["s_mov_b32 s4, s%d" % lo, "s_and_b32 s5, s%d, 0xffff" % (lo + 1), "s_mov_b32 s6, 0x%x" % size,
         "s_mov_b32 s%d, 0x%x" % (sPS, ps)]
    if kind == "wq":
        o += ["s_lshl_b32 s%d, s%d, 9" % (sPO, sHEAD)]
    elif kind == "wo":
        o += ["s_mul_i32 s%d, s%d, 229376" % (sPO, sHEAD), "s_and_b32 s3, s%d, 1" % sHEAD, "s_lshl_b32 s3, s3, 9",
              "s_add_u32 s%d, s%d, s3" % (sPO, sPO)]
    elif kind == "w1":
        o += ["s_lshl_b32 s%d, s%d, 8" % (sPO, sROLE), "s_cmp_lt_u32 s%d, 14" % sROLE, "s_cselect_b32 s6, s6, 0"]
    else:
        o += ["s_lshl_b32 s%d, s%d, 6" % (sPO, sHEAD), "s_add_u32 s%d, s%d, s%d" % (sPO, sPO, sB0),
              "s_lshl_b32 s%d, s%d, 15" % (sPO, sPO), "s_add_u32 s%d, s%d, 0x%x" % (sPO, sPO, WS_KV - 16384)]
    v = ["v_mov_b32 v%d, v%d" % (ACT, base)]
    for j in range(1, 8):
        v += ["v_add_u32 v%d, 0x%x, v%d" % (ACT + j, j * js, base)]
    return o, v


def dma(j, konly=False):
    return ["s_add_u32 m0, s%d, %d" % (sRW, j * 4096),
            "buffer_load_dwordx4 v%d, s[4:7], s%d offen sc1 lds" % (ACT + (j | 4 if konly else j), sPO)]


PROD_ADV = ["s_add_u32 s%d, s%d, s%d" % (sPO, sPO, sPS), "s_add_u32 s%d, s%d, 0x8000" % (sRW, sRW),
            "s_cmp_ge_u32 s%d, 0x%x" % (sRW, RING), "s_cselect_b32 s%d, s%d, s%d" % (sRW, sW1K, sRW)]
RING_ADV = ["s_add_u32 s%d, s%d, 0x8000" % (sRR, sRR), "s_cmp_ge_u32 s%d, 0x%x" % (sRR, RING),
            "s_cselect_b32 s%d, 0, s%d" % (sRR, sRR)]


def cur_set(kind):
    if kind == "kv":
        return ["v_add_u32 v%d, s%d, v%d" % (RKV, sRR, L16)]
    n, base = (8, WQB) if kind == "wq" else (4, WOB)
    return ["v_add_u32 v%d, s%d, v%d" % (CUR + x, sRR, base + x) for x in range(n)]


def reads(kind, half):
    F = FA if half == 0 else FB
    o = []
    if kind == "kv":
        for f in range(16):
            o.append("ds_read_b128 %s, v%d offset:%d" % (ar(F + 4 * f), RKV, (16384 if half == 0 else 0) + 1024 * f))
    elif kind == "wq":
        for dt in range(16):
            for i in range(2):
                o.append("ds_read_b64_tr_b16 %s, v%d offset:%d" % (
                    ar(F + 4 * dt + 2 * i, 2), CUR + (dt & 7), half * 16384 + i * 8192 + (dt >> 3) * 256))
    else:
        for mt in range(2):
            for u in range(8):
                for i in range(2):
                    o.append("ds_read_b64_tr_b16 %s, v%d offset:%d" % (
                        ar(F + 4 * (mt * 8 + u) + 2 * i, 2), CUR + 2 * half + mt, u * 4096 + i * 2048))
    return o


DG = [2, 6, 10, 14, 18, 22, 26, 30]


def place_dma(G, base=0, konly=False):
    for j in range(8):
        d = dma(j, konly)
        G.at(base + DG[j] - 1, d[0])
        G.at(base + DG[j], d[1])


def spread_reads(G, rd, gaps):
    n, m = len(rd), len(gaps)
    for k, r in enumerate(rd):
        G.at(gaps[(k * m) // n], r)


def h_loads(tile_s, ks_list, L16=L16):
    o = ["s_lshl_b32 s%d, s%d, 3" % (sX, tile_s), "s_lshl_b32 s%d, s%d, 1" % (sY, sWAVE),
         "s_add_u32 s%d, s%d, s%d" % (sX, sX, sY), "s_mul_i32 s%d, s%d, 14336" % (sX, sX),
         "s_add_u32 s%d, s%d, 0x%x" % (sX, sX, WS_H)]
    for ks in ks_list:
        for qt in range(2):
            off = qt * 14336 + ks * 1024
            o.append("s_add_u32 s%d, s%d, %d" % (sY, sX, off & ~0xfff))
            o.append("buffer_load_dwordx4 %s, v%d, s[8:11], s%d offen offset:%d sc1" % (vr(Hreg(ks, qt)), L16, sY, off & 0xfff))
    return o


def tr_h1(G, kind, base, dma_too=False, busy=()):
    cs = cur_set(kind)
    G.at(base, cs[0], cs[1])
    for x in range(2, len(cs)):
        G.at(base + x - 1, cs[x])
    gaps = [g for g in range(base + 1, base + 32) if not (dma_too and (g - base) in DG) and g not in busy]
    spread_reads(G, reads(kind, 0), gaps)


def kv_hooks(p):
    def st1():
        p("s_add_u32 s21, s%d, 4" % sROLE)
        p("s_add_u32 s22, s%d, 10" % sROLE)
        p("s_cmp_lt_u32 s%d, 6" % sROLE)
        p("s_cselect_b32 s21, s22, s21")
        p("s_sub_u32 s22, s%d, 6" % sROLE)
        p("s_cmp_lt_u32 s%d, 12" % sROLE)
        p("s_cselect_b32 s21, s21, s22")
        p("s_sub_u32 s22, 15, s21")
        flag_off(p, 23, FL_H, 21)
        flag_off(p, 24, FL_H, 22)
        p("buffer_load_dword v12, v%d, s[8:11], s23 offen sc1" % phase_kv.ZV)
        p("buffer_load_dword v13, v%d, s[8:11], s24 offen sc1" % phase_kv.ZV)
    return {"st1": st1}


def PK(n):
    return 64 + 4 * n if n < 12 else (48 + 4 * (n - 12) if n < 16 else Q + 4 * (n - 16))


def gen(p, st, stubs, thresh, tail_pre, SPLIT=40, wb=0, w1late=0):
    J = lambda l: p("\n".join(l))
    assert SPLIT == 40
    p("v_lshlrev_b32 v%d, 4, v1" % L16)
    poll(p, 23, 16, 12, phase_kv.ZV, 37, 38, "AT_POLLH", first_loaded=True)
    poll(p, 24, 16, 13, phase_kv.ZV, 37, 38, "AT_POLLH2", first_loaded=True)
    p("s_mov_b32 s%d, s21" % sT)
    p("s_waitcnt lgkmcnt(0)")
    a, b, c = 38, 39, 40
    h0 = h_loads(sT, range(8))
    hl = h_loads(sT, range(8, 14))
    e = Prog()
    phase_kv.epi_setup(e)
    so, vo = prod_set("wq")
    side = [h0[:9]] + [h0[9 + 4 * i:13 + 4 * i] for i in range(7)]
    calcA = ["v_lshrrev_b32 v%d, 5, v0" % a,
             "v_lshlrev_b32 v%d, 1, v%d" % (b, a), "v_and_b32 v%d, 31, v1" % c,
             "v_xor_b32 v%d, v%d, v%d" % (b, b, c), "v_lshlrev_b32 v%d, 4, v%d" % (b, b),
             "v_lshl_add_u32 v%d, v%d, 13, v%d" % (BWQ, a, b)] + so + vo + [
        "s_add_u32 s%d, s%d, 0x100000" % (sPO, sPO),
        "s_lshl_b32 s%d, s%d, 10" % (sW1K, sWAVE), "s_mov_b32 s%d, s%d" % (sRW, sW1K), "s_mov_b32 s%d, 98304" % sRR]
    side[7] = side[7] + calcA + [dma(0)[0]]
    for j in range(8):
        side.append([dma(j)[1]] + ([dma(j + 1)[0]] if j < 7 else PROD_ADV + [x.text for x in e.ins]))
    calcB = ["v_lshrrev_b32 v%d, 2, v1" % a, "v_lshlrev_b32 v%d, 9, v%d" % (b, a), "v_and_b32 v%d, 3, v1" % c,
             "v_lshl_add_u32 v%d, v%d, 3, v%d" % (b, c, b), "v_and_b32 v%d, 7, v%d" % (c, a),
             "v_lshl_add_u32 v%d, v%d, 5, v%d" % (b, c, b)]
    calcB += ["v_xor_b32 v%d, %d, v%d" % (WQB + x, x * 32, b) for x in range(8)] + cur_set("wq")
    calcB += ["s_lshr_b32 s43, s%d, 2" % sROLE]
    for k in range(7):
        side += [phase_kv.epi_store(k, PK(k), L16), []]
    side += [calcB, []]
    for n in range(32):
        J(phase_kv.epi_conv(n, PK(n), TMP + (n & 1) * 8))
        J(side[n])
    a, b, c = TMP, TMP + 1, TMP + 2
    fo = lambda d, base, i: ["s_lshl_b32 s%d, s%d, 6" % (d, i), "s_add_u32 s%d, s%d, 0x%x" % (d, d, WS_FLAG + base * 64)]
    D1 = ["s_lshl_b32 s44, s%d, 1" % sHEAD, "v_mov_b32 v%d, 0" % ZER,
          "s_lshr_b32 s45, s%d, 1" % sROLE, "v_mov_b32 v%d, 0" % (ZER + 1),
          "s_add_u32 s45, s44, s45", "v_mov_b32 v%d, 0" % (ZER + 2),
          "s_cmp_lt_u32 s%d, 12\ns_cselect_b32 s%d, 2, 0" % (sROLE, sACT),
          "s_cmp_lt_u32 s%d, 6\ns_cselect_b32 s%d, 1, s%d" % (sROLE, sACT, sACT),
          "s_lshr_b32 s%d, s%d, 1" % (sB0, sACT), "v_mov_b32 v%d, 0" % (ZER + 3),
          "s_add_u32 s44, s44, s%d" % sB0, "v_add_u32 v%d, s%d, v%d" % (BKV, sW1K, L16),
          "s_mul_i32 s%d, s%d, %d" % (sB0, sB0, SPLIT)] + fo(44, FL_K1, 44) + fo(45, FL_K1, 45) + fo(sSIG, FL_KV, sHEAD)
    D2 = ["s_lshl_b32 s%d, s%d, 2" % (sNB, sT), "v_lshrrev_b32 v%d, 3, v0" % a,
          "s_add_u32 s%d, s%d, 4" % (sNB, sNB), "v_bfe_u32 v%d, v%d, 1, 2" % (b, a),
          "s_sub_u32 s%d, s%d, s%d" % (sNB, sNB, sB0), "v_lshlrev_b32 v%d, 1, v%d" % (b, b),
          "s_min_u32 s%d, s%d, %d" % (sNB, sNB, SPLIT), "v_and_b32 v%d, 7, v1" % c,
          "s_sub_u32 s%d, 15, s%d" % (sT2, sT), "v_xor_b32 v%d, v%d, v%d" % (b, b, c),
          "s_lshl_b32 s%d, s%d, 2" % (sNB2, sT2), "v_lshlrev_b32 v%d, 4, v%d" % (b, b),
          "s_add_u32 s%d, s%d, 4" % (sNB2, sNB2), "v_mul_u32_u24 v%d, 896, v%d" % (a, a),
          "s_mul_i32 s%d, s%d, 6" % (sPAIR, sHEAD), "v_add_u32 v%d, v%d, v%d" % (BWO, a, b),
          "s_add_u32 s%d, s%d, s%d" % (sPAIR, sPAIR, sT), "v_lshrrev_b32 v%d, 2, v1" % a,
          "s_sub_u32 s%d, s%d, 10" % (sPAIR, sPAIR), "v_lshlrev_b32 v%d, 7, v%d" % (b, a),
          "s_mov_b32 s%d, %s" % (sTHRESH, f32bits(thresh)), "v_and_b32 v%d, 3, v1" % c,
          "s_add_u32 s%d, s%d, 2" % (sCHK, sB0), "v_lshl_add_u32 v%d, v%d, 3, v%d" % (b, c, b),
          "v_bfe_u32 v%d, v%d, 1, 2" % (c, a), "v_lshl_add_u32 v%d, v%d, 5, v%d" % (b, c, b)]
    D2 += ["v_xor_b32 v%d, %d, v%d" % (WOB + x, x * 32, b) for x in range(4)]
    D2 += ["v_and_b32 v%d, 15, v1" % a, "v_lshrrev_b32 v%d, 4, v1" % b, "v_lshlrev_b32 v%d, 2, v%d" % (b, b),
           "v_sub_u32 v%d, v%d, v%d" % (a, a, b), "v_lshrrev_b32 v%d, 6, v0" % b,
           "v_lshl_add_u32 v%d, v%d, 5, v%d" % (THR0, b, a), "v_mov_b32 v%d, %s" % (NEGBIG, f32bits(-1e30))]
    p("s_cmp_eq_u32 s43, 0")
    p("s_cbranch_scc0 AT_NOPRIO")
    for n in range(7, 32):
        J(phase_kv.epi_store(n, PK(n), L16))
    p("s_mov_b32 s23, 0xf0000000")
    p("s_mov_b32 s46, 0")
    p("s_mov_b32 s47, 0")
    p("s_mov_b32 s17, 0")
    p("s_waitcnt vmcnt(40)")
    p("s_branch AT_PRIODONE")
    p.label("AT_NOPRIO")
    p("s_waitcnt vmcnt(15)")
    p.label("AT_PRIODONE")
    st(3)
    p("s_barrier")
    J(reads("wq", 0))

    def qproj(first):
        p("s_waitcnt lgkmcnt(0)")
        VM = {1: 21, 2: 32, 3: 19, 4: 21, 5: 26, 6: 16} if first else {2: 16, 3: 16, 4: 16, 5: 16, 6: 16}
        for t in range(7):
            mf = []
            for half in range(2):
                ks = 2 * t + half
                F = FA if half == 0 else FB
                for dt in range(16):
                    for qt in range(2):
                        acc = ar(Oreg(dt, qt))
                        mf.append("%s %s, %s, %s, %s" % (MF, acc, ar(F + 4 * dt), vr(Hreg(ks, qt)), "0" if ks == 0 else acc))
            G = Gaps(64)
            place_dma(G, 0, konly=(t == 4))
            spread_reads(G, reads("wq", 1), [g for g in range(32) if g not in DG])
            G.at(12, "s_waitcnt lgkmcnt(8)")
            G.put([24, 27, 28], RING_ADV)
            G.at(31, "s_waitcnt %slgkmcnt(8)" % ("vmcnt(%d) " % VM[t] if t in VM else ""))
            split = (first and t in (1, 2, 3, 6)) or (not first and t == 2)
            if split:
                p(Gaps_slice(G, mf, 0, 32))
                p("s_barrier")
                if not first:
                    signal(p, sSIG, T0, T0 + 1, "AT_SIGP", release=True)
                elif t == 1:
                    p("s_cmp_eq_u32 s43, 0")
                    p("s_cbranch_scc0 AT_SIGK1B")
                    signal(p, 45, T0, T0 + 1, "AT_SIGK1", release=True)
                    signal(p, sSIG, T0, T0 + 1, "AT_SIGK1B")
                elif t == 2:
                    p("buffer_load_dword v%d, v%d, s[8:11], s44 offen sc1" % (T0, ZER))
                elif t == 3:
                    st("f0")
                    poll(p, 44, 2, T0, ZER, 40, 41, "AT_POLLK1", first_loaded=True, acquire=True)
                    st("f1")
                else:
                    p("s_cmp_eq_u32 s43, 0")
                    p("s_cbranch_scc1 AT_SIGKV")
                    signal(p, sSIG, T0, T0 + 1, "AT_SIGKV", release=True)
            else:
                G.at(32, "s_barrier")
            G.put([35, 36, 39, 40], PROD_ADV)
            busy = []
            if first and t <= 4:
                for k, g in enumerate((42, 47, 52, 57, 62)):
                    n = 7 + 5 * t + k
                    e = phase_kv.epi_store(n, PK(n), L16)
                    G.at(g, e[0])
                    G.at(g + 1, e[1])
                    busy.append(g)
            if first and t in (1, 2):
                for k, g in enumerate((34, 38, 45, 50, 55, 60)):
                    i = 5 + 2 * (6 * (t - 1) + k)
                    G.at(g, hl[i], hl[i + 1])
                    busy.append(g)
            if t < 6:
                tr_h1(G, "wq", 32, busy=busy)
                G.at(61, "s_waitcnt lgkmcnt(8)")
            else:
                G.at(32, cur_set("kv")[0])
                G.put(range(33, 62, 2), reads("kv", 0)[:15])
                G.at(62, reads("kv", 0)[15])
            G.at(44, "s_waitcnt lgkmcnt(%d)" % (8 if t < 6 else 4))
            if first and t == 0:
                assert not G.fill(D1, 0, 64, (27, 28, 39, 40))
            if first and t == 5:
                assert not G.fill(D2, 0, 64, (27, 28, 39, 40))
            if t == 3:
                so, vo = prod_set("kv")
                G.put([45, 46, 49, 50, 51, 54, 55, 56], so)
                G.put([45, 46, 49, 50, 51, 54, 55, 56], vo)
            if split:
                p(Gaps_slice(G, mf, 32, 64))
            else:
                p(G.weave(mf, "qproj%d_%d" % (first, t)))
            if first:
                st("q%d" % t)

    def convert(kind):
        n = 0
        for u in range(8):
            for qt in range(2):
                T = TMP + (n % 2) * 8
                n += 1
                for k in range(8):
                    p("v_accvgpr_read_b32 v%d, a%d" % (T + k, Oreg(2 * u + (k >> 2), qt) + (k & 3)))
                sel = "op_sel:[0,%d] op_sel_hi:[1,%d]" % (qt, qt)
                if kind != "q":
                    for k in range(0, 8, 2):
                        p("v_pk_mul_f32 %s, %s, %s %s" % (vr(T + k, 2), vr(T + k, 2), vr(BS, 2), sel))
                if kind == "merge":
                    for d in range(4):
                        m = MRG + (qt * 8 + u) * 4 + d
                        p("v_lshlrev_b32 v%d, 16, v%d" % (T0, m))
                        p("v_and_b32 v%d, 0xffff0000, v%d" % (T0 + 1, m))
                        p("v_pk_fma_f32 %s, %s, %s, %s op_sel:[0,%d,0] op_sel_hi:[1,%d,1]" % (
                            vr(T + 2 * d, 2), vr(T0, 2), vr(LS, 2), vr(T + 2 * d, 2), qt, qt))
                f = qt * 8 + u
                for d in range(4):
                    p("v_cvt_pk_bf16_f32 v%d, v%d, v%d" % (Q + f * 4 + d, T + 2 * d, T + 2 * d + 1))
                if kind != "q":
                    p("s_add_u32 s%d, s%d, %d" % (sY, sX, f * 1024))
                    p("buffer_store_dwordx4 %s, v%d, s[8:11], s%d offen" % (vr(Q + 4 * f), L16, sY))

    qproj(True)
    p("s_branch AT_QDONE")
    p.label("AT_JOB")
    qproj(False)
    p.label("AT_QDONE")
    st(4)
    convert("q")
    p.label("AT_START")
    p("s_mov_b32 s%d, s%d" % (sB, sB0))
    p("s_lshl_b32 s%d, s%d, 2" % (sD0, sT))
    p("s_mov_b32 s%d, s%d" % (sCNT, sNB))
    p("v_mov_b32 v%d, v%d" % (THR, THR0))

    def qk_mf(first):
        mf = []
        for kt in range(2):
            for u in range(8):
                for qt in range(2):
                    d = vr(Sreg(kt, qt))
                    cc = d if u else ("0" if first else vr(NEGM + 4 * qt))
                    mf.append("%s %s, %s, %s, %s" % (MF, d, ar(FA + 4 * (kt * 8 + u)), vr(Q + (qt * 8 + u) * 4), cc))
        return mf

    pv_mf = []
    for dt in range(16):
        for qt in range(2):
            acc = ar(Oreg(dt, qt))
            pv_mf.append("%s %s, %s, %s, %s" % (MF, acc, ar(FB + 4 * dt), vr(PF + 4 * qt), acc))

    def mask_code(kt):
        o = []
        for qt in range(2):
            for r in range(4):
                o.append("v_cmp_gt_i32 s[%d:%d], %d, v%d" % (40 + 2 * r, 41 + 2 * r, 16 * (kt - qt) + r, THR))
            for r in range(4):
                s = Sreg(kt, qt) + r
                o.append("v_cndmask_b32 v%d, v%d, v%d, s[%d:%d]" % (s, s, NEGBIG, 40 + 2 * r, 41 + 2 * r))
        if kt == 1:
            o.append("v_subrev_u32 v%d, 32, v%d" % (THR, THR))
        return o

    ex = ["v_exp_f32 v%d, v%d" % (PP + i, S + i) for i in range(16)]
    ad = []
    for i in range(16):
        qt = (i >> 2) & 1
        if i in (1, 5):
            ad.append("v_add_f32 v%d, v%d, v%d" % (BS + qt, PP + i - 1, PP + i))
        elif i not in (0, 4):
            ad.append("v_add_f32 v%d, v%d, v%d" % (BS + qt, BS + qt, PP + i))
    cvt_p = []
    for kt in range(2):
        for qt in range(2):
            for d in range(2):
                s = PP + (kt * 2 + qt) * 4 + 2 * d
                cvt_p.append("v_cvt_pk_bf16_f32 v%d, v%d, v%d" % (PF + 4 * qt + 2 * kt + d, s, s + 1))
    ladd = ["v_add_f32 v%d, v%d, v%d" % (LS + qt, LS + qt, BS + qt) for qt in range(2)]

    def rowmax(q, qt, dst):
        s0, s1 = Sreg(0, qt), Sreg(1, qt)
        q("v_max3_f32 v%d, v%d, v%d, v%d" % (dst, s0, s0 + 1, s0 + 2))
        q("v_max3_f32 v%d, v%d, v%d, v%d" % (dst, dst, s0 + 3, s1))
        q("v_max3_f32 v%d, v%d, v%d, v%d" % (dst, dst, s1 + 1, s1 + 2))
        q("v_max_f32 v%d, v%d, v%d" % (dst, dst, s1 + 3))
        xop_45(q, dst, TMP + 15, "v_max_f32")

    G = Gaps(32)
    place_dma(G)
    G.put([24, 27, 28], RING_ADV)
    G.at(31, *cur_set("kv"))
    p("s_waitcnt lgkmcnt(0)")
    p(G.weave(qk_mf(True)))
    J(PROD_ADV)
    p("s_waitcnt vmcnt(16)")
    p("s_barrier")
    J(reads("kv", 0))
    for i in range(8):
        p("v_mfma_f32_32x32x16_bf16 a[%d:%d], %s, %s, 0" % (16 * i, 16 * i + 15, vr(ZER), vr(ZER)))
    p("s_cmp_lt_u32 s%d, s%d" % (sB, sD0))
    p("s_cbranch_scc1 AT_S0_NOMASK")
    J(mask_code(0) + mask_code(1))
    p.label("AT_S0_NOMASK")
    for qt in range(2):
        rowmax(p, qt, TMP + qt)
        for r in range(4):
            p("v_sub_f32 v%d, 0, v%d" % (NEGM + 4 * qt + r, TMP + qt))
        for kt in range(2):
            for r in range(4):
                s = Sreg(kt, qt) + r
                p("v_sub_f32 v%d, v%d, v%d" % (s, s, TMP + qt))
        p("v_mov_b32 v%d, 0" % (LS + qt))
    J(ex + ad)
    p("s_add_u32 s%d, s%d, 1" % (sB, sB))
    p("s_sub_u32 s%d, s%d, 1" % (sCNT, sCNT))
    p("s_waitcnt lgkmcnt(0)")

    st("a0")
    RG0 = [0, 1, 3, 4, 5, 7, 8, 9, 11, 12, 13, 15, 16, 17, 19, 20]
    p(".p2align 6")
    p.label("AT_LOOP")
    G = Gaps(64)
    place_dma(G)
    G.put(RG0, reads("kv", 1))
    G.put(RG0, cvt_p + ladd)
    G.at(19, "s_cmp_ge_u32 s%d, s%d" % (sB, sD0))
    G.at(20, "s_cbranch_scc1 AT_MASK0\nAT_MASK0_RET:")
    G.put([21, 23, 24, 25, 27, 28, 29, 31], ex[:8])
    G.put([23, 27, 28], RING_ADV)
    G.at(31, "s_waitcnt vmcnt(16) lgkmcnt(0)")
    G.at(32, "s_barrier", cur_set("kv")[0], ad[0])
    RG1 = [33, 34, 35, 37, 39, 41, 43, 45, 47, 49, 51, 52, 53, 54, 55, 56]
    G.put(RG1, reads("kv", 0))
    G.at(34, "s_cmp_ge_u32 s%d, s%d" % (sB, sD0))
    G.at(35, "s_cbranch_scc1 AT_MASK1\nAT_MASK1_RET:")
    G.put(range(36, 52, 2), ex[8:])
    G.put([33, 34, 35, 37, 39, 41, 43, 45, 47, 49, 51, 52, 53], ad[1:])
    G.at(54, "v_max_f32 v%d, v%d, v%d" % (T0, BS, BS + 1))
    G.at(55, "v_cmp_lt_f32 vcc, s%d, v%d" % (sTHRESH, T0))
    G.put([36, 37, 38, 39], PROD_ADV)
    G.at(41, "s_sub_u32 s%d, s%d, 3" % (sX, sCNT))
    G.at(42, "s_cmp_lt_u32 s%d, 2" % sX)
    G.at(43, "s_cbranch_scc1 AT_SWITCH\nAT_SWITCH_RET:")
    G.at(45, "s_sub_u32 s%d, s%d, s%d" % (sX, sB, sCHK))
    G.at(46, "s_cmp_lt_u32 s%d, 2" % sX)
    G.at(47, "s_cbranch_scc1 AT_KVCHK\nAT_KVCHK_RET:")
    G.at(58, "s_add_u32 s%d, s%d, 1" % (sB, sB))
    G.at(59, "s_sub_u32 s%d, s%d, 1" % (sCNT, sCNT))
    G.at(60, "s_cmp_lg_u32 s%d, 0" % sCNT)
    G.at(61, "s_waitcnt lgkmcnt(0)")
    p(G.weave(qk_mf(False) + pv_mf, "attn"))
    p("s_cbranch_vccnz AT_RARE")
    p.label("AT_RARE_RET")
    p("s_cbranch_scc1 AT_LOOP")

    st("a1")
    rd = reads("kv", 1)
    for j in range(8):
        d = dma(j)
        J([d[0], rd[2 * j], d[1], rd[2 * j + 1], cvt_p[j]])
    J(ladd + PROD_ADV + RING_ADV)
    p("s_waitcnt vmcnt(16) lgkmcnt(0)")
    p("s_barrier")
    p("s_cmp_eq_u32 s%d, 2" % sACT)
    p("s_cbranch_scc1 AT_LAST_Q")
    G = Gaps(32)
    tr_h1(G, "wo", 0)
    a3, b3, c3 = TMP, TMP + 1, TMP + 2
    w3 = ["v_lshrrev_b32 v%d, 3, v0" % a3,
          "s_and_b32 s3, s%d, 1" % sHEAD,
          "v_bfe_u32 v%d, v%d, 1, 2" % (b3, a3),
          "v_lshlrev_b32 v%d, 1, v%d" % (b3, b3),
          "v_and_b32 v%d, 7, v1" % c3,
          "v_xor_b32 v%d, v%d, v%d" % (b3, b3, c3),
          "v_mul_u32_u24 v%d, 896, v%d" % (a3, a3),
          "v_and_b32 v%d, 3, v%d" % (c3, b3),
          "v_lshl_add_u32 v%d, v%d, 4, v%d" % (a3, c3, a3),
          "v_lshrrev_b32 v%d, 2, v%d" % (b3, b3),
          "v_xor_b32 v%d, s3, v%d" % (b3, b3),
          "s_lshl_b32 s3, s3, 6",
          "v_mul_u32_u24 v%d, 229376, v%d" % (b3, b3),
          "s_and_b32 s%d, s%d, 14" % (sPO, sHEAD),
          "v_add_u32 v%d, v%d, v%d" % (ACT, a3, b3),
          "s_mul_i32 s%d, s%d, 229376" % (sPO, sPO)]
    w3 += ["v_add_u32 v%d, 0x%x, v%d" % (ACT + 1, 28672, ACT), "s_add_u32 s%d, s%d, s3" % (sPO, sPO),
           "v_add_u32 v%d, 0x%x, v%d" % (ACT + 2, 2 * 28672, ACT), "s_add_u32 s%d, s%d, 384" % (sPO, sPO)]
    w3 += ["v_add_u32 v%d, 0x%x, v%d" % (ACT + j, j * 28672, ACT) for j in range(3, 8)]
    left = G.fill(w3, 3, 32)
    p(G.weave(pv_mf))
    J(left)
    p("s_branch AT_LAST_DONE")
    p.label("AT_LAST_Q")
    G = Gaps(32)
    tr_h1(G, "wq", 0)
    p(G.weave(pv_mf))
    p.label("AT_LAST_DONE")
    st(5)
    for qt in range(2):
        xop_45(p, LS + qt, TMP + 15, "v_add_f32")

    def op_base(q):
        q("s_mul_i32 s%d, s%d, 0x%x" % (sX, sPAIR, OP_STRIDE))
        q("s_mul_i32 s%d, s%d, 17408" % (sY, sWAVE))
        q("s_add_u32 s%d, s%d, s%d" % (sX, sX, sY))
        q("s_add_u32 s%d, s%d, 0x%x" % (sX, sX, WS_OP))

    op_base(p)
    p("s_lshl_b32 s%d, s2, 2" % sY)
    p("s_add_u32 s%d, s%d, s%d" % (sY, sY, sWAVE))
    p("s_lshl_b32 s%d, s%d, 14" % (sY, sY))
    p("s_add_u32 s%d, s%d, 0x%x" % (sY, sY, WS_CX))
    p("s_cmp_eq_u32 s%d, 2" % sACT)
    p("s_cselect_b32 s%d, s%d, s%d" % (sX, sX, sY))
    p("s_waitcnt vmcnt(8)")
    p("s_cmp_eq_u32 s%d, 1" % sACT)
    p("s_cbranch_scc1 AT_MERGE")
    for qt in range(2):
        p("v_rcp_f32 v%d, v%d" % (BS + qt, LS + qt))
    convert("plain")
    p("s_cmp_eq_u32 s%d, 2" % sACT)
    p("s_cbranch_scc0 AT_OPROJ")
    p("s_add_u32 s%d, s%d, 16384" % (sX, sX))
    p("v_mov_b32 v%d, v%d" % (TMP, NEGM))
    p("v_mov_b32 v%d, v%d" % (TMP + 1, LS))
    p("v_mov_b32 v%d, v%d" % (TMP + 2, NEGM + 4))
    p("v_mov_b32 v%d, v%d" % (TMP + 3, LS + 1))
    p("buffer_store_dwordx4 %s, v%d, s[8:11], s%d offen" % (vr(TMP), L16, sX))
    p("s_mov_b32 s%d, s%d" % (sT, sT2))
    p("s_mov_b32 s%d, s%d" % (sNB, sNB2))
    p("s_mov_b32 s%d, 0" % sB0)
    p("s_mov_b32 s%d, 0" % sACT)
    flag_off(p, sSIG, FL_PAIR, sPAIR)
    p("s_mov_b32 s%d, 0x1000" % sCHK)
    J(h_loads(sT, range(8, 14)))
    p("s_waitcnt vmcnt(29)")
    p("s_branch AT_JOB")
    p.label("AT_MERGE")
    for qt in range(2):
        nB, lB = XT + 2 * qt, XT + 2 * qt + 1
        nA = NEGM + 4 * qt
        p("v_min_f32 v%d, v%d, v%d" % (T0, nA, nB))
        p("v_sub_f32 v%d, v%d, v%d" % (T0 + 1, T0, nA))
        p("v_sub_f32 v%d, v%d, v%d" % (T0, T0, nB))
        p("v_exp_f32 v%d, v%d" % (T0 + 1, T0 + 1))
        p("v_exp_f32 v%d, v%d" % (T0, T0))
        p("v_mul_f32 v%d, v%d, v%d" % (lB, lB, T0))
        p("v_fma_f32 v%d, v%d, v%d, v%d" % (T0, LS + qt, T0 + 1, lB))
        p("v_rcp_f32 v%d, v%d" % (T0, T0))
        p("v_mul_f32 v%d, v%d, v%d" % (BS + qt, T0 + 1, T0))
        p("v_mul_f32 v%d, v%d, v%d" % (LS + qt, lB, T0))
    convert("merge")

    p.label("AT_OPROJ")
    st(6)
    PC = 48
    calc, tloads = tail_pre()
    vml = ["conv"] * 16

    def vm(tag):
        return len(vml) - 1 - max(i for i, t in enumerate(vml) if t == tag)

    def ACCO(i):
        return 96 if i in (6, 7) else 16 * (i if i < 6 else i - 8)

    def op_mf(i):
        F = FA if i % 2 == 0 else FB
        Bq = Q if i < 7 else PC
        mf = []
        for mt in range(2):
            for u in range(8):
                for qt in range(2):
                    acc = ar(ACCO(i) + (qt * 2 + mt) * 4)
                    mf.append("%s %s, %s, %s, %s" % (MF, acc, ar(F + 4 * (mt * 8 + u)), vr(Bq + (qt * 8 + u) * 4),
                                                     "0" if (u == 0 and i < 7) else acc))
        return mf

    def op_out(i):
        o = []
        for qt in range(2):
            o += ["v_accvgpr_read_b32 v%d, a%d" % (TMP + k, ACCO(i) + qt * 8 + k) for k in range(8)]
            T = TMP + 8 + 4 * qt
            o += ["v_cvt_pk_bf16_f32 v%d, v%d, v%d" % (T + d, TMP + 2 * d, TMP + 2 * d + 1) for d in range(4)]
            if i == 7:
                o += ["s_add_u32 s%d, s%d, %d" % (sY, sO1, qt * 14336)]
            else:
                o += ["s_add_u32 s%d, s%d, %d" % (sY, sO0, qt * 14336 + (i - 8) * 1024)]
            o += ["buffer_store_dwordx4 %s, v%d, s[8:11], s%d offen sc1" % (vr(T), L16, sY)]
        return o

    a, b, c = TMP, TMP + 1, TMP + 2
    setup0 = ["s_xor_b32 s%d, s%d, 1" % (sPO, sHEAD), "v_mov_b32 v%d, v%d" % (ACT, BWO),
              "s_mul_i32 s%d, s%d, 229376" % (sPO, sPO), "v_add_u32 v%d, 0x%x, v%d" % (ACT + 1, 28672, BWO),
              "s_and_b32 s3, s%d, 1" % sHEAD, "v_add_u32 v%d, 0x%x, v%d" % (ACT + 2, 2 * 28672, BWO),
              "s_lshl_b32 s3, s3, 9", "v_add_u32 v%d, 0x%x, v%d" % (ACT + 3, 3 * 28672, BWO),
              "s_add_u32 s%d, s%d, s3" % (sPO, sPO)]
    setup0 += ["v_add_u32 v%d, 0x%x, v%d" % (ACT + j, j * 28672, BWO) for j in range(4, 8)]
    setup1 = ["s_lshl_b32 s%d, s%d, 3" % (sO0, sT), "v_lshrrev_b32 v%d, 4, v0" % a,
              "s_lshl_b32 s3, s%d, 1" % sWAVE, "v_and_b32 v%d, 7, v%d" % (b, a),
              "s_add_u32 s%d, s%d, s3" % (sO0, sO0), "v_lshlrev_b32 v%d, 1, v%d" % (b, b),
              "s_mul_i32 s%d, s%d, 14336" % (sO0, sO0), "v_and_b32 v%d, 15, v1" % c,
              "s_lshr_b32 s3, s%d, 1" % sHEAD, "v_xor_b32 v%d, v%d, v%d" % (b, b, c),
              "s_mul_i32 s3, s3, 0x%x" % H_BYTES, "v_lshlrev_b32 v%d, 4, v%d" % (b, b),
              "s_add_u32 s%d, s%d, s3" % (sO0, sO0), "v_mul_u32_u24 v%d, 3584, v%d" % (a, a),
              "s_add_u32 s%d, s%d, 0x%x" % (sO0, sO0, WS_PART), "v_add_u32 v%d, v%d, v%d" % (BWQ, a, b),
              "s_and_b32 s3, s%d, 1" % sHEAD, "s_lshl_b32 s3, s3, 10", "s_add_u32 s%d, s%d, s3" % (sO1, sO0),
              "s_add_u32 s%d, s%d, 6144" % (sO1, sO1), "s_lshl_b32 s3, s3, 3", "s_add_u32 s%d, s%d, s3" % (sO0, sO0)]
    flag_off(p, sSIG, FL_CX, sHEAD)
    p("s_xor_b32 s%d, s%d, 64" % (sZ, sSIG))
    p("s_lshl_b32 s3, s%d, 2" % sROLE)
    p("s_add_u32 s%d, s%d, s3" % (sZ, sZ))
    p("s_xor_b32 s%d, s%d, 0x80000" % (sX, sX))
    p("s_waitcnt lgkmcnt(0)")
    NOS = (27, 28, 39, 40)
    for t in range(7):
        G = Gaps(64)
        nod = w1late and t >= 4
        if not nod:
            place_dma(G, 0)
        busy0 = [] if nod else list(DG)
        out0 = op_out(2 * t - 1) if 2 * t - 1 >= 7 else []
        out1 = op_out(2 * t) if 2 * t >= 8 else []
        if out0:
            busy0 += [20, 31]
        spread_reads(G, reads("wo", 1), [g for g in range(32) if g not in busy0])
        G.at(12, "s_waitcnt lgkmcnt(8)")
        G.put([24, 27, 28], RING_ADV)
        if out0:
            G.put([3, 4, 5, 7, 8, 9, 11, 12, 13, 15, 16, 17], out0[:12])
            G.at(20, out0[12], out0[13])
            G.put([16, 17, 19, 19, 21, 21, 23, 24, 25, 27, 28, 29], out0[14:26])
            G.at(31, out0[26], out0[27])
            vml.extend(["st", "st"] if nod else ["g%d" % t] * 5 + ["st"] + ["g%d" % t] * 3 + ["st"])
        else:
            vml.extend(["g%d" % t] * 8)
        if t == 1:
            assert not G.fill(calc2, 0, 31, NOS)
        if t == 2:
            assert not G.fill(setup1, 0, 31, NOS)
        need = {1: "smp", 3: "pc", 5: "g3", 6: "tl"}.get(t)
        w = "s_waitcnt %slgkmcnt(8)" % ("vmcnt(%d) " % vm(need) if need else "")
        mfs = op_mf(2 * t) + op_mf(2 * t + 1)
        if t == 0:
            p(Gaps_slice(G, mfs, 0, 12))
            p("s_waitcnt vmcnt(3)")
            p("s_barrier")
            signalw(p, sSIG, sROLE, T0, T0 + 1, "AT_SIGCX", local=True)
            p(Gaps_slice(G, mfs, 12, 32))
        else:
            p(Gaps_slice(G, mfs, 0, 32))
        p(w)
        p("s_barrier")
        if t == 1:
            poll(p, sZ, 1, T0, ZER, 40, 41, "AT_POLLCX", first_loaded=True, acquire=True)
        if not nod:
            G.put([35, 36, 39, 40], PROD_ADV)
        busy = []
        side = []
        if t == 3:
            side = tloads
        elif t in (1, 2):
            for u in range(4 * (t - 1), 4 * t):
                for qt in range(2):
                    f = qt * 8 + u
                    side.append(["s_add_u32 s%d, s%d, %d" % (sY, sX, f * 1024),
                                 "buffer_load_dwordx4 %s, v%d, s[8:11], s%d offen sc1" % (vr(PC + 4 * f), L16, sY)])
        sg = [34, 37, 41, 45, 48, 50, 51, 54, 56, 57, 59, 60, 61, 62, 63, 38] if len(side) > 8 else [37, 41, 45, 48, 51, 54, 57, 60]
        for op, g in zip(side, sg):
            G.at(g, *op)
            busy.append(g)
            vml.append("pc" if t < 3 else "tl")
        if t == 0:
            G.at(63, "buffer_load_dword v%d, v%d, s[8:11], s%d offen sc1" % (T0, ZER, sZ))
            busy.append(63)
            vml.append("smp")
        if out1:
            busy += [50, 63]
        if t < 6:
            tr_h1(G, "wo", 32, busy=busy)
        if out1:
            G.put(range(37, 49), out1[:12])
            G.at(50, out1[12], out1[13])
            G.put(range(51, 63), out1[14:26])
            G.at(63, out1[26], out1[27])
            vml.extend(["st", "st"])
        G.at(44, "s_waitcnt lgkmcnt(%d)" % (8 if t < 6 else 0))
        if t < 6:
            G.at(58, "s_waitcnt lgkmcnt(8)")
        if t == 0:
            rest = G.fill(setup0 + calc, 41, 64, NOS)
            calc2 = rest
        if t == 3:
            so, vo = prod_set("w1")
            G.put([42, 43, 46, 47, 49, 52, 53], so)
            G.put([42, 43, 46, 47, 49, 52, 53, 55], vo)
        import sys
        print("   sched oproj%d: est penalty %d" % (t, G.penalty()), file=sys.stderr)
        p(Gaps_slice(G, op_mf(2 * t) + op_mf(2 * t + 1), 32, 64))
        st("o%d" % t)
    J(op_out(13))
    st(7)

    q = stubs
    JQ = lambda l: q("\n".join(l))
    for kt in range(2):
        q.label("AT_MASK%d" % kt)
        JQ(mask_code(kt))
        q("s_branch AT_MASK%d_RET" % kt)
    q.label("AT_KVCHK")
    q("s_cmp_eq_u32 s%d, 0" % sX)
    q("s_cbranch_scc0 AT_KVCHK2")
    q("buffer_load_dword v%d, v%d, s[8:11], s%d offen sc1" % (XT + 10, ZER, sSIG))
    q("s_branch AT_KVCHK_RET")
    q.label("AT_KVCHK2")
    st("c0", q)
    q("s_waitcnt vmcnt(8)")
    poll(q, sSIG, 16, XT + 10, ZER, sX, sY, "AT_POLLKV", first_loaded=True, acquire=True)
    st("c1", q)
    q("s_sub_u32 s%d, s%d, 12" % (sX, sROLE))
    q("s_cmp_lt_u32 s%d, 3" % sX)
    q("s_cbranch_scc0 AT_KVCHK_RET")
    if wb:
        q("s_add_u32 s%d, s%d, s%d" % (sY, sX, sWAVE))
        q("s_cmp_eq_u32 s%d, 0" % sY)
        q("s_cbranch_scc0 AT_NOWB")
        q("buffer_wbl2 sc1")
        q.label("AT_NOWB")
    q("s_lshl_b32 s%d, s%d, 4" % (sX, sX))
    q("s_add_u32 s%d, s%d, s%d" % (sX, sX, sHEAD))
    q("s_mul_i32 s%d, s%d, 38272" % (sX, sX))
    q("s_cmp_eq_u32 s%d, 1" % sWAVE)
    q("s_cselect_b32 s%d, 0x%x, 0" % (sY, H_BYTES))
    q("s_add_u32 s%d, s%d, s%d" % (sX, sX, sY))
    q("s_cmp_eq_u32 s%d, 2" % sWAVE)
    q("s_cselect_b32 s12, s%d, s%d" % (pW1, pW2))
    q("s_cselect_b32 s13, s%d, s%d" % (pW1 + 1, pW2 + 1))
    q("s_mov_b32 s14, 0x%x" % (448 * 1792 * 2))
    q("s_cmp_lt_u32 s%d, 2" % sWAVE)
    q("s_cselect_b32 s12, s%d, s12" % pWO)
    q("s_cselect_b32 s13, s%d, s13" % (pWO + 1))
    q("s_cselect_b32 s14, 0x%x, s14" % (448 * 4096 * 2))
    q("s_and_b32 s13, s13, 0xffff")
    q("v_lshlrev_b32 v%d, 7, v1" % (XT + 4))
    for i in range(5):
        q("buffer_load_dword v%d, v%d, s[12:15], s%d offen" % (XT + 5 + i, XT + 4, sX))
        q("s_add_u32 s%d, s%d, 8192" % (sX, sX))
    q("s_branch AT_KVCHK_RET")

    q.label("AT_SWITCH")
    q("s_cmp_eq_u32 s%d, 3" % sCNT)
    q("s_cbranch_scc1 AT_SW3")
    for j in range(4):
        q("v_mov_b32 v%d, v%d" % (ACT + 4 + j, ACT + j))
    q("s_cmp_eq_u32 s%d, 1" % sACT)
    q("s_cbranch_scc0 AT_SWITCH_RET")
    flag_off(q, sZ, FL_PAIR, sPAIR)
    q("buffer_load_dword v%d, v%d, s[8:11], s%d offen sc1" % (T0 + 1, ZER, sZ))
    q("s_branch AT_SWITCH_RET")
    q.label("AT_SW3")
    st("w0", q)
    q("s_cmp_eq_u32 s%d, 2" % sACT)
    q("s_cbranch_scc1 AT_SW_Q")
    so, vo = prod_set("wo")
    JQ(so + vo)
    q("s_cmp_eq_u32 s%d, 1" % sACT)
    q("s_cbranch_scc0 AT_SWITCH_RET")
    q("s_waitcnt vmcnt(8)")
    poll(q, sZ, 1, T0 + 1, ZER, sX, sY, "AT_POLLP", first_loaded=True, acquire=True)
    st("w1", q)
    op_base(q)
    for f in range(16):
        if f % 4 == 0 and f:
            q("s_add_u32 s%d, s%d, 4096" % (sX, sX))
        q("buffer_load_dwordx4 %s, v%d, s[8:11], s%d offen offset:%d sc1" % (vr(MRG + 4 * f), L16, sX, (f % 4) * 1024))
    q("s_add_u32 s%d, s%d, 4096" % (sX, sX))
    q("buffer_load_dwordx4 %s, v%d, s[8:11], s%d offen sc1" % (vr(XT), L16, sX))
    q("s_branch AT_SWITCH_RET")
    q.label("AT_SW_Q")
    so, vo = prod_set("wq")
    JQ(so + vo)
    JQ(h_loads(sT2, range(8)))
    q("s_branch AT_SWITCH_RET")

    q.label("AT_RARE")
    q("s_nop 7")
    for qt in range(2):
        D, Fc = TMP + qt, TMP + 2 + qt
        rowmax(q, qt, D)
        q("v_max_f32 v%d, 0, v%d" % (D, D))
        q("v_sub_f32 v%d, 0, v%d" % (Fc, D))
        q("v_exp_f32 v%d, v%d" % (Fc, Fc))
        for r in range(4):
            q("v_sub_f32 v%d, v%d, v%d" % (NEGM + 4 * qt + r, NEGM + 4 * qt + r, D))
        q("v_mul_f32 v%d, v%d, v%d" % (LS + qt, LS + qt, Fc))
        for kt in range(2):
            for r in range(4):
                s = Sreg(kt, qt) + r
                q("v_sub_f32 v%d, v%d, v%d" % (s, s, D))
    for dt in range(16):
        for qt in range(2):
            for r in range(4):
                q("v_accvgpr_read_b32 v%d, a%d" % (TMP + 4 + r, Oreg(dt, qt) + r))
            for r in range(4):
                q("v_mul_f32 v%d, v%d, v%d" % (TMP + 4 + r, TMP + 4 + r, TMP + 2 + qt))
            for r in range(4):
                q("v_accvgpr_write_b32 a%d, v%d" % (Oreg(dt, qt) + r, TMP + 4 + r))
    JQ(ex + ad)
    q("s_branch AT_RARE_RET")


def Gaps_slice(G, mf, a, b):
    out = []
    for k in range(a, b):
        out.append(mf[k])
        out.extend(G.ordered(k))
    return "\n".join(out)
```

```python
from fused_common import *

XB = [32, 96]
WB = [64, 128]
XN, FLG, XOFF, MOFF, HOFF, VALID, MV, ZV = 160, 176, 177, 178, 179, 212, 180, 213
sKB, sWHICH = 27, 26


def entry(p, st, ct=1):
    p.label("K_START")
    p("s_cmp_ge_u32 s2, 256")
    p("s_cbranch_scc1 K_END")
    st(0)
    p("s_load_dwordx4 s[48:51], s[0:1], 0")
    p("s_load_dwordx2 s[%d:%d], s[0:1], 16" % (pWQ, pWQ + 1))
    p("s_load_dwordx4 s[40:43], s[0:1], 24")
    p("s_load_dwordx2 s[%d:%d], s[0:1], 40" % (pWO, pWO + 1))
    p("s_load_dwordx4 s[%d:%d], s[0:1], 56" % (pW1, pW1 + 3))
    p("s_load_dwordx4 s[36:39], s[0:1], 72")
    p("s_load_dwordx2 s[%d:%d], s[0:1], 88" % (pOUT, pOUT + 1))
    p("s_load_dwordx2 s[16:17], s[0:1], 96")
    p("s_load_dwordx2 s[%d:%d], s[0:1], 104" % (pWS, pWS + 1))
    p("v_and_b32 v1, 63, v0")
    p("v_lshrrev_b32 v30, 6, v0")
    p("v_readfirstlane_b32 s%d, v30" % sWAVE)
    p("s_and_b32 s3, s2, 7")
    p("s_lshr_b32 s%d, s2, 3" % sROLE)
    p("s_and_b32 s%d, s%d, 1" % (sHEAD, sROLE))
    p("s_lshl_b32 s3, s3, 1")
    p("s_add_u32 s%d, s%d, s3" % (sHEAD, sHEAD))
    p("s_lshr_b32 s%d, s%d, 1" % (sROLE, sROLE))
    p("s_lshr_b32 s%d, s%d, 1" % (sKB, sROLE))
    p("s_mul_i32 s%d, s%d, 5" % (sKB, sKB))
    p("s_and_b32 s%d, s%d, 7" % (sKB, sKB))
    p("s_and_b32 s%d, s%d, 1" % (sWHICH, sROLE))


def gen(p, st, hooks, touch=False, slow=False, ct=1):
    p("v_lshrrev_b32 v31, 5, v1")
    p("v_and_b32 v29, 31, v1")
    p("v_lshrrev_b32 v28, 3, v0")
    p("v_and_b32 v28, 0x18, v28")
    p("v_lshrrev_b32 v24, 3, v1")
    p("v_lshl_add_u32 v24, v28, 2, v24")
    p("v_and_b32 v26, 7, v1")
    p("v_lshrrev_b32 v25, 4, v1")
    p("v_xor_b32 v25, v26, v25")
    p("v_lshlrev_b32 v25, 4, v25")
    p("v_lshl_add_u32 v6, v24, 11, v25")
    p("v_xor_b32 v7, 64, v6")
    p("v_add_u32 v7, 0x4000, v7")
    p("v_add_u32 v8, 0x8000, v6")
    p("v_add_u32 v9, 0x8000, v7")
    p("v_add_u32 v24, v28, v31")
    p("v_and_b32 v25, 8, v28")
    p("v_lshl_add_u32 v25, v31, 1, v25")
    p("v_xor_b32 v25, v29, v25")
    p("v_lshlrev_b32 v25, 4, v25")
    p("v_lshl_add_u32 v2, v24, 13, v25")
    p("v_xor_b32 v3, 64, v2")
    p("v_add_u32 v3, 0x4000, v3")
    p("v_add_u32 v4, 0x8000, v2")
    p("v_add_u32 v5, 0x8000, v3")
    p("s_lshl_b32 s30, s%d, 12" % sWAVE)
    p("s_add_u32 s31, s30, 0x10000")
    p("s_lshl_b32 s28, s%d, 9" % sHEAD)
    p("s_lshl_b32 s29, s%d, 19" % sKB)
    p("s_add_u32 s35, s29, 0x40000")
    p("s_mov_b32 s34, s31")

    def dma_w(slot, j):
        return ["s_add_u32 m0, s30, %d" % (slot * 16384 + j * 1024),
                "buffer_load_dwordx4 v%d, s[4:7], s28 offen lds" % (2 + j)]

    def dma_x(e, j, base=36):
        return ["s_add_u32 m0, s%d, %d" % (base, e * 16384 + j * 1024),
                "buffer_load_dwordx4 v%d, s[12:15], s%d offen lds" % (6 + j, 35 if e else 29)]

    p("s_waitcnt lgkmcnt(0)")
    srd(p, 12, 50, 51, 2048 * 1024 * 2)
    p("s_cmp_eq_u32 s%d, 0" % sWHICH)
    p("s_cselect_b32 s40, s40, s42")
    p("s_cselect_b32 s41, s41, s43")
    srd(p, 4, 40, 41, 1024 * 4096 * 2)
    ln = ["v_lshrrev_b32 v24, 2, v29", "v_and_b32 v25, 3, v1", "v_lshlrev_b32 v26, 7, v24",
          "v_lshl_add_u32 v%d, v25, 4, v26" % MOFF, "s_lshl_b32 s3, s2, 3", "v_lshrrev_b32 v27, 5, v0",
          "v_add_u32 v27, s3, v27", "v_mul_u32_u24 v26, 896, v27", "v_lshrrev_b32 v28, 1, v%d" % MOFF,
          "v_add_u32 v%d, v26, v28" % XOFF, "v_lshrrev_b32 v26, 4, v27", "v_mul_u32_u24 v26, 14336, v26",
          "v_lshl_add_u32 v26, v24, 10, v26", "v_lshl_add_u32 v26, v25, 8, v26", "v_and_b32 v27, 15, v27",
          "v_lshl_add_u32 v%d, v27, 4, v26" % HOFF, "v_cmp_gt_u32 vcc, 28, v29", "v_mov_b32 v26, 0x7f000000",
          "v_mov_b32 v%d, 0" % ZV, "v_cndmask_b32 v%d, v26, v%d, vcc" % (XOFF, XOFF),
          "v_cndmask_b32 v%d, v26, v%d, vcc" % (HOFF, HOFF), "v_cndmask_b32 v%d, 0, 1.0, vcc" % VALID,
          "s_mov_b32 s%d, s48" % pX, "s_mov_b32 s%d, s49" % (pX + 1)]
    first = [dma_x(0, j, 34) for j in range(4)] + [dma_w(0, j) for j in range(4)] + [dma_x(1, j, 34) for j in range(4)]
    for k, d in enumerate(first):
        p("\n".join([d[0]] + ln[2 * k:2 * k + 2] + [d[1]]))
    if ct:
        code_touch(p, 44, 214, 221, 3)
    srd(p, 8, pWS, pWS + 1, WS_BYTES)
    srd(p, 44, pX, pX + 1, H_BYTES)
    for k, off in enumerate((0, 32, 448, 480)):
        p("buffer_load_dwordx2 %s, v%d, s[44:47], 0 offen offset:%d" % (vr(MV + 2 * k, 2), XOFF, off))
    p("s_sub_u32 s25, s%d, 12" % sROLE)
    p("s_lshl_b32 s25, s25, 4")
    p("s_add_u32 s25, s25, s%d" % sHEAD)
    p("s_cmp_lt_u32 s25, 42")
    p("s_cbranch_scc0 KV_NOMOD1")
    srd(p, 44, 36, 37, 896)
    p("v_lshrrev_b32 v24, 3, v0")
    p("v_mul_u32_u24 v25, 28, v24")
    p("buffer_load_dwordx4 v[96:99], v25, s[44:47], 0 offen")
    p("buffer_load_dwordx3 v[100:102], v25, s[44:47], 0 offen offset:16")
    srd(p, 44, 38, 39, 448 * 2688 * 2)
    p("v_mul_u32_u24 v25, %d, v24" % (14 * 5376))
    p("v_and_b32 v24, 7, v0")
    p("v_lshl_add_u32 v25, v24, 4, v25")
    p("s_lshl_b32 s3, s25, 7")
    for i in range(14):
        p("buffer_load_dwordx4 %s, v25, s[44:47], s3 offen" % vr(32 + 4 * i))
        p("s_add_u32 s3, s3, 5376")
    p.label("KV_NOMOD1")
    rb = ["v_lshrrev_b32 v28, 1, v30", "v_and_b32 v27, 15, v1", "v_lshl_add_u32 v28, v28, 7, v27",
          "v_lshlrev_b32 v28, 7, v28", "v_add_u32 v28, 0x10000, v28", "v_bfe_u32 v24, v1, 1, 3",
          "v_lshrrev_b32 v26, 4, v1", "v_xor_b32 v25, v26, v24", "v_lshl_add_u32 v10, v25, 4, v28",
          "v_xor_b32 v11, 64, v10", "v_bfe_u32 v28, v1, 2, 2", "v_lshl_add_u32 v24, v26, 3, v28",
          "v_lshlrev_b32 v24, 9, v24", "v_and_b32 v25, 1, v30", "v_lshl_add_u32 v24, v25, 8, v24",
          "v_and_b32 v25, 3, v1", "v_lshl_add_u32 v24, v25, 3, v24", "v_bfe_u32 v25, v1, 2, 3",
          "v_lshl_add_u32 v16, v25, 5, v24"]
    rb += ["v_xor_b32 v%d, %d, v16" % (16 + nt, nt * 32) for nt in range(1, 8)]
    rb += ["v_mov_b32 v%d, 0" % (216 + i) for i in range(4)] + ["v_mov_b32 v14, v10", "s_nop 0"]
    rb += ["v_mfma_f32_32x32x16_bf16 a[%d:%d], v[216:219], v[216:219], 0" % (16 * i, 16 * i + 15) for i in range(16)]
    p("s_mov_b32 s36, s31")
    k = 0
    for g in range(1, 4):
        p("s_add_u32 s28, s28, 0x40000")
        if g % 2:
            p("s_add_u32 s36, s36, 0x8000")
            p("s_add_u32 s29, s29, 128")
            p("s_add_u32 s35, s35, 128")
        for d in [dma_w(g, j) for j in range(4)] + [dma_x(0 if g % 2 else 1, j) for j in range(4)]:
            p("\n".join([d[0]] + rb[2 * k:2 * k + 2] + [d[1]]))
            k += 1
    p("s_add_u32 s28, s28, 0x40000")
    if touch:
        srd(p, 44, pWQ, pWQ + 1, 448 * 4096 * 2)
        p("v_min_u32 v214, 27, v1")
        p("v_lshlrev_b32 v214, 7, v214")
        p("s_lshl_b32 s3, s2, 2")
        p("s_add_u32 s3, s3, s%d" % sWAVE)
        p("s_mul_i32 s3, s3, 3584")
        p("buffer_load_dword v220, v214, s[44:47], s3 offen")
    p("s_mov_b32 s34, 0x10000")
    p("s_mov_b32 s32, 0")
    p("s_mov_b32 s33, 8")
    srd(p, 44, 16, 17, 256)
    p("s_getreg_b32 s3, hwreg(HW_REG_XCC_ID, 0, 4)")
    p("s_mul_i32 s37, s3, s3")
    p("s_lshl_b32 s37, s37, 10")
    p("s_add_u32 s37, s37, s3")
    p("s_add_u32 s37, s37, 0x1000000")
    p("s_lshl_b32 s%d, s37, 5" % sFAST)
    p("s_lshr_b32 s39, s%d, 1" % sHEAD)
    p("s_lshl_b32 s39, s39, 2")
    p("s_add_u32 s39, s39, 64")
    p("s_cmp_lg_u32 s%d, 0" % sWAVE)
    p("s_cbranch_scc1 KV_NOREG")
    p("v_mov_b32 v214, s37")
    p("s_mov_b64 exec, 1")
    p("buffer_atomic_add v214, v%d, s[44:47], s39 offen sc1" % ZV)
    p("s_mov_b64 exec, -1")
    p.label("KV_NOREG")
    p("s_waitcnt vmcnt(%d)" % (25 if touch else 24))
    unpack(p, XN, MV, 8)
    p("v_add_f32 v24, v%d, v%d" % (XN, XN + 1))
    for i in range(2, 16):
        p("v_add_f32 v24, v24, v%d" % (XN + i))
    xsum_row32(p, 24, 25)
    p("v_mul_f32 v24, %s, v24" % f32bits(1.0 / 448))
    p("v_mov_b32 v26, 0")
    for i in range(16):
        p("v_sub_f32 v%d, v%d, v24" % (XN + i, XN + i))
        p("v_fmac_f32 v26, v%d, v%d" % (XN + i, XN + i))
    p("v_mul_f32 v26, v26, v%d" % VALID)
    xsum_row32(p, 26, 25)
    p("v_mov_b32 v27, %s" % f32bits(1e-5))
    p("v_fmac_f32 v27, %s, v26" % f32bits(1.0 / 448))
    p("v_rsq_f32 v27, v27")
    for i in range(16):
        p("v_mul_f32 v%d, v%d, v27" % (XN + i, XN + i))
    p("s_cmp_lt_u32 s25, 42")
    p("s_cbranch_scc0 KV_NOMOD2")
    unpack(p, 104, 96, 7)
    for i in range(14):
        p("v_mul_f32 v%d, %s, v%d" % (128 + i, f32bits(-math.log2(math.e)), 104 + i))
    for i in range(14):
        p("v_exp_f32 v%d, v%d" % (128 + i, 128 + i))
    for i in range(14):
        p("v_add_f32 v%d, 1.0, v%d" % (128 + i, 128 + i))
    for i in range(14):
        p("v_rcp_f32 v%d, v%d" % (128 + i, 128 + i))
    for i in range(14):
        p("v_mul_f32 v%d, v%d, v%d" % (104 + i, 104 + i, 128 + i))
    for i in range(14):
        p("v_cvt_pk_bf16_f32 v%d, v%d, v%d" % (128 + i, 104 + i, ZV))
        p("v_cvt_pk_bf16_f32 v%d, v%d, v%d" % (144 + i, ZV, 104 + i))
    for d in range(8):
        p("v_mov_b32 v%d, 0" % (120 + d))
    for i in range(14):
        for d in range(4):
            p("v_dot2c_f32_bf16 v%d, v%d, v%d" % (120 + 2 * d, 128 + i, 32 + 4 * i + d))
            p("v_dot2c_f32_bf16 v%d, v%d, v%d" % (121 + 2 * d, 144 + i, 32 + 4 * i + d))
    p("v_lshlrev_b32 v24, 5, v0")
    p("v_add_u32 v24, 0x24000, v24")
    p("s_nop 1")
    p("ds_write_b128 v24, v[120:123]")
    p("ds_write_b128 v24, v[124:127] offset:16")
    p("s_waitcnt lgkmcnt(0)")
    p("s_barrier")
    p("s_cmp_lg_u32 s%d, 0" % sWAVE)
    p("s_cbranch_scc1 KV_NOMOD2")
    p("v_lshlrev_b32 v25, 2, v1")
    p("v_add_u32 v24, 0x24000, v25")
    for i in range(32):
        p("ds_read_b32 v%d, v24 offset:%d" % (32 + i, 256 * i))
    p("s_waitcnt lgkmcnt(0)")
    for i in range(1, 32):
        p("v_add_f32 v32, v32, v%d" % (32 + i))
    round_bf16(p, 32)
    p("s_mul_i32 s3, s25, 37")
    p("s_lshr_b32 s3, s3, 8")
    p("s_cmp_eq_u32 s3, 1")
    p("s_cselect_b32 s37, 1.0, 0")
    p("s_cmp_eq_u32 s3, 4")
    p("s_cselect_b32 s37, 1.0, s37")
    p("v_add_f32 v32, s37, v32")
    round_bf16(p, 32)
    p("s_cmp_lt_u32 s3, 2")
    p("s_cselect_b32 s37, %s, 1.0" % f32bits(QSCALE))
    p("v_mul_f32 v32, s37, v32")
    p("s_lshl_b32 s3, s25, 8")
    p("buffer_store_dword v32, v25, s[8:11], s3 offen offset:%d sc1" % WS_MOD)
    p("s_cmp_lg_u32 s25, 0")
    p("s_cbranch_scc1 KV_NOMOD2")
    p("v_lshlrev_b32 v25, 4, v1")
    p("s_mov_b32 s3, 0x%x" % WS_FLAG)
    for i in range(NFLAG_KB):
        p("buffer_store_dwordx4 v[216:219], v25, s[8:11], s3 offen sc1")
        p("s_add_u32 s3, s3, 1024")
    p.label("KV_NOMOD2")

    def reads(buf, xks, wslot):
        out = []
        for i in range(8):
            out.append("ds_read_b128 v[%d:%d], v14 offset:%d" % (XB[buf] + 4 * i, XB[buf] + 4 * i + 3, i * 2048))
            for h in range(2):
                out.append("ds_read_b64_tr_b16 v[%d:%d], v%d offset:%d" % (
                    WB[buf] + 4 * i + 2 * h, WB[buf] + 4 * i + 2 * h + 1, 16 + i, wslot * 16384 + h * 2048))
        return out

    st(1)
    p("s_barrier")
    p("\n".join(reads(0, 0, 0)))
    p("s_cmp_eq_u32 s%d, 0" % sWHICH)
    p("s_cbranch_scc0 KV_LOOP_V")

    def mfmas(buf, isk):
        out = []
        for i in range(8):
            for j in range(8):
                n = (i * 8 + j) if isk else (j * 8 + i)
                acc = ar(n * 4)
                x = vr(XB[buf] + 4 * i)
                w = vr(WB[buf] + 4 * j)
                out.append("%s %s, %s, %s, %s" % ((MF, acc, w, x, acc) if isk else (MF, acc, x, w, acc)))
        return out

    def loop(isk, name):
        p(".p2align 6")
        p.label(name)
        for t in range(4):
            p("s_waitcnt vmcnt(16) lgkmcnt(0)")
            p("s_barrier")
            G = Gaps(64)
            if t & 1:
                G.at(0, "s_add_u32 s32, s32, 0x8000", "s_cmp_eq_u32 s32, 0x18000", "s_cselect_b32 s32, 0, s32")
                G.at(3, "s_add_u32 s34, s34, 0x8000", "s_cmp_eq_u32 s34, 0x18000", "s_cselect_b32 s34, 0, s34")
                G.at(5, "s_add_u32 s36, s31, s34", "s_add_u32 s29, s29, 128", "s_add_u32 s35, s35, 128")
            G.at(1, "v_add_u32 v14, s32, v%d" % (10 + ((t + 1) & 1)))
            G.put(range(2, 50, 2), reads((t + 1) & 1, (t + 1) & 1, (t + 1) % 4))
            e = 0 if t & 1 else 1
            d = [dma_w(t, j) for j in range(4)] + [dma_x(e, j) for j in range(4)]
            for k in range(8):
                G.at(8 + 6 * k, d[k][0])
                G.at(9 + 6 * k, d[k][1])
            G.at(61, "s_add_u32 s28, s28, 0x40000")
            if t == 3:
                G.at(62, "s_sub_u32 s33, s33, 1")
            p(G.weave(mfmas(t & 1, isk), "kv" if isk and t == 1 else None))
        p("s_branch KV_STUB")

    loop(True, "KV_LOOP_K")
    loop(False, "KV_LOOP_V")
    p.label("KV_STUB")
    p("s_cmp_eq_u32 s33, 7")
    p("s_cbranch_scc0 KV_ST6")
    st("k7")
    p("s_cmp_lt_u32 s25, 42")
    p("s_cbranch_scc0 KV_STRET")
    p("s_mov_b32 s3, 0")
    signal(p, 3, 214, 215, "KV_SIGMOD", srd_=44)
    p("s_branch KV_STRET")
    p.label("KV_ST6")
    p("s_cmp_eq_u32 s33, 5")
    p("s_cbranch_scc0 KV_ST5")
    st("k6")
    p("buffer_load_dword v%d, v%d, s[44:47], 0 offen sc1" % (FLG, ZV))
    p("buffer_load_dword v215, v%d, s[44:47], s39 offen sc1" % ZV)
    p("s_branch KV_STRET")
    p.label("KV_ST5")
    p("s_cmp_eq_u32 s33, 4")
    p("s_cbranch_scc0 KV_ST4")
    st("k5")
    poll(p, 39, 0x20000000, 215, ZV, 37, 38, "KV_POLLX", srd_=44, first_loaded=True)
    p("s_cmp_eq_u32 s37, s%d" % sFAST)
    p("s_cselect_b32 s%d, %d, 0" % (sFAST, 0 if slow else 1))
    p("s_mov_b32 s3, 0")
    poll(p, 3, 42, FLG, ZV, 37, 38, "KV_POLLMOD", srd_=44, first_loaded=True)
    for v, idx in ((0, 1), (16, 0)):
        for k, off in enumerate((0, 64, 896, 960)):
            p("buffer_load_dwordx4 %s, v%d, s[8:11], 0 offen offset:%d sc1" % (vr(MV + v + 4 * k), MOFF, WS_MOD + idx * 1792 + off))
    p("s_branch KV_STRET")
    p.label("KV_ST4")
    p("s_cmp_eq_u32 s33, 3")
    p("s_cbranch_scc0 KV_ST3")
    st("k4")
    for i in range(16):
        p("v_fma_f32 v%d, v%d, v%d, v%d" % (XN + i, XN + i, MV + i, MV + 16 + i))
    for d in range(8):
        p("v_cvt_pk_bf16_f32 v%d, v%d, v%d" % (MV + d, XN + 2 * d, XN + 2 * d + 1))
    p("s_mov_b32 s3, 0x%x" % WS_H)
    p("buffer_store_dwordx4 %s, v%d, s[8:11], s3 offen sc1" % (vr(MV), HOFF))
    p("s_mov_b32 s3, 0x%x" % (WS_H + 7168))
    p("buffer_store_dwordx4 %s, v%d, s[8:11], s3 offen sc1" % (vr(MV + 4), HOFF))
    p("s_branch KV_STRET")
    p.label("KV_ST3")
    p("s_cmp_eq_u32 s33, 2")
    p("s_cbranch_scc0 KV_ST2")
    st("k3")
    p("s_lshr_b32 s37, s2, 4")
    flag_off(p, 3, FL_H, 37)
    signal(p, 3, 214, 215, "KV_SIGH")
    p("s_branch KV_STRET")
    p.label("KV_ST2")
    p.label("KV_ST1")
    p("s_cmp_eq_u32 s33, 0")
    p("s_cbranch_scc1 KV_DONE")
    p("s_cmp_eq_u32 s33, 1")
    p("s_cbranch_scc0 KV_STRET")
    st("k1")
    p("s_mov_b32 s4, s%d" % pWQ)
    p("s_and_b32 s5, s%d, 0xffff" % (pWQ + 1))
    p("s_mov_b32 s6, 0x%x" % (448 * 4096 * 2))
    p("s_lshl_b32 s28, s%d, 9" % sHEAD)
    p("s_add_u32 s30, s30, 98304")
    p("s_mov_b32 s14, 0")
    p("s_mov_b32 s31, 0x28000")
    p("s_mov_b32 s36, 0x28000")
    p("v_lshlrev_b32 v28, 3, v30")
    p("v_add_u32 v28, v28, v31")
    for j in range(4):
        p("v_add_u32 v24, %d, v28" % (2 * j))
        p("v_and_b32 v25, 7, v24")
        p("v_lshlrev_b32 v25, 1, v25")
        p("v_xor_b32 v25, v29, v25")
        p("v_lshlrev_b32 v25, 4, v25")
        p("v_lshl_add_u32 v%d, v24, 13, v25" % (2 + j))
    hooks["st1"]()
    if ct > 1:
        code_touch(p, 40, 214, 221, 3)
    st("k1b")
    p.label("KV_STRET")
    p("s_cmp_eq_u32 s%d, 0" % sWHICH)
    p("s_cbranch_scc1 KV_LOOP_K")
    p("s_branch KV_LOOP_V")
    p.label("KV_DONE")
    st(2)


def epi_setup(p):
    p("s_lshl_b32 s23, s%d, 6" % sHEAD)
    p("s_lshr_b32 s16, s%d, 1" % sROLE)
    p("s_mul_i32 s16, s16, 5")
    p("s_and_b32 s16, s16, 7")
    p("s_lshl_b32 s16, s16, 3")
    p("s_add_u32 s23, s23, s16")
    p("s_lshr_b32 s16, s%d, 1" % sWAVE)
    p("s_lshl_b32 s16, s16, 2")
    p("s_add_u32 s23, s23, s16")
    p("s_lshl_b32 s23, s23, 15")
    p("s_add_u32 s23, s23, 0x%x" % WS_KV)
    p("s_and_b32 s16, s%d, 1" % sWAVE)
    p("s_lshl_b32 s16, s16, 12")
    p("s_add_u32 s23, s23, s16")
    p("s_add_u32 s17, s23, s16")
    p("s_add_u32 s17, s17, 16384")
    p("s_bitcmp0_b32 s%d, 0" % sROLE)
    p("s_cselect_b32 s23, s23, s17")
    p("s_mov_b32 s16, 32768")
    p("s_cselect_b32 s46, 1024, s16")
    p("s_mov_b32 s16, %d" % (1024 - 3 * 32768))
    p("s_cselect_b32 s47, %d, s16" % (8192 - 3 * 1024))
    p("s_cselect_b32 s17, %d, s16" % (32768 - 8192 - 3 * 1024))


def epi_conv(n, dst, T):
    o = ["v_accvgpr_read_b32 v%d, a%d" % (T + r, n * 8 + r) for r in range(8)]
    o += ["v_cvt_pk_bf16_f32 v%d, v%d, v%d" % (dst + r, T + 2 * r, T + 2 * r + 1) for r in range(4)]
    return o


def epi_store(n, src, L16):
    o, u = n >> 2, n & 3
    return ["buffer_store_dwordx4 %s, v%d, s[8:11], s23 offen" % (vr(src), L16),
            "s_add_u32 s23, s23, s%d" % (46 if u < 3 else (47 if (o & 1) == 0 else 17))]
```

```python
from fused_common import *
import phase_attn as A

L16, ZER = A.L16, A.ZER
sRR, sRW = A.sRR, A.sRW


R_, E_, G_, FO, XO, MO, FO2, XO2 = 16, 17, 18, 19, 20, 21, 22, 23
XR, GA, SC, SH, X, L = 176, 184, 200, 216, 240, 48


def pre():
    p = Prog()
    flag_off(p, 30, FL_P, A.sT)
    flag_off(p, 31, FL_P, sHEAD)
    p("v_and_b32 v%d, 7, v1" % R_)
    p("s_lshl_b32 s28, s%d, 4" % sHEAD)
    p("v_lshrrev_b32 v%d, 5, v1" % E_)
    p("s_add_u32 s28, s28, s%d" % sROLE)
    p("v_bfe_u32 v%d, v1, 3, 2" % G_)
    p("s_lshr_b32 s3, s28, 1")
    p("v_lshlrev_b32 v%d, 10, v%d" % (FO, E_))
    p("s_mul_i32 s3, s3, 14336")
    p("v_lshl_add_u32 v%d, v%d, 8, v%d" % (FO, G_, FO))
    p("s_and_b32 s27, s28, 1")
    p("v_lshl_add_u32 v%d, v%d, 4, v%d" % (FO, R_, FO))
    p("s_lshl_b32 s27, s27, 7")
    p("v_lshlrev_b32 v%d, 7, v%d" % (MO, E_))
    p("s_add_u32 s3, s3, s27")
    p("v_lshl_add_u32 v%d, v%d, 4, v%d" % (MO, G_, MO))
    p("s_lshl_b32 s27, s%d, 11" % sWAVE)
    p("s_add_u32 s3, s3, s27")
    p("v_add_u32 v%d, s3, v%d" % (FO, FO))
    p("s_lshl_b32 s3, s%d, 8" % sWAVE)
    p("v_add_u32 v%d, s3, v%d" % (MO, MO))
    p("s_lshl_b32 s3, s28, 3")
    p("v_add_u32 v%d, s3, v%d" % (XO, R_))
    p("s_add_u32 s28, s%d, 1" % sWAVE)
    p("v_mul_u32_u24 v%d, 896, v%d" % (XO, XO))
    p("s_lshr_b32 s28, s28, 2")
    p("v_lshrrev_b32 v%d, 1, v%d" % (XO2, MO))
    p("s_sub_u32 s29, s28, 1")
    p("v_add_u32 v%d, v%d, v%d" % (XO, XO, XO2))
    p("s_and_b32 s29, s29, 0x3f800000")
    p("s_mul_i32 s28, s28, 0x70000000")
    p("v_add_u32 v%d, s28, v%d" % (FO2, FO))
    p("s_mov_b32 s12, s%d" % pX)
    p("v_add_u32 v%d, 8192, v%d" % (FO2, FO2))
    p("s_and_b32 s13, s%d, 0xffff" % (pX + 1))
    p("v_add_u32 v%d, s28, v%d" % (XO2, XO))
    p("s_mov_b32 s14, 0x%x" % H_BYTES)
    calc = [x.text for x in p.ins]
    loads = []
    for k, (vo, off) in enumerate(((XO, 0), (XO, 32), (XO2, 512), (XO2, 544))):
        loads.append(["buffer_load_dwordx2 %s, v%d, s[12:15], 0 offen offset:%d" % (vr(XR + 2 * k, 2), vo, off)])
    for base, idx in ((GA, 2), (SC, 4), (SH, 3)):
        for k, off in enumerate((0, 64, 1024, 1088)):
            loads.append(["s_mov_b32 s3, %d" % (WS_MOD + idx * 1792),
                          "buffer_load_dwordx4 %s, v%d, s[8:11], s3 offen offset:%d sc1" % (vr(base + 4 * k), MO, off)])
    return calc, loads


RS = [40, 41, 42, 43, 44]
WS_ = [45, 46, 47, 16, 17]
W2P = {0: (4, 0), 1: (4, 1), 2: (4, 0), 3: (4, 1), 4: (3, 1), 5: (0, 0), 6: (0, 1), 7: (1, 0), 8: (1, 1),
       9: (2, 0), 10: (2, 1), 11: (3, 0), 12: (4, 0), 13: (4, 1)}
V2, B2, C2 = 3, 4, 8


def w2(k):
    sl, hf = W2P[k]
    o = []
    for j in range(4):
        o.append(["s_add_u32 m0, s%d, %d" % (WS_[sl], hf * 16384 + j * 1024),
                  "s_add_u32 s36, s35, %d" % ((k * 32 + j * 8) * 896),
                  "buffer_load_dwordx4 v%d, s[12:15], s36 offen lds" % V2])
    return o


def cur2(sl):
    return ["v_add_u32 v%d, s%d, v%d" % (C2 + x, WS_[sl], B2 + x) for x in range(4)]


def wreg(k):
    return ("a", 128 + 16 * k) if k < 4 else ("v", 160 + (k % 4) * 16)


def reads2(k):
    kind, b = wreg(k)
    o = []
    for mt in range(4):
        for i in range(2):
            o.append("ds_read_b64_tr_b16 %s, v%d offset:%d" % (vr(b + mt * 4 + 2 * i, 2, kind), C2 + mt, W2P[k][1] * 16384 + i * 2048))
    return o


def gen(p, st, pd=3, w1late=0):
    J = lambda l: p("\n".join(l))
    JJ = lambda ll: [J(l) for l in ll]
    for i in range(16):
        p("v_mov_b32 v%d, 0" % (X + i))
    p("s_mov_b32 s%d, s%d" % (RS[0], sRR))
    for i in range(1, 5):
        p("s_add_u32 s%d, s%d, 0x8000" % (RS[i], RS[i - 1]))
        p("s_cmp_ge_u32 s%d, 0x%x" % (RS[i], A.RING))
        p("s_cselect_b32 s%d, 0, s%d" % (RS[i], RS[i]))
    p("v_lshrrev_b32 v36, 3, v1")
    p("v_bfe_u32 v37, v36, 1, 2")
    p("v_lshlrev_b32 v37, 1, v37")
    p("v_and_b32 v38, 7, v1")
    p("v_xor_b32 v37, v37, v38")
    p("v_lshlrev_b32 v37, 4, v37")
    p("v_mul_u32_u24 v36, 896, v36")
    p("v_add_u32 v%d, v36, v37" % V2)
    srd(p, 12, pW2, pW2 + 1, 448 * 1792 * 2)
    p("s_cmp_lt_u32 s%d, 14" % sROLE)
    p("s_cselect_b32 s14, s14, 0")
    p("s_lshr_b32 s28, s%d, 1" % sROLE)
    p("s_mul_i32 s35, s%d, %d" % (sWAVE, 14 * 32 * 896))
    p("s_lshl_b32 s3, s28, 7")
    p("s_add_u32 s35, s35, s3")
    p("s_mov_b32 s26, 0x3f80")
    p("s_mov_b32 s27, 0x3f800000")
    p("s_waitcnt vmcnt(0)")
    p("s_barrier")
    signalw(p, 30, sHEAD, 26, 27, "T_SIGP")
    p("s_lshl_b32 s3, s%d, 12" % sWAVE)
    for i in range(5):
        p("s_add_u32 s%d, s%d, s3" % (WS_[i], RS[i]))
    st(8)
    pollw(p, 31, 16, 28, 27, 32, 33, "T_POLLP", depth=pd, gap=3)
    st(9)
    p("s_mov_b32 s3, 0x%x" % WS_PART)

    def pload(h):
        p("buffer_load_dwordx4 %s, v%d, s[8:11], s3 offen sc1" % (vr(L + 8 * h), FO))
        p("buffer_load_dwordx4 %s, v%d, s[8:11], s3 offen sc1" % (vr(L + 8 * h + 4), FO2))
        p("s_add_u32 s3, s3, 0x%x" % H_BYTES)

    for h in range(8):
        pload(h)
    extra = [A.dma(j) for j in range(4)] + w2(0) + w2(1)
    if w1late:
        pre = []
        for ch in range(3):
            pre += [A.dma(j) + (A.PROD_ADV if j == 7 else []) for j in range(8)]
        extra = pre + extra
    nx = 0
    for h in range(8):
        p("s_waitcnt vmcnt(%d)" % (14 - 2 * h + nx))
        for d in range(8):
            p("v_dot2c_f32_bf16 v%d, s26, v%d" % (X + 2 * d, L + 8 * h + d))
            p("v_dot2c_f32_bf16 v%d, s27, v%d" % (X + 2 * d + 1, L + 8 * h + d))
            if (h >= 2 and d % 4 == 3) or (w1late and (d % 4 == 3 or d == 1)):
                J(extra[nx])
                nx += 1
    extra = extra[nx:]
    st(10)
    unpack(p, L, XR, 8)
    p("s_nop 2")
    for i in range(16):
        round_bf16(p, X + i)
        p("v_mul_f32 v%d, v%d, v%d" % (X + i, X + i, GA + i))
        round_bf16(p, X + i)
        p("v_add_f32 v%d, v%d, v%d" % (X + i, X + i, L + i))
        if extra:
            J(extra.pop(0))
    assert not extra
    for d in range(8):
        p("v_cvt_pk_bf16_f32 v%d, v%d, v%d" % (XR + d, X + 2 * d, X + 2 * d + 1))
    p("s_mov_b32 s3, 0x%x" % WS_X1)
    p("buffer_store_dwordx4 %s, v%d, s[8:11], s3 offen" % (vr(XR), FO))
    p("buffer_store_dwordx4 %s, v%d, s[8:11], s3 offen" % (vr(XR + 4), FO2))
    unpack(p, X, XR, 8)
    p("s_add_u32 s3, s%d, 16384" % RS[3])
    p("v_lshl_add_u32 v25, v%d, 4, s3" % R_)
    p("s_lshl_b32 s3, s%d, 2" % sWAVE)
    p("v_add_u32 v26, s3, v25")
    p("v_add_f32 v36, v%d, v%d" % (X, X + 1))
    for i in range(2, 16):
        p("v_add_f32 v36, v36, v%d" % (X + i))
    xsum_345(p, 36, 37)
    p("ds_write_b32 v26, v36")
    p("s_waitcnt lgkmcnt(0)")
    p("s_barrier")
    p("ds_read_b128 v[40:43], v25")
    p("s_waitcnt lgkmcnt(0)")
    p("v_add_f32 v40, v40, v41")
    p("v_add_f32 v42, v42, v43")
    p("v_add_f32 v40, v40, v42")
    p("v_mul_f32 v40, %s, v40" % f32bits(1.0 / 448))
    p("v_mov_b32 v36, 0")
    p("v_mov_b32 v38, 0")
    for i in range(16):
        p("v_sub_f32 v%d, v%d, v40" % (X + i, X + i))
        p("v_fmac_f32 v%d, v%d, v%d" % (36 if i < 8 else 38, X + i, X + i))
    p("v_fmac_f32 v36, s29, v38")
    xsum_345(p, 36, 37)
    p("ds_write_b32 v26, v36 offset:128")
    p("s_waitcnt lgkmcnt(0)")
    p("s_barrier")
    p("ds_read_b128 v[40:43], v25 offset:128")
    p("s_waitcnt lgkmcnt(0)")
    p("v_add_f32 v40, v40, v41")
    p("v_add_f32 v42, v42, v43")
    p("v_add_f32 v40, v40, v42")
    p("v_mov_b32 v41, %s" % f32bits(1e-5))
    p("v_fmac_f32 v41, %s, v40" % f32bits(1.0 / 448))
    p("v_rsq_f32 v41, v41")
    for i in range(16):
        p("v_mul_f32 v%d, v%d, v41" % (X + i, X + i))
        p("v_fma_f32 v%d, v%d, v%d, v%d" % (X + i, X + i, SC + i, SH + i))
    for d in range(8):
        p("v_cvt_pk_bf16_f32 v%d, v%d, v%d" % (L + d, X + 2 * d, X + 2 * d + 1))
    p("s_mov_b32 s3, 0x%x" % WS_H2)
    p("buffer_store_dwordx4 %s, v%d, s[8:11], s3 offen" % (vr(L), FO))
    p("buffer_store_dwordx4 %s, v%d, s[8:11], s3 offen" % (vr(L + 4), FO2))
    flag_off(p, 30, FL_H2, sHEAD)
    B1, CUR = 16, 24
    p("v_lshrrev_b32 v36, 2, v1")
    p("v_and_b32 v38, 3, v1")
    p("v_lshlrev_b32 v37, 8, v36")
    p("v_lshl_add_u32 v37, v38, 3, v37")
    p("v_and_b32 v39, 7, v36")
    p("v_lshl_add_u32 v37, v39, 5, v37")
    for x in range(8):
        p("v_xor_b32 v%d, %d, v37" % (B1 + x, 32 * x))
    p("v_lshlrev_b32 v37, 7, v36")
    p("v_lshl_add_u32 v37, v38, 3, v37")
    p("v_bfe_u32 v39, v36, 1, 2")
    p("v_lshl_add_u32 v37, v39, 5, v37")
    for x in range(4):
        p("v_xor_b32 v%d, %d, v37" % (B2 + x, 32 * x))
    p("s_waitcnt vmcnt(0)")
    p("s_barrier")
    signalw(p, 30, sROLE, 36, 38, "T_SIGH2", local=True)
    p("s_cmp_ge_u32 s%d, 14" % sROLE)
    p("s_cbranch_scc1 K_FIN")
    st(11)

    H, ACC = 48, 160

    def cur1(ch):
        return ["v_add_u32 v%d, s%d, v%d" % (CUR + x, RS[ch], B1 + x) for x in range(8)]

    def reads1(c):
        o = []
        for k in range(2):
            ks = 2 * c + k
            for ft in range(8):
                for i in range(2):
                    o.append("ds_read_b64_tr_b16 %s, v%d offset:%d" % (
                        ar((c & 1) * 64 + (k * 8 + ft) * 4 + 2 * i, 2), CUR + ft, (ks & 3) * 8192 + i * 4096))
        return o

    J(cur1(0) + cur2(4) + reads1(0) + reads2(0) + reads2(1))
    p("s_lshl_b32 s22, s%d, 3" % sHEAD)
    p("s_lshl_b32 s3, s%d, 1" % sWAVE)
    p("s_add_u32 s22, s22, s3")
    p("s_mul_i32 s26, s22, 14336")
    p("s_add_u32 s26, s26, 0x%x" % WS_H2)

    def hload(ks, qt):
        off = qt * 14336 + ks * 1024
        return ["s_add_u32 s27, s26, %d" % (off & ~0xfff),
                "buffer_load_dwordx4 %s, v%d, s[8:11], s27 offen offset:%d sc1" % (vr(H + (ks * 2 + qt) * 4), L16, off & 0xfff)]

    pollw(p, 30, 16, 36, 38, 32, 33, "T_POLLH2", acquire=True)
    for ks in range(6):
        for qt in range(2):
            J(hload(ks, qt))
    st(12)
    side = {0: [hload(ks, qt) for ks in range(6, 10) for qt in range(2)],
            1: [hload(ks, qt) for ks in range(10, 14) for qt in range(2)],
            2: w2(2) + w2(3), 3: w2(4) + w2(5), 4: w2(6) + w2(7), 5: w2(8), 6: w2(9) + w2(10)}
    issued = 12
    for c in range(7):
        mf = []
        for k in range(2):
            ks = 2 * c + k
            for ft in range(8):
                for qt in range(2):
                    acc = vr(ACC + (qt * 8 + ft) * 4)
                    mf.append("%s %s, %s, %s, %s" % (MF, acc, ar((c & 1) * 64 + (k * 8 + ft) * 4), vr(H + (ks * 2 + qt) * 4), acc if ks else "0"))
        G = Gaps(32)
        p("s_waitcnt vmcnt(%d) lgkmcnt(%d)" % (issued - 4 * (c + 1), 0 if c == 0 else 8))
        if c in (2, 4, 6):
            p("s_barrier")
        busy = []
        for k, op in enumerate(side[c]):
            g = A.DG[k]
            if len(op) == 3:
                G.at(g - 1, op[0])
            G.at(g, op[-2], op[-1])
            busy.append(g)
        issued += len(side[c])
        if c < 6:
            first = 0
            if c & 1:
                cs = cur1((c + 1) >> 1)
                G.at(0, cs[0], cs[1])
                for x, g in zip(range(2, 8), (1, 3, 4, 5, 7, 8)):
                    G.at(g, cs[x])
                first = 1
            A.spread_reads(G, reads1(c + 1), [g for g in range(first, 32) if g not in busy])
        else:
            G.at(16, "s_waitcnt vmcnt(%d)" % (20 + 4))
            G.put([17, 19, 20, 21, 23, 24, 25, 27, 28, 29, 31, 31, 29, 28, 27, 25], reads2(2) + reads2(3))
        G.at(12, "s_waitcnt lgkmcnt(%d)" % (8 if c < 6 else 0))
        p(G.weave(mf))
        if c == 0:
            st("m0")
    st("m1")
    p("s_mul_i32 s26, s22, 57344")
    p("s_lshl_b32 s3, s%d, 12" % sROLE)
    p("s_add_u32 s26, s26, s3")
    p("s_add_u32 s26, s26, 0x%x" % WS_ACT)
    p("s_add_u32 s27, s26, 57344")
    p("s_mov_b32 s31, %s" % f32bits(-math.log2(math.e)))
    p("s_waitcnt lgkmcnt(0)")
    p("s_barrier")
    rest = w2(11) + w2(12) + w2(13)
    for qt in range(2):
        for u in range(4):
            n = qt * 4 + u
            Aa = ACC + (qt * 8 + 2 * u) * 4
            T = 48 + (n % 2) * 16
            if n < 6:
                J(rest[2 * n])
            for k in range(8):
                p("v_mul_f32 v%d, s31, v%d" % (T + k, Aa + k))
            for k in range(8):
                p("v_exp_f32 v%d, v%d" % (T + k, T + k))
            if n < 6:
                J(rest[2 * n + 1])
            for k in range(8):
                p("v_add_f32 v%d, 1.0, v%d" % (T + k, T + k))
            for k in range(8):
                p("v_rcp_f32 v%d, v%d" % (T + k, T + k))
            for k in range(8):
                p("v_mul_f32 v%d, v%d, v%d" % (T + k, T + k, Aa + k))
            for d in range(4):
                p("v_cvt_pk_bf16_f32 v%d, v%d, v%d" % (T + 8 + d, T + 2 * d, T + 2 * d + 1))
            p("buffer_store_dwordx4 %s, v%d, s[8:11], s%d offen offset:%d" % (vr(T + 8), L16, 26 + qt, u * 1024))
    st("m2")
    flag_off(p, 30, FL_A, sHEAD)
    p("s_lshl_b32 s22, s%d, 3" % sHEAD)
    p("s_and_b32 s3, s%d, 1" % sROLE)
    p("s_lshl_b32 s3, s3, 2")
    p("s_add_u32 s22, s22, s3")
    p("s_mul_i32 s25, s22, 57344")
    p("s_mul_i32 s3, s%d, 14336" % sWAVE)
    p("s_add_u32 s25, s25, s3")
    p("s_add_u32 s25, s25, 0x%x" % WS_ACT)
    for q in range(4):
        p("s_add_u32 s3, s%d, %d" % (sWAVE, q))
        p("s_and_b32 s3, s3, 3")
        p("s_mul_i32 s%d, s3, 57344" % (4 + q))
        p("s_add_u32 s%d, s%d, s25" % (4 + q, 4 + q))
    p("s_add_u32 s22, s22, s%d" % sWAVE)
    p("s_mul_i32 s26, s22, 14336")
    p("s_lshl_b32 s3, s28, 11")
    p("s_add_u32 s26, s26, s3")
    p("s_add_u32 s26, s26, 0x%x" % WS_X1)
    p("buffer_load_dwordx4 v[128:131], v%d, s[8:11], s26 offen sc1" % L16)
    p("buffer_load_dwordx4 v[132:135], v%d, s[8:11], s26 offen offset:1024 sc1" % L16)
    p("v_lshrrev_b32 v13, 4, v1")
    p("v_lshlrev_b32 v13, 4, v13")
    p("s_lshl_b32 s3, s28, 8")
    p("s_add_u32 s26, s3, %d" % (WS_MOD + 5 * 448 * 4))
    for mt in range(4):
        p("buffer_load_dwordx4 %s, v13, s[8:11], s26 offen offset:%d sc1" % (vr(136 + 4 * mt), 64 * mt))
    p("s_waitcnt vmcnt(6)")
    p("s_barrier")
    signalw(p, 30, sROLE, 36, 38, "T_SIGA", local=True)
    st(13)

    ACC = 64
    NA = 8

    def aload(k, q):
        o = []
        if k % 4 == 0 and k:
            o.append("s_add_u32 s%d, s%d, 4096" % (4 + q, 4 + q))
        o.append("buffer_load_dwordx4 %s, v%d, s[8:11], s%d offen offset:%d sc1" % (ar(((k % NA) * 4 + q) * 4), L16, 4 + q, (k % 4) * 1024))
        return o

    srd(p, 12, pOUT, pOUT + 1, H_BYTES)
    p("v_and_b32 v12, 15, v1")
    p("s_lshl_b32 s3, s22, 4")
    p("v_add_u32 v12, s3, v12")
    p("v_mul_u32_u24 v12, 896, v12")
    p("v_lshrrev_b32 v13, 1, v13")
    p("v_add_u32 v12, v12, v13")
    p("s_lshl_b32 s27, s28, 7")
    pollw(p, 30, 14, 36, 38, 32, 33, "T_POLLA", acquire=True)
    st(14)
    PRE = 5
    for k in range(PRE):
        for q in range(4):
            J(aload(k, q))
    st("n1")
    for k in range(14):
        if k in (1, 7):
            st("n2" if k == 1 else "n3")
        kind, wb = wreg(k)
        mf = []
        for mt in range(4):
            for q in range(4):
                acc = vr(ACC + (q * 4 + mt) * 4)
                mf.append("%s %s, %s, %s, %s" % (MF, acc, vr(wb + mt * 4, 4, kind), ar(((k % NA) * 4 + q) * 4), acc if k else "0"))
        G = Gaps(16)
        nis = min(14, PRE + k)
        nrd = min(13, k + 1) - k
        p("s_waitcnt vmcnt(%d) lgkmcnt(%d)" % (4 * (nis - k - 1), 8 * nrd if k >= 4 else 15))
        kr = k + 2
        if 4 <= kr < 14:
            if kr == 4 or W2P[kr][0] != W2P[kr - 1][0]:
                cs = cur2(W2P[kr][0])
                G.at(0, cs[0], cs[1])
                G.at(1, cs[2], cs[3])
            G.put([2, 4, 5, 7, 8, 10, 11, 13], reads2(kr))
        if k + PRE < 14:
            for q, g in enumerate((3, 6, 9, 12)):
                G.at(g, *aload(k + PRE, q))
        p(G.weave(mf))
    st("n4")
    p("s_barrier")
    for q in range(1, 4):
        p("s_add_u32 s3, s%d, %d" % (sWAVE, q))
        p("s_and_b32 s3, s3, 3")
        p("s_mul_i32 s3, s3, 12288")
        p("v_add_u32 v%d, s3, v%d" % (8 + q, L16))
        for mt in range(4):
            p("ds_write_b128 v%d, %s offset:%d" % (8 + q, vr(ACC + (q * 4 + mt) * 4), (q - 1) * 4096 + mt * 1024))
    p("s_mul_i32 s3, s%d, 12288" % sWAVE)
    p("v_add_u32 v8, s3, v%d" % L16)
    unpack(p, 160, 128, 8)
    p("s_waitcnt lgkmcnt(0)")
    p("s_barrier")
    for t in range(12):
        p("ds_read_b128 %s, v8 offset:%d" % (vr(ACC + 16 + 4 * t), t * 1024))
    st("n5")
    for mt in range(4):
        if mt == 0:
            p("s_waitcnt lgkmcnt(0)")
        for r in range(4):
            a = ACC + 4 * mt + r
            p("v_add_f32 v%d, v%d, v%d" % (a, a, a + 16))
            p("v_add_f32 v%d, v%d, v%d" % (a + 32, a + 32, a + 48))
            p("v_add_f32 v%d, v%d, v%d" % (a, a, a + 32))
            round_bf16(p, a)
            p("v_mul_f32 v%d, v%d, v%d" % (a, a, 136 + 4 * mt + r))
            round_bf16(p, a)
            p("v_add_f32 v%d, v%d, v%d" % (a, a, 160 + 4 * mt + r))
        for d in range(2):
            p("v_cvt_pk_bf16_f32 v%d, v%d, v%d" % (16 + 2 * mt + d, ACC + 4 * mt + 2 * d, ACC + 4 * mt + 2 * d + 1))
        p("buffer_store_dwordx2 %s, v12, s[12:15], s27 offen offset:%d" % (vr(16 + 2 * mt, 2), 32 * mt))
    st(15)
```
